```python
import torch

def _softmax(x, axis=-1):
    return torch.softmax(x, dim=axis)

def _gelu(x):
    return torch.nn.functional.gelu(x, approximate='tanh')

def _silu(x):
    return torch.nn.functional.silu(x)

def _sigmoid(x):
    return torch.sigmoid(x)

def _layernorm(x, axis=-1, eps=1e-05):
    m = x.mean(dim=axis, keepdim=True)
    v = x.var(dim=axis, keepdim=True, unbiased=False)
    return (x - m) / torch.sqrt(v + eps)

def _scatter_add(tgt, idx, src, axis=0):
    return tgt.clone().index_add_(axis, idx, src)

def _segment_sum(src, seg, n):
    out = torch.zeros((n,) + src.shape[1:], dtype=src.dtype)
    return out.index_add_(0, seg, src)

def _pad(x, pw):
    flat = tuple((v for pair in reversed(pw) for v in pair))
    return torch.nn.functional.pad(x, flat)
kernel_name = 'adaLN_cond__ssm_conv_s4d__mixer_gmlp__prompt'

def setup_inputs():

    _w = lambda a: (lambda t: t.to(torch.bfloat16) if t.is_floating_point() else t)(torch.as_tensor(a))

    def _A_setup():
        Bsz, L, D, N = (1, 2048, 512, 128)
        return {'u': _w((lambda *s: torch.randn(*s, dtype=torch.bfloat16) * 0.05)(Bsz, L, D)), 'log_A_real': _w((lambda *s: torch.randn(*s, dtype=torch.bfloat16) * 3.2)(D, N) * 0.5), 'A_imag': _w((lambda *s: torch.randn(*s, dtype=torch.bfloat16) * 0.2)(D, N) * 3.14), 'C_real': _w((lambda *s: torch.randn(*s, dtype=torch.bfloat16) * 0.8)(D, N) / N ** 0.5), 'C_imag': _w((lambda *s: torch.randn(*s, dtype=torch.bfloat16) * 0.8)(D, N) / N ** 0.5), 'log_dt': _w((lambda *s: torch.randn(*s, dtype=torch.bfloat16) * 0.2)(D) * 0.5 - 4.0), 'D_skip': _w((lambda *s: torch.randn(*s, dtype=torch.bfloat16) * 0.2)(D))}
    _A_in = _A_setup()

    def _B_setup():
        B, S, D, F = (1, 2048, 512, 1376)
        Fh = F // 2
        return {'x': _w((lambda *s: torch.randn(*s, dtype=torch.bfloat16) * 0.05)(B, S, D)), 'w_in': _w((lambda *s: torch.randn(*s, dtype=torch.bfloat16) * 0.4)(D, 2 * Fh)), 'w_sp': _w(0.01 * (lambda *s: torch.randn(*s, dtype=torch.bfloat16) * 0.4)(S, S)), 'b_sp': _w(1.0 + 0.01 * (lambda *s: torch.randn(*s, dtype=torch.bfloat16) * 0.05)(S)), 'w_out': _w((lambda *s: torch.randn(*s, dtype=torch.bfloat16) * 0.05)(Fh, D))}
    _B_in = _B_setup()
    return {'A_u': _A_in['u'], 'A_log_A_real': _A_in['log_A_real'], 'A_A_imag': _A_in['A_imag'], 'A_C_real': _A_in['C_real'], 'A_C_imag': _A_in['C_imag'], 'A_log_dt': _A_in['log_dt'], 'A_D_skip': _A_in['D_skip'], 'B_x': _B_in['x'], 'B_w_in': _B_in['w_in'], 'B_w_sp': _B_in['w_sp'], 'B_b_sp': _B_in['b_sp'], 'B_w_out': _B_in['w_out'], 'c': _w((lambda *s: torch.randn(*s, dtype=torch.bfloat16) * 0.2)(1, 512) * 8.0), 'w_mod': _w((lambda *s: torch.randn(*s, dtype=torch.bfloat16) * 0.2)(512, 6 * 512) * 512 ** (-0.5) * 8.0)}

def reference(A_u, A_log_A_real, A_A_imag, A_C_real, A_C_imag, A_log_dt, A_D_skip, B_x, B_w_in, B_w_sp, B_b_sp, B_w_out, c, w_mod):

    def _A_ref(u, log_A_real, A_imag, C_real, C_imag, log_dt, D_skip):
        L = u.shape[1]
        dt = torch.exp(log_dt)
        A = -torch.exp(log_A_real) + 1j * A_imag
        C = (C_real + 1j * C_imag) * dt[:, None]
        pos = (lambda x, dt: x.to(dt))(torch.arange(L), log_dt.dtype)
        P = torch.exp((A * dt[:, None])[:, :, None] * pos[None, None, :])
        K = 2.0 * torch.einsum('dn,dnl->dl', C, P).real
        L2 = 2 * L
        u_t = (lambda x, *d: x.permute(*d))(u, 0, 2, 1)
        Kf = (lambda x, *a, **k: torch.fft.rfft(x.float(), *a, **k))(K, L2)
        Uf = (lambda x, *a, **k: torch.fft.rfft(x.float(), *a, **k))(u_t, L2)
        y = (lambda x, *a, **k: torch.fft.irfft(x, *a, **k).to(torch.bfloat16))(Uf * Kf[None, :, :], L2)[:, :, :L]
        y = (lambda x, *d: x.permute(*d))(y, 0, 2, 1)
        return y + u * D_skip[None, None, :]

    def _B_ref(x, w_in, w_sp, b_sp, w_out):
        B, S, D = x.shape
        F = w_in.shape[-1]
        Fh = F // 2
        z = _gelu(torch.einsum('bsd,df->bsf', x, w_in))
        z1 = z[..., :Fh].clone()
        z2 = _layernorm(z[..., Fh:], axis=-1)
        g = torch.einsum('ts,bsf->btf', w_sp, z2) + b_sp[None, :, None]
        return torch.einsum('bsf,fd->bsd', z1 * g, w_out)
    x = A_u
    mod = (_silu(c) @ w_mod).reshape(c.shape[0], 6, 1, -1)
    sa, ca, ga, sb, cb, gb = (mod[:, 0].clone(), mod[:, 1].clone(), mod[:, 2].clone(), mod[:, 3].clone(), mod[:, 4].clone(), mod[:, 5].clone())
    h = _layernorm(x, axis=-1) * (1 + ca) + sa
    x = x + ga * _A_ref(h, A_log_A_real, A_A_imag, A_C_real, A_C_imag, A_log_dt, A_D_skip)
    h = _layernorm(x, axis=-1) * (1 + cb) + sb
    x = x + gb * _B_ref(h, B_w_in, B_w_sp, B_b_sp, B_w_out)
    return x
```

```python
import re

TRANS = ("v_exp_f32", "v_log_f32", "v_rcp_f32", "v_rsq_f32", "v_sqrt_f32", "v_sin_f32", "v_cos_f32",
         "v_rcp_iflag_f32", "v_exp_f16", "v_rcp_f16")
REG_RE = re.compile(r"\b([vas])(\d+)\b|\b([vas])\[(\d+):(\d+)\]|\b(vcc|exec|m0|scc)\b")

def regs_of(op):
    out = []
    for m in REG_RE.finditer(op):
        if m.group(1):
            out.append((m.group(1), int(m.group(2))))
        elif m.group(3):
            for i in range(int(m.group(4)), int(m.group(5)) + 1):
                out.append((m.group(3), i))
        else:
            out.append((m.group(6), 0))
    return out

def split_ops(s):
    ops, depth, cur = [], 0, ""
    for ch in s:
        if ch == "[": depth += 1
        if ch == "]": depth -= 1
        if ch == "," and depth == 0:
            ops.append(cur.strip()); cur = ""
        else:
            cur += ch
    if cur.strip(): ops.append(cur.strip())
    return ops

class Ins:
    def __init__(self, text):
        self.text = text
        t = text.split(";")[0].strip()
        self.label = None
        if t.endswith(":"):
            self.label = t[:-1]; self.mn = ""; self.cls = "label"; self.w = []; self.r = []; return
        if t.startswith("."):
            self.mn = ""; self.cls = "dir"; self.w = []; self.r = []; return
        parts = t.split(None, 1)
        mn = parts[0]; self.mn = mn
        rest = parts[1] if len(parts) > 1 else ""
        ops = split_ops(rest)
        mods = ""
        if ops:
            lp = ops[-1].split()
            ops[-1] = lp[0]; mods = " ".join(lp[1:])
        self.ops = ops; self.mods = mods
        w, r = [], []
        self.passes = 0; self.srcc = []; self.srcab = []; self.sdata = []
        if mn.startswith("v_mfma"):
            self.cls = "mfma"
            w = regs_of(ops[0]); self.srcab = regs_of(ops[1]) + regs_of(ops[2]); self.srcc = regs_of(ops[3])
            r = self.srcab + self.srcc
            self.passes = 8 if "32x32x16" in mn else 4 if "16x16x32" in mn else None
            assert self.passes, mn
        elif mn.startswith("v_"):
            self.cls = "valu"
            base = mn.replace("_e32", "").replace("_e64", "").replace("_dpp", "").replace("_sdwa", "")
            self.base = base
            if base.startswith("v_cmp"):
                w = regs_of(ops[0]); r = sum((regs_of(o) for o in ops[1:]), [])
            elif base in ("v_add_co_u32", "v_sub_co_u32", "v_addc_co_u32", "v_mad_u64_u32"):
                w = regs_of(ops[0]) + regs_of(ops[1]); r = sum((regs_of(o) for o in ops[2:]), [])
            elif base.startswith("v_permlane") and "swap" in base:
                w = regs_of(ops[0]) + regs_of(ops[1]); r = list(w)
            else:
                w = regs_of(ops[0]); r = sum((regs_of(o) for o in ops[1:]), [])
                if base in ("v_fmac_f32", "v_dot2c_f32_bf16", "v_writelane_b32", "v_pk_fmac_f16") or "_dpp" in mn or "row_" in mods or "quad_perm" in mods or "dst_sel" in mods:
                    r = r + regs_of(ops[0])
            self.dpp = ("_dpp" in mn) or ("row_" in mods) or ("quad_perm" in mods)
            self.trans = base in TRANS
            self.dot = base.startswith("v_dot")
            self.opsel_dst = ("dst_sel" in mods and "DWORD" not in mods.split("dst_sel")[1][:8])
        elif mn.startswith(("buffer_", "global_", "flat_")):
            self.cls = "vmem"
            if mn in ("buffer_wbl2", "buffer_inv"):
                pass
            elif " lds" in (" " + mods) or "_lds_" in mn:
                r = sum((regs_of(o) for o in ops), []) + [("m0", 0)]
                self.ldsdma = True
            elif "store" in mn:
                r = sum((regs_of(o) for o in ops), [])
                d = ops[0] if mn.startswith("buffer_") else ops[1]
                if mn.endswith(("x3", "x4")): self.sdata = regs_of(d)
            elif "atomic" in mn:
                r = sum((regs_of(o) for o in ops), [])
                if "sc0" in mods: w = regs_of(ops[0])
            else:
                w = regs_of(ops[0]); r = sum((regs_of(o) for o in ops[1:]), [])
                if "d16" in mn: r = r + w
        elif mn.startswith("ds_"):
            self.cls = "ds"
            if mn.startswith(("ds_write", "ds_add", "ds_max", "ds_min", "ds_or")) and "rtn" not in mn:
                r = sum((regs_of(o) for o in ops), [])
            else:
                w = regs_of(ops[0]); r = sum((regs_of(o) for o in ops[1:]), [])
                if "d16" in mn: r = r + w
        elif mn.startswith("s_"):
            self.cls = "salu"
            if mn in ("s_nop", "s_waitcnt", "s_barrier", "s_endpgm", "s_sleep", "s_setprio", "s_branch") or mn.startswith("s_cbranch"):
                self.cls = "ctl"
            elif mn.startswith("s_cmp"):
                r = sum((regs_of(o) for o in ops), [])
            elif mn.startswith(("s_load", "s_memtime", "s_memrealtime", "s_buffer_load")):
                self.cls = "smem"; w = regs_of(ops[0]); r = sum((regs_of(o) for o in ops[1:]), [])
            else:
                w = regs_of(ops[0]); r = sum((regs_of(o) for o in ops[1:]), [])
                if "saveexec" in mn: w = w + [("exec", 0)]
        else:
            raise ValueError("unknown instr " + text)
        self.w = set(w); self.r = set(r)
    def states(self):
        if self.cls in ("label", "dir"): return 0
        if self.mn == "s_nop": return int(self.ops[0], 0) + 1
        return 1

XDL_RD = {2: 5, 4: 8, 8: 12, 16: 20}
XDL_C_OVL = {2: 4, 4: 6, 8: 10, 16: 18}
XDL_C_WAR = {2: 1, 4: 3, 8: 7, 16: 15}
def isv(x): return x[0] in ("v", "a")
def iss(x): return x[0] in ("s", "vcc")

def need(p, c):
    n = 0
    if p.cls == "valu":
        pv = {x for x in p.w if isv(x)}; ps = {x for x in p.w if iss(x)}
        if c.cls == "mfma" and pv & c.r: n = max(n, 2)
        if c.cls == "valu":
            if p.trans and (pv & c.r): n = max(n, 1)
            if p.dot and (pv & (c.r | c.w)):
                if not (c.base == p.base and not (pv & set(sum((regs_of(o) for o in c.ops[1:3]), [])))):
                    n = max(n, 3)
            if c.dpp and (pv & c.r): n = max(n, 2)
            if c.base.startswith("v_permlane") and (pv & c.r): n = max(n, 2)
            if c.base in ("v_readlane_b32", "v_readfirstlane_b32") and (pv & c.r): n = max(n, 1)
            if ps & c.r:
                n = max(n, 4 if c.base in ("v_readlane_b32", "v_writelane_b32") else 2)
            if p.opsel_dst and (pv & (c.r | c.w)): n = max(n, 1)
        if c.cls in ("vmem", "ds", "mfma") and (p.trans or p.dot) and (pv & c.r): n = max(n, 3 if p.dot else 1)
        if c.cls == "vmem" and (ps & c.r): n = max(n, 5)
        if c.cls in ("salu", "smem") and (ps & c.r): n = max(n, 1)
    if p.cls == "mfma":
        d = p.w
        if c.cls == "mfma":
            if d & set(c.srcab): n = max(n, XDL_RD[p.passes])
            cc = set(c.srcc)
            if d & cc:
                if not (d == cc and p.passes == c.passes): n = max(n, XDL_C_OVL[p.passes])
            if (d & c.w) and not (d & cc): n = max(n, XDL_RD[p.passes])
        elif c.cls in ("valu", "vmem", "ds"):
            if d & (c.r | c.w): n = max(n, XDL_RD[p.passes])
            if c.cls == "valu" and (set(p.srcc) & c.w): n = max(n, XDL_C_WAR[p.passes])
    if p.cls == "vmem" and p.sdata:
        if set(p.sdata) & c.w: n = max(n, 2 if c.cls in ("valu", "mfma") else 1)
    if p.cls == "salu" and ("m0", 0) in p.w and ("m0", 0) in c.r and c.cls != "salu": n = max(n, 1)
    return n

class Asm:
    def __init__(self):
        self.ins = []
        self.vm = []
        self.lg = []
    def __call__(self, text, tag=None):
        for line in text.strip().split("\n"):
            line = line.strip()
            if not line or line.startswith(";"): continue
            i = Ins(line)
            self.ins.append(i)
            if i.cls == "vmem" and i.mn not in ("buffer_wbl2", "buffer_inv"): self.vm.append(tag)
            if i.cls == "ds": self.lg.append(tag)
            if i.mn == "s_waitcnt":
                m = re.search(r"vmcnt\((\d+)\)", line)
                if m:
                    k = int(m.group(1)); self.vm = self.vm[len(self.vm) - k:] if k < len(self.vm) else self.vm
                m = re.search(r"lgkmcnt\((\d+)\)", line)
                if m:
                    k = int(m.group(1)); self.lg = self.lg[len(self.lg) - k:] if k < len(self.lg) else self.lg
    def label(self, name): self(name + ":")
    def wait_vm(self, tag):
        idx = [i for i, t in enumerate(self.vm) if t == tag]
        if not idx: return
        n = len(self.vm) - 1 - idx[-1]
        self("s_waitcnt vmcnt(%d)" % min(n, 63))
    def wait_lg(self, tag):
        idx = [i for i, t in enumerate(self.lg) if t == tag]
        if not idx: return
        n = len(self.lg) - 1 - idx[-1]
        self("s_waitcnt lgkmcnt(%d)" % min(n, 15))
    def reset_counts(self): self.vm = []; self.lg = []
    def finish(self):
        WIN = 24
        ins = self.ins
        def pad_needed(prev, c):
            dist = 0; req = 0
            for p in reversed(prev):
                if p.cls not in ("label", "dir"):
                    nd = need(p, c)
                    if nd > dist: req = max(req, nd - dist)
                dist += p.states()
                if dist >= WIN: break
            return req
        def nops(n):
            out = []
            while n > 0:
                k = min(n, 16); out.append(Ins("s_nop %d" % (k - 1))); n -= k
            return out
        out = []
        for c in ins:
            if c.cls not in ("label", "dir"):
                r = pad_needed(out[-64:], c)
                if r: out += nops(r)
            out.append(c)
        changed = True
        while changed:
            changed = False
            labels = {c.label: i for i, c in enumerate(out) if c.cls == "label"}
            for i, c in enumerate(out):
                if c.mn == "s_branch" or c.mn.startswith("s_cbranch"):
                    t = labels[c.ops[0]]
                    pre = out[max(0, i - 64): i + 1]
                    seq = list(pre); worst = 0; dist = 0
                    for d in out[t: t + 64]:
                        if d.cls not in ("label", "dir"):
                            dd = dist; req = 0
                            for p in reversed(pre):
                                if p.cls not in ("label", "dir"):
                                    nd = need(p, d)
                                    if nd > dd: req = max(req, nd - dd)
                                dd += p.states()
                                if dd >= WIN: break
                            worst = max(worst, req)
                        dist += d.states()
                        if dist >= WIN or d.mn in ("s_branch", "s_endpgm"): break
                    if worst:
                        out[i:i] = nops(worst); changed = True; break
        self.out = out
        return "\n".join((c.text if c.cls in ("label", "dir") else "  " + c.text) for c in out) + "\n"
    def maxregs(self):
        mv = ma = ms = -1
        for c in self.ins:
            for (k, n) in (set(c.w) | set(c.r)):
                if k == "v": mv = max(mv, n)
                if k == "a": ma = max(ma, n)
                if k == "s": ms = max(ms, n)
        return mv + 1, ma + 1, ms + 1

def kernel_text(name, a):
    body = a.finish()
    mv, ma, ms = a.maxregs()
    acc = (mv + 3) // 4 * 4
    nfv = acc + ma if ma else mv
    head = ".text\n.globl %s\n.p2align 8\n.type %s,@function\n%s:\n" % (name, name, name)
    desc = """.section .rodata,"a"
.p2align 6
.amdhsa_kernel %s
  .amdhsa_next_free_vgpr %d
  .amdhsa_next_free_sgpr %d
  .amdhsa_accum_offset %d
  .amdhsa_group_segment_fixed_size 0
  .amdhsa_kernarg_size 136
  .amdhsa_user_sgpr_count 2
  .amdhsa_user_sgpr_kernarg_segment_ptr 1
  .amdhsa_system_sgpr_workgroup_id_x 1
.end_amdhsa_kernel
""" % (name, nfv, max(ms, 16), acc)
    return head + body, desc
```

```python
from asmlib import *
import struct
KA = dict(u=0, logA=8, Aim=16, Cr=24, Ci=32, logdt=40, Dsk=48, bx=56, win=64, wsp=72, bsp=80, wout=88, c=96, wmod=104, out=112, dbg=120, ws=128)
SZ = dict(u=2048*512*2, logA=512*128*2, Aim=512*128*2, Cr=512*128*2, Ci=512*128*2, logdt=1024, Dsk=1024, win=512*1376*2,
          wsp=2048*2048*2, bsp=4096, wout=688*512*2, c=1024, wmod=512*3072*2, out=2048*512*2, dbg=256, ws=0x2000000)
WS_MOD  = 0x000000
WS_KSC  = 0x004000
WS_CS1  = 0x005000
WS_CS2  = 0x006800
WS_ZST  = 0x010000
WS_XT   = 0x100000
WS_XNT  = 0x300000
KLEN    = 2064
WS_KK   = 0x500000
WS_X1T  = 0xA00000
WS_WIN  = 0xC00000
WS_WOUT = 0xE00000
WS_Z1   = 0x1000000
WS_Z2   = 0x1400000
WS_V    = 0x1800000

def f2u(x): return struct.unpack("<I", struct.pack("<f", x))[0]
def fl(x): return "0x%08x" % f2u(x)
LOG2E = 1.4426950408889634
L2E_HI = struct.unpack("<f", struct.pack("<f", LOG2E))[0]
L2E_LO = LOG2E - L2E_HI
LN2 = 0.6931471805599453

def load_ptr(a, sreg, name):
    a("s_load_dwordx2 s[%d:%d], s[0:1], %d" % (sreg, sreg + 1, KA[name]))
def make_srd(a, srd, name):
    a("s_mov_b32 s%d, 0x%x" % (srd + 2, SZ[name]))
    a("s_mov_b32 s%d, 0x20000" % (srd + 3))
def bf16r(a, dst, src):
    a("v_cvt_pk_bf16_f32 v%d, v%d, v%d" % (dst, src, src))
    a("v_and_b32 v%d, 0xffff0000, v%d" % (dst, dst))
def exp_acc(a, dst, x, t0, t1):
    a("v_mul_f32 v%d, %s, v%d" % (t0, fl(L2E_HI), x))
    a("v_mov_b32 v%d, %s" % (t1, fl(L2E_HI)))
    a("v_fma_f32 v%d, v%d, v%d, -v%d" % (t1, x, t1, t0))
    a("v_fmac_f32 v%d, %s, v%d" % (t1, fl(L2E_LO), x))
    a("v_exp_f32 v%d, v%d" % (t0, t0))
    a("v_mul_f32 v%d, %s, v%d" % (t1, fl(LN2), t1))
    a("v_fma_f32 v%d, v%d, v%d, v%d" % (dst, t0, t1, t0))
def cmul(a, d, x, y):
    assert d != x and d != y and d % 2 == 0 and x % 2 == 0 and y % 2 == 0
    a("v_pk_mul_f32 v[%d:%d], v[%d:%d], v[%d:%d] op_sel_hi:[1,0]" % (d, d + 1, x, x + 1, y, y + 1))
    a("v_pk_fma_f32 v[%d:%d], v[%d:%d], v[%d:%d], v[%d:%d] op_sel:[1,1,0] op_sel_hi:[0,1,1] neg_lo:[1,0,0]" % (d, d + 1, x, x + 1, y, y + 1, d, d + 1))
def cmul2(a, pairs):
    for d, x, y in pairs:
        assert d != x and d != y
        a("v_pk_mul_f32 v[%d:%d], v[%d:%d], v[%d:%d] op_sel_hi:[1,0]" % (d, d + 1, x, x + 1, y, y + 1))
    for d, x, y in pairs:
        a("v_pk_fma_f32 v[%d:%d], v[%d:%d], v[%d:%d], v[%d:%d] op_sel:[1,1,0] op_sel_hi:[0,1,1] neg_lo:[1,0,0]" % (d, d + 1, x, x + 1, y, y + 1, d, d + 1))
def reduce8(a, r, op="v_add_f32"):
    for i in range(4):
        a("v_permlane32_swap_b32 v%d, v%d" % (r[i], r[i + 4]))
    for i in range(4):
        a("%s v%d, v%d, v%d" % (op, r[i], r[i], r[i + 4]))
    for i in range(2):
        a("v_permlane16_swap_b32 v%d, v%d" % (r[i], r[i + 2]))
    for i in range(2):
        a("%s v%d, v%d, v%d" % (op, r[i], r[i], r[i + 2]))
    for sh in (1, 2, 4, 8):
        for i in range(2):
            a("%s_dpp v%d, v%d, v%d row_shr:%d row_mask:0xf bank_mask:0xf" % (op, r[i], r[i], r[i], sh))
```

```python
from gen_common import *
from gen_prep import colsum_tail, pack_out
NC, NP = 256, 44
GRID = NC + NP
CSZ = 4160
UB = 8 * CSZ
USZ = 7680
XB = UB + 2 * USZ
LDS = XB + 16384

def rnd_pk(a, p):
    a("v_cvt_pk_bf16_f32 v%d, v%d, v%d" % (p, p, p + 1))
    a("v_and_b32 v%d, 0xffff0000, v%d" % (p + 1, p)); a("v_lshlrev_b32 v%d, 16, v%d" % (p, p))

def role_conv(a):
    load_ptr(a, 24, "ws"); load_ptr(a, 4, "Dsk")
    a("s_lshr_b32 s21, s20, 1")
    a("s_and_b32 s23, s20, 1")
    a("s_lshl_b32 s22, s2, 1"); a("s_add_u32 s22, s22, s21")
    a("v_lshlrev_b32 v2, 4, v1")
    a("v_lshlrev_b32 v3, 4, v0")
    a("s_lshl_b32 s3, s2, 3")
    a("s_lshl_b32 s6, s2, 2")
    a("s_waitcnt lgkmcnt(0)")
    make_srd(a, 24, "ws")
    a("s_add_u32 s8, s24, s3"); a("s_addc_u32 s9, s25, 0")
    a("s_load_dwordx2 s[30:31], s[8:9], %d" % (WS_MOD + 0))
    a("s_load_dwordx2 s[32:33], s[8:9], %d" % (WS_MOD + 2048))
    a("s_load_dwordx2 s[34:35], s[8:9], %d" % (WS_MOD + 4096))
    a("s_load_dwordx2 s[36:37], s[8:9], %d" % WS_KSC)
    a("s_load_dword s38, s[4:5], s6")
    a("s_lshl_b32 s10, s2, 13"); a("s_add_u32 s10, s10, %d" % WS_XNT)
    a("buffer_load_dwordx4 v[8:11], v3, s[24:27], s10 offen", tag="xn")
    a("s_add_u32 s10, s10, 4096")
    a("buffer_load_dwordx4 v[12:15], v3, s[24:27], s10 offen", tag="xn")
    a("s_mul_i32 s11, s22, %d" % (4 * KLEN)); a("s_add_u32 s11, s11, %d" % WS_KK)
    a("s_lshl_b32 s12, s23, 2"); a("s_add_u32 s11, s11, s12")
    a("s_mul_i32 s13, s20, %d" % (2 * CSZ))
    for b in range(2):
        for c in range(4):
            a("s_add_u32 m0, s13, %d" % (b * CSZ + c * 1024))
            a("s_add_u32 s12, s11, %d" % (b * 2 * KLEN + c * 1024))
            a("buffer_load_dwordx4 v2, s[24:27], s12 offen lds", tag="k")
    a("v_and_b32 v4, 31, v1"); a("v_lshrrev_b32 v5, 5, v1")
    a("v_lshlrev_b32 v6, 6, v4"); a("v_lshl_add_u32 v6, v5, 5, v6")
    a("s_lshl_b32 s14, s22, 12"); a("s_lshl_b32 s15, s23, 11"); a("s_add_u32 s14, s14, s15")
    a("s_add_u32 s15, s14, %d" % WS_XT)
    a("buffer_load_dwordx4 v[16:19], v6, s[24:27], s15 offen", tag="x")
    a("buffer_load_dwordx4 v[20:23], v6, s[24:27], s15 offen offset:16", tag="x")
    for i in range(4): a("v_mov_b32 v%d, 0" % (24 + i))
    a("v_lshrrev_b32 v28, 7, v0"); a("v_mul_u32_u24 v28, %d, v28" % USZ)
    a("v_and_b32 v29, 127, v0"); a("v_add_u32 v30, 128, v29"); a("v_min_u32 v30, 154, v30")
    a("v_lshl_add_u32 v29, v29, 4, v28"); a("v_lshl_add_u32 v30, v30, 4, v28")
    a("ds_write_b128 v29, v[24:27] offset:%d" % UB); a("ds_write_b128 v30, v[24:27] offset:%d" % UB)
    a("v_bfe_u32 v28, v0, 2, 3"); a("v_mul_u32_u24 v28, %d, v28" % CSZ); a("v_and_b32 v29, 3, v0"); a("v_lshl_add_u32 v28, v29, 4, v28")
    a("ds_write_b128 v28, v[24:27] offset:4096")
    for i in range(32): a("v_mov_b32 v%d, 0" % (96 + i))
    a("v_and_b32 v28, 3, v4"); a("v_sub_u32 v28, 3, v28"); a("v_mul_u32_u24 v28, %d, v28" % CSZ)
    a("v_lshrrev_b32 v29, 2, v4"); a("v_lshlrev_b32 v29, 3, v29"); a("v_sub_u32 v28, v28, v29")
    a("v_lshl_add_u32 v28, v5, 4, v28")
    a("s_mul_i32 s16, s21, %d" % (4 * CSZ)); a("s_lshl_b32 s17, s23, 5"); a("s_add_u32 s16, s16, s17"); a("s_add_u32 s16, s16, 56")
    a("v_add_u32 v28, s16, v28")
    a("v_mul_u32_u24 v29, 80, v4"); a("v_lshl_add_u32 v30, v5, 4, v29")
    a("s_mul_i32 s18, s21, %d" % USZ); a("s_add_u32 s19, s18, s17"); a("s_add_u32 s19, s19, %d" % UB)
    a("v_add_u32 v30, s19, v30")
    a("v_lshl_add_u32 v31, v5, 3, v29"); a("s_mul_i32 s19, s23, 2560"); a("s_add_u32 s19, s19, s18"); a("s_add_u32 s19, s19, %d" % (UB + 31 * 80))
    a("v_add_u32 v31, s19, v31")
    a("v_lshrrev_b32 v32, 2, v0"); a("v_mul_u32_u24 v32, 80, v32"); a("v_and_b32 v33, 3, v0"); a("v_lshl_add_u32 v32, v33, 4, v32")
    a("s_waitcnt lgkmcnt(0)")
    for ch in range(2):
        a("v_add_f32 v34, 1.0, s%d" % (32 + ch) if False else "v_mov_b32 v34, s%d" % (32 + ch))
        a("v_add_f32 v34, 1.0, v34"); bf16r(a, 34, 34)
        a("v_mov_b32 v35, s%d" % (30 + ch))
        a("v_mul_f32 v36, %s, v34" % fl(23.0))
        a("v_add_f32 v36, abs(v36), abs(v35)")
        a("v_and_b32 v36, 0x7f800000, v36"); a("v_max_u32 v36, 0x%x, v36" % (14 << 23)); a("v_min_u32 v36, 0x7f000000, v36")
        a("v_sub_u32 v37, 0x%x, v36" % (267 << 23))
        a("v_subrev_u32 v36, 0x%x, v36" % (13 << 23))
        a("v_mul_f32 v34, v34, v37"); a("v_mul_f32 v35, v35, v37")
        a("v_readfirstlane_b32 s%d, v34" % (40 + 4 * ch)); a("v_readfirstlane_b32 s%d, v35" % (42 + 4 * ch)); a("v_readfirstlane_b32 s%d, v36" % (48 + ch))
    a("s_lshl_b32 s52, s38, 16"); a("s_and_b32 s53, s38, 0xffff0000")
    a("s_cmp_eq_u32 s21, 0")
    a("s_cselect_b32 s51, s48, s49"); a("s_cselect_b32 s50, s36, s37"); a("s_cselect_b32 s54, s34, s35")
    a("s_cselect_b32 s52, s52, s53")
    a("v_mov_b32 v34, s51"); a("v_mul_f32 v35, s50, v34"); a("v_mul_f32 v36, s52, v34")
    a("v_readfirstlane_b32 s50, v35"); a("v_readfirstlane_b32 s52, v36")
    a.wait_vm("xn")
    for ch in range(2):
        for q in range(4):
            w = 8 + 4 * ch + q; p = 34 + 2 * (q & 1)
            a("v_lshlrev_b32 v%d, 16, v%d" % (p, w)); a("v_and_b32 v%d, 0xffff0000, v%d" % (p + 1, w))
            a("v_pk_mul_f32 v[%d:%d], v[%d:%d], s[%d:%d] op_sel_hi:[1,0]" % (p, p + 1, p, p + 1, 40 + 4 * ch, 41 + 4 * ch))
            rnd_pk(a, p)
            a("v_pk_add_f32 v[%d:%d], v[%d:%d], s[%d:%d] op_sel_hi:[1,0]" % (p, p + 1, p, p + 1, 42 + 4 * ch, 43 + 4 * ch))
            rnd_pk(a, p)
            a("v_cvt_pk_f16_f32 v%d, v%d, v%d" % (w, p, p + 1))
        a("ds_write_b128 v32, v[%d:%d] offset:%d" % (8 + 4 * ch, 11 + 4 * ch, UB + ch * USZ + 31 * 80))
    a.wait_vm("k")
    a("s_waitcnt lgkmcnt(0)")
    a("s_barrier")
    for q in range(4): a("ds_read_b64 v[%d:%d], v31 offset:%d" % (8 + 2 * q, 9 + 2 * q, 16 * q))
    def loads(t):
        b = 40 + 16 * (t % 3)
        for j, m in enumerate((t, t + 32)):
            off = 4032 - 64 * m
            a("ds_read_b64 v[%d:%d], v28 offset:%d" % (b + 4 * j, b + 4 * j + 1, off), tag=t)
            a("ds_read_b64 v[%d:%d], v28 offset:%d" % (b + 4 * j + 2, b + 4 * j + 3, off + 8), tag=t)
        a("ds_read_b128 v[%d:%d], v30 offset:%d" % (b + 8, b + 11, (31 - t) * 80), tag=t)
        a("ds_read_b128 v[%d:%d], v30 offset:%d" % (b + 12, b + 15, (63 - t) * 80), tag=t)
    loads(0); loads(1)
    for t in range(32):
        if t + 2 < 32: loads(t + 2)
        a.wait_lg(t)
        b = 40 + 16 * (t % 3)
        a("v_mfma_f32_32x32x16_f16 v[96:111], v[%d:%d], v[%d:%d], v[96:111]" % (b, b + 3, b + 8, b + 11))
        a("v_mfma_f32_32x32x16_f16 v[112:127], v[%d:%d], v[%d:%d], v[112:127]" % (b, b + 3, b + 12, b + 15))
        a("v_mfma_f32_32x32x16_f16 v[112:127], v[%d:%d], v[%d:%d], v[112:127]" % (b + 4, b + 7, b + 8, b + 11))
    a("s_lshl_b32 s16, s20, 12"); a("v_add_u32 v33, s16, v2"); a("v_xor_b32 v34, 4096, v33")
    a("s_cmp_eq_u32 s23, 0"); a("s_cbranch_scc0 CV_H1")
    for hh in range(2):
        snd, keep = (112, 96) if hh == 0 else (96, 112)
        if hh == 1: a.label("CV_H1")
        for q in range(4): a("ds_write_b128 v33, v[%d:%d] offset:%d" % (snd + 4 * q, snd + 4 * q + 3, XB + q * 1024))
        a("s_waitcnt lgkmcnt(0)"); a("s_barrier")
        for q in range(4): a("ds_read_b128 v[%d:%d], v34 offset:%d" % (40 + 4 * q, 43 + 4 * q, XB + q * 1024))
        a("s_waitcnt lgkmcnt(0)")
        for i in range(0, 16, 2): a("v_pk_add_f32 v[%d:%d], v[%d:%d], v[%d:%d]" % (40 + i, 41 + i, 40 + i, 41 + i, keep + i, keep + i + 1))
        if hh == 0: a("s_branch CV_EP")
    a.label("CV_EP")
    a("s_waitcnt vmcnt(0)")
    for k in range(8):
        y = 40 + 2 * k; hreg = 8 + k; xreg = 16 + k; t = 60 + 2 * (k & 1)
        a("v_pk_mul_f32 v[%d:%d], v[%d:%d], s[50:51] op_sel_hi:[1,0]" % (y, y + 1, y, y + 1)); rnd_pk(a, y)
        a("v_cvt_f32_f16 v%d, v%d" % (t, hreg)); a("v_cvt_f32_f16_sdwa v%d, v%d dst_sel:DWORD dst_unused:UNUSED_PAD src0_sel:WORD_1" % (t + 1, hreg))
        a("v_pk_mul_f32 v[%d:%d], v[%d:%d], s[52:53] op_sel_hi:[1,0]" % (t, t + 1, t, t + 1)); rnd_pk(a, t)
        a("v_pk_add_f32 v[%d:%d], v[%d:%d], v[%d:%d]" % (y, y + 1, y, y + 1, t, t + 1)); rnd_pk(a, y)
        a("v_pk_mul_f32 v[%d:%d], v[%d:%d], s[54:55] op_sel_hi:[1,0]" % (y, y + 1, y, y + 1)); rnd_pk(a, y)
        a("v_lshlrev_b32 v%d, 16, v%d" % (t, xreg)); a("v_and_b32 v%d, 0xffff0000, v%d" % (t + 1, xreg))
        a("v_pk_add_f32 v[%d:%d], v[%d:%d], v[%d:%d]" % (y, y + 1, y, y + 1, t, t + 1))
        a("v_cvt_pk_bf16_f32 v%d, v%d, v%d" % (64 + k, y, y + 1))
    a("s_add_u32 s15, s14, %d" % WS_X1T)
    a("buffer_store_dwordx4 v[64:67], v6, s[24:27], s15 offen")
    a("buffer_store_dwordx4 v[68:71], v6, s[24:27], s15 offen offset:16")
    a("s_endpgm")

def role_pack(a):
    a.reset_counts()
    load_ptr(a, 24, "win"); load_ptr(a, 28, "ws")
    a("s_sub_u32 s3, s2, %d" % NC)
    a("s_cmp_ge_u32 s3, 22"); a("s_cselect_b32 s4, 22, 0"); a("s_cselect_b32 s5, 1376, 0")
    a("s_sub_u32 s4, s3, s4")
    a("s_lshl_b32 s6, s4, 6"); a("s_add_u32 s5, s5, s6")
    a("v_lshrrev_b32 v2, 2, v1"); a("s_lshl_b32 s6, s20, 4"); a("v_add_u32 v2, s6, v2")
    a("v_mul_u32_u24 v3, 2752, v2"); a("v_and_b32 v4, 3, v1"); a("v_lshl_add_u32 v3, v4, 4, v3"); a("v_add_u32 v3, s5, v3")
    a("s_cmp_eq_u32 s4, 21"); a("s_cselect_b32 s7, 2, 4")
    a("v_cmp_gt_u32 vcc, s7, v4"); a("v_mov_b32 v5, 0x7ffffff0"); a("v_cndmask_b32 v3, v5, v3, vcc")
    a("v_lshlrev_b32 v5, 2, v2")
    a("v_lshlrev_b32 v4, 4, v0")
    a("s_waitcnt lgkmcnt(0)")
    make_srd(a, 24, "win"); make_srd(a, 28, "ws")
    a("s_mov_b32 s8, %d" % (WS_MOD + 3 * 2048))
    for it in range(8):
        a("buffer_load_dword v%d, v5, s[28:31], s8 offen offset:%d" % (100 + it, it * 256), tag="m")
        a("buffer_load_dword v%d, v5, s[28:31], s8 offen offset:%d" % (108 + it, 2048 + it * 256), tag="m")
    for it in range(8):
        a("s_mov_b32 s6, %d" % (it * 64 * 2752))
        a("buffer_load_dwordx4 v[%d:%d], v3, s[24:27], s6 offen" % (40 + 4 * it, 43 + 4 * it), tag=it)
    for i in range(16): a("v_mov_b32 v%d, 0" % (80 + i))
    a("v_mov_b32 v6, 0x3f80"); a("v_mov_b32 v7, 0x3f800000")
    a.wait_vm("m")
    for it in range(8):
        a("v_add_f32 v%d, 1.0, v%d" % (108 + it, 108 + it)); bf16r(a, 108 + it, 108 + it)
    for it in range(8):
        a.wait_vm(it)
        for q in range(4):
            w = 40 + 4 * it + q
            a("v_lshlrev_b32 v10, 16, v%d" % w); a("v_and_b32 v11, 0xffff0000, v%d" % w)
            a("v_fmac_f32 v%d, v10, v%d" % (88 + 2 * q, 100 + it)); a("v_fmac_f32 v%d, v11, v%d" % (89 + 2 * q, 100 + it))
            a("v_mul_f32 v10, v10, v%d" % (108 + it)); a("v_mul_f32 v11, v11, v%d" % (108 + it))
            a("v_cvt_pk_bf16_f32 v%d, v10, v11" % w)
            a("v_dot2_f32_bf16 v%d, v%d, v6, v%d" % (80 + 2 * q, w, 80 + 2 * q)); a("v_dot2_f32_bf16 v%d, v%d, v7, v%d" % (81 + 2 * q, w, 81 + 2 * q))
        a("ds_write_b128 v4, v[%d:%d] offset:%d" % (40 + 4 * it, 43 + 4 * it, it * 4096))
    colsum_tail(a, [list(range(80, 88)), list(range(88, 96))], 32768, 2)
    a("v_bfe_u32 v8, v0, 2, 1"); a("v_lshlrev_b32 v8, 6, v8")
    a("v_bfe_u32 v9, v0, 3, 2"); a("v_lshl_add_u32 v8, v9, 4, v8")
    a("v_and_b32 v9, 3, v0"); a("v_lshl_add_u32 v8, v9, 2, v8")
    a("v_bfe_u32 v9, v0, 5, 1"); a("v_mul_u32_u24 v9, %d, v9" % (WS_CS2 - WS_CS1)); a("v_add_u32 v8, v8, v9")
    a("s_lshl_b32 s8, s3, 7"); a("s_add_u32 s8, s8, %d" % WS_CS1)
    a("s_cmp_lg_u32 s20, 0"); a("s_cbranch_scc1 PKW_SK")
    a("buffer_store_dword v10, v8, s[28:31], s8 offen")
    a.label("PKW_SK")
    a("s_lshl_b32 s8, s3, 15"); a("s_add_u32 s8, s8, %d" % WS_WIN)
    pack_out(a, 16, 28, 8, 16384)
    a("s_endpgm")

def gen_conv():
    a = Asm()
    a("v_and_b32 v1, 63, v0")
    a("v_lshrrev_b32 v2, 6, v0")
    a("v_readfirstlane_b32 s20, v2")
    a("s_cmp_ge_u32 s2, %d" % GRID); a("s_cbranch_scc1 C_END")
    a("s_cmp_ge_u32 s2, %d" % NC); a("s_cbranch_scc1 C_PACK")
    role_conv(a)
    a.label("C_PACK"); role_pack(a)
    a.label("C_END"); a("s_endpgm")
    return a
```

```python
from gen_common import *
GRID = 256
A_OFF = 4096
ST_OFF = 0
ZS_OFF = ST_OFF + 512
LDS = A_OFF + 65536
Z2_NORMALIZED = False
K0 = -2 * 0.7978845608028654 * LOG2E
K1 = K0 * 0.044715

def gen():
    a = Asm()
    a("v_and_b32 v1, 63, v0"); a("v_lshrrev_b32 v2, 6, v0"); a("v_readfirstlane_b32 s20, v2")
    a("s_cmp_ge_u32 s2, %d" % GRID); a("s_cbranch_scc1 G1_END")
    load_ptr(a, 24, "ws")
    a("s_and_b32 s3, s2, 7"); a("s_lshl_b32 s3, s3, 2"); a("s_bfe_u32 s4, s2, 0x20003"); a("s_add_u32 s3, s3, s4")
    a("s_lshr_b32 s4, s2, 5")
    a("v_lshrrev_b32 v2, 3, v1")
    a("v_bfe_u32 v3, v1, 1, 2")
    a("v_bfe_u32 v4, v1, 4, 1")
    a("v_sub_u32 v3, v3, v4")
    a("v_and_b32 v5, 1, v1"); a("v_lshlrev_b32 v5, 4, v5"); a("v_lshl_add_u32 v5, v2, 12, v5")
    a("v_and_b32 v6, 3, v3"); a("v_lshl_add_u32 v6, v6, 5, v5")
    a("v_xor_b32 v7, 64, v6")
    a("v_lshlrev_b32 v8, 4, v1")
    a("s_lshl_b32 s5, s20, 19"); a("s_lshl_b32 s6, s3, 7"); a("s_add_u32 s5, s5, s6"); a("s_add_u32 s5, s5, %d" % WS_X1T)
    a("s_lshl_b32 s6, s20, 14"); a("s_add_u32 s6, s6, %d" % A_OFF)
    a("s_mul_i32 s7, s4, 11"); a("s_mul_i32 s8, s20, 3"); a("s_add_u32 s7, s7, s8")
    a("s_lshl_b32 s8, s7, 14"); a("s_add_u32 s8, s8, %d" % WS_WIN)
    a("s_cmp_eq_u32 s20, 3"); a("s_cselect_b32 s9, 0x7f000000, 0")
    a("v_add_u32 v9, s9, v8")
    a("s_waitcnt lgkmcnt(0)")
    make_srd(a, 24, "ws")
    for i in range(16):
        a("s_add_u32 m0, s6, %d" % (i * 1024))
        a("s_add_u32 s10, s5, %d" % (i * 8 * 4096))
        a("buffer_load_dwordx4 v%d, s[24:27], s10 offen lds" % (6 + (i & 1)), tag="A")
    def bload(ks):
        for uu in range(3):
            if ks % 4 == 0: a("s_add_u32 s%d, s8, %d" % (11 + uu, uu * 16384 + ks * 1024))
            a("buffer_load_dwordx4 a[%d:%d], v%d, s[24:27], s%d offen offset:%d" % (12 * ks + 4 * uu, 12 * ks + 4 * uu + 3, 9 if uu == 2 else 8, 11 + uu, (ks % 4) * 1024), tag=("B", ks))
    for ks in range(13): bload(ks)
    a("v_lshrrev_b32 v10, 4, v1")
    a("v_lshlrev_b32 v11, 4, v10"); a("v_add_u32 v12, s9, v11")
    a("s_lshl_b32 s14, s7, 6"); a("s_add_u32 s14, s14, %d" % WS_CS1); a("s_add_u32 s15, s14, %d" % (WS_CS2 - WS_CS1))
    for uu in range(3):
        a("buffer_load_dwordx4 v[%d:%d], v%d, s[24:27], s14 offen offset:%d" % (112 + 8 * uu, 115 + 8 * uu, 12 if uu == 2 else 11, uu * 64), tag="cs")
        a("buffer_load_dwordx4 v[%d:%d], v%d, s[24:27], s15 offen offset:%d" % (116 + 8 * uu, 119 + 8 * uu, 12 if uu == 2 else 11, uu * 64), tag="cs")
    a("v_bfe_u32 v13, v1, 2, 2"); a("v_lshl_add_u32 v14, v10, 3, v13"); a("v_lshlrev_b32 v14, 7, v14")
    a("v_and_b32 v15, 3, v1"); a("v_lshl_add_u32 v14, v15, 3, v14"); a("v_add_u32 v14, %d, v14" % A_OFF)
    a("v_bfe_u32 v15, v1, 3, 1"); a("v_bfe_u32 v16, v1, 4, 1"); a("v_lshl_add_u32 v15, v16, 1, v15")
    for sp in range(4):
        a("s_xor_b32 s16, s20, %d" % sp)
        a("v_add_u32 v16, s16, v15"); a("v_and_b32 v16, 3, v16"); a("v_lshl_add_u32 v%d, v16, 5, v14" % (20 + sp))
    for i in range(48): a("v_mov_b32 v%d, 0" % (64 + i))
    a("v_mov_b32 v24, 0"); a("v_mov_b32 v25, 0"); a("v_mov_b32 v26, 0x3f803f80")
    a.wait_vm("A")
    a("s_barrier")
    for ks in range(13, 16): bload(ks)
    def aload(ks):
        b = 32 + 16 * (ks & 1)
        for sp in range(4):
            a("ds_read_b64_tr_b16 v[%d:%d], v%d offset:%d" % (b + 4 * sp, b + 4 * sp + 1, 20 + sp, ks * 4096), tag=ks)
            a("ds_read_b64_tr_b16 v[%d:%d], v%d offset:%d" % (b + 4 * sp + 2, b + 4 * sp + 3, 20 + sp, ks * 4096 + 512), tag=ks)
    aload(0)
    for ks in range(16):
        if ks + 1 < 16: aload(ks + 1)
        a.wait_lg(ks); a.wait_vm(("B", ks))
        b = 32 + 16 * (ks & 1)
        n = 0
        for uu in range(3):
            for sp in range(4):
                acc = 64 + 12 * sp + 4 * uu
                a("v_mfma_f32_16x16x32_bf16 v[%d:%d], a[%d:%d], v[%d:%d], v[%d:%d]" % (acc, acc + 3, 12 * ks + 4 * uu, 12 * ks + 4 * uu + 3, b + 4 * sp, b + 4 * sp + 3, acc, acc + 3))
                if n < 4: a("v_dot2_f32_bf16 v24, v%d, v26, v24" % (b + n))
                elif n < 8: a("v_dot2_f32_bf16 v25, v%d, v%d, v25" % (b + n - 4, b + n - 4))
                n += 1
    for r in (24, 25):
        a("v_mov_b32 v27, v%d" % r); a("v_permlane32_swap_b32 v%d, v27" % r); a("v_add_f32 v%d, v%d, v27" % (r, r))
        a("v_mov_b32 v27, v%d" % r); a("v_permlane16_swap_b32 v%d, v27" % r); a("v_add_f32 v%d, v%d, v27" % (r, r))
    a("v_mul_f32 v24, %s, v24" % fl(1 / 512.)); a("v_mul_f32 v25, %s, v25" % fl(1 / 512.))
    a("v_fma_f32 v25, -v24, v24, v25"); a("v_max_f32 v25, 0, v25"); bf16r(a, 25, 25)
    a("v_add_f32 v25, %s, v25" % fl(1e-5)); bf16r(a, 25, 25)
    a("v_sqrt_f32 v25, v25"); bf16r(a, 25, 25); a("v_rcp_f32 v28, v25")
    bf16r(a, 24, 24); a("v_mul_f32 v29, v24, v28")
    a("v_and_b32 v17, 15, v1"); a("v_lshlrev_b32 v18, 3, v17")
    a("s_lshl_b32 s16, s20, 7"); a("v_add_u32 v19, s16, v18")
    a("ds_write_b64 v19, v[28:29] offset:%d" % ST_OFF)
    a("s_waitcnt lgkmcnt(0)"); a("s_barrier")
    for sp in range(4):
        a("s_xor_b32 s16, s20, %d" % sp); a("s_lshl_b32 s16, s16, 7"); a("v_add_u32 v19, s16, v18")
        a("ds_read_b64 v[%d:%d], v19 offset:%d" % (32 + 2 * sp, 33 + 2 * sp, ST_OFF))
    a("v_mov_b32 v30, %s" % fl(K0)); a("v_mov_b32 v31, %s" % fl(K0)); a("s_mov_b32 s18, %s" % fl(K1))
    a.wait_vm("cs")
    a("s_waitcnt lgkmcnt(0)")
    for i in range(8): a("v_mov_b32 v%d, 0" % (40 + i))
    for uu in range(3):
        for sp in range(4):
            acc = 64 + 12 * sp + 4 * uu; rs = 32 + 2 * sp
            for p in range(2):
                z = acc + 2 * p; c1 = 112 + 8 * uu + 2 * p; c2 = 116 + 8 * uu + 2 * p; t = 48 + 4 * p
                a("v_pk_fma_f32 v[%d:%d], v[%d:%d], v[%d:%d], v[%d:%d] op_sel:[0,1,0] op_sel_hi:[1,1,1] neg_lo:[0,1,0] neg_hi:[0,1,0]" % (t, t + 1, c1, c1 + 1, rs, rs + 1, c2, c2 + 1))
                a("v_pk_fma_f32 v[%d:%d], v[%d:%d], v[%d:%d], v[%d:%d] op_sel_hi:[1,0,1]" % (z, z + 1, z, z + 1, rs, rs + 1, t, t + 1))
                a("v_pk_mul_f32 v[%d:%d], v[%d:%d], v[%d:%d]" % (t, t + 1, z, z + 1, z, z + 1))
                a("v_pk_fma_f32 v[%d:%d], v[%d:%d], s[18:19], v[30:31] op_sel_hi:[1,0,1]" % (t, t + 1, t, t + 1))
                a("v_pk_mul_f32 v[%d:%d], v[%d:%d], v[%d:%d]" % (t, t + 1, t, t + 1, z, z + 1))
                a("v_exp_f32 v%d, v%d" % (t, t)); a("v_exp_f32 v%d, v%d" % (t + 1, t + 1))
                a("v_pk_add_f32 v[%d:%d], v[%d:%d], 1.0 op_sel_hi:[1,0]" % (t, t + 1, t, t + 1))
                a("v_rcp_f32 v%d, v%d" % (t, t)); a("v_rcp_f32 v%d, v%d" % (t + 1, t + 1))
                a("v_pk_mul_f32 v[%d:%d], v[%d:%d], v[%d:%d]" % (z, z + 1, z, z + 1, t, t + 1))
                a("v_cvt_pk_bf16_f32 v%d, v%d, v%d" % (acc + p, z, z + 1) if p == 0 else "v_cvt_pk_bf16_f32 v%d, v%d, v%d" % (acc + 1, z, z + 1))
    a("s_cmp_ge_u32 s4, 4"); a("s_cbranch_scc1 G1_Z2")
    a("v_lshlrev_b32 v19, 3, v1")
    for sp in range(4):
        a("s_xor_b32 s16, s20, %d" % sp); a("s_lshl_b32 s17, s3, 2"); a("s_add_u32 s16, s16, s17")
        a("s_mul_i32 s16, s16, 44"); a("s_add_u32 s16, s16, s7"); a("s_lshl_b32 s16, s16, 9"); a("s_add_u32 s%d, s16, %d" % (30 + sp, WS_Z1))
    for uu in range(3):
        if uu == 2: a("s_cmp_eq_u32 s20, 3"); a("s_cbranch_scc1 G1_END")
        for sp in range(4):
            acc = 64 + 12 * sp + 4 * uu
            a("buffer_store_dwordx2 v[%d:%d], v19, s[24:27], s%d offen offset:%d" % (acc, acc + 1, 30 + sp, uu * 512))
    a("s_endpgm")
    a.label("G1_Z2")
    a.reset_counts()
    a("v_lshrrev_b32 v19, 2, v17"); a("v_lshlrev_b32 v19, 3, v19"); a("v_and_b32 v27, 3, v17"); a("v_add_u32 v19, v19, v27")
    a("v_lshlrev_b32 v19, 5, v19"); a("v_lshl_add_u32 v19, v10, 3, v19")
    a("s_lshl_b32 s17, s20, 13"); a("s_add_u32 s17, s17, %d" % A_OFF)
    for sp in range(4):
        a("s_xor_b32 s16, s20, %d" % sp)
        a("s_lshr_b32 s21, s16, 1"); a("s_lshl_b32 s21, s21, 10"); a("s_and_b32 s16, s16, 1"); a("s_lshl_b32 s16, s16, 7")
        a("s_add_u32 s16, s16, s21"); a("s_add_u32 s16, s16, s17")
        a("v_add_u32 v%d, s16, v19" % (20 + sp))
    for uu in range(3):
        for sp in range(4):
            acc = 64 + 12 * sp + 4 * uu
            a("ds_write_b64 v%d, v[%d:%d] offset:%d" % (20 + sp, acc, acc + 1, uu * 2048))
            for p in range(2):
                a("v_dot2_f32_bf16 v%d, v%d, v26, v%d" % (40 + sp, acc + p, 40 + sp))
                a("v_dot2_f32_bf16 v%d, v%d, v%d, v%d" % (44 + sp, acc + p, acc + p, 44 + sp))
    a("v_lshl_add_u32 v19, v10, 3, v13"); a("v_lshlrev_b32 v19, 5, v19"); a("v_and_b32 v27, 3, v1"); a("v_lshl_add_u32 v19, v27, 3, v19")
    a("v_add_u32 v19, s17, v19")
    a("s_waitcnt lgkmcnt(0)")
    for uu in range(3):
        for T in range(2):
            b = 64 + 8 * uu + 4 * T
            a("ds_read_b64_tr_b16 v[%d:%d], v19 offset:%d" % (b, b + 1, uu * 2048 + T * 1024))
            a("ds_read_b64_tr_b16 v[%d:%d], v19 offset:%d" % (b + 2, b + 3, uu * 2048 + T * 1024 + 128))
    for i in range(4): a("v_permlane32_swap_b32 v%d, v%d" % (40 + i, 44 + i))
    for i in range(4): a("v_add_f32 v%d, v%d, v%d" % (40 + i, 40 + i, 44 + i))
    for i in range(2): a("v_permlane16_swap_b32 v%d, v%d" % (40 + i, 42 + i))
    for i in range(2): a("v_add_f32 v%d, v%d, v%d" % (40 + i, 40 + i, 42 + i))
    a("v_and_b32 v27, 1, v10"); a("v_lshlrev_b32 v27, 1, v27")
    a("v_xor_b32 v27, s20, v27")
    a("v_lshlrev_b32 v28, 6, v27"); a("v_lshl_add_u32 v28, v17, 2, v28")
    a("v_lshrrev_b32 v29, 1, v10"); a("v_lshl_add_u32 v28, v29, 8, v28")
    a("s_lshl_b32 s16, s20, 9"); a("v_add_u32 v28, s16, v28")
    a("v_xor_b32 v29, 64, v28")
    a("ds_write_b32 v28, v40 offset:%d" % ZS_OFF); a("ds_write_b32 v29, v41 offset:%d" % ZS_OFF)
    a("s_lshl_b32 s16, s3, 1"); a("s_mul_i32 s16, s16, 44"); a("s_add_u32 s16, s16, s7"); a("s_lshl_b32 s16, s16, 10")
    a("s_add_u32 s16, s16, %d" % (WS_Z2 - 44 * 1024)); a("s_add_u32 s21, s16, %d" % (44 * 1024))
    a("s_waitcnt lgkmcnt(0)")
    for uu in range(3):
        for T in range(2):
            b = 64 + 8 * uu + 4 * T
            a("buffer_store_dwordx4 v[%d:%d], v%d, s[24:27], s%d offen offset:%d" % (b, b + 3, 9 if uu == 2 else 8, 21 if T else 16, uu * 1024))
    a("s_barrier")
    a("s_cmp_ge_u32 s20, 2"); a("s_cbranch_scc1 G1_END")
    a("v_lshlrev_b32 v27, 2, v0")
    for w in range(4): a("ds_read_b32 v%d, v27 offset:%d" % (40 + w, ZS_OFF + w * 512))
    a("v_lshrrev_b32 v28, 5, v1"); a("v_lshlrev_b32 v28, 5, v28")
    a("v_bfe_u32 v29, v1, 2, 2"); a("v_lshl_add_u32 v28, v29, 3, v28")
    a("v_bfe_u32 v29, v1, 4, 1"); a("v_lshl_add_u32 v28, v29, 2, v28")
    a("v_and_b32 v29, 3, v1"); a("v_add_u32 v28, v28, v29")
    a("v_lshlrev_b32 v28, 3, v28")
    a("s_sub_u32 s16, s4, 4"); a("s_lshl_b32 s16, s16, 14"); a("s_lshl_b32 s17, s3, 9"); a("s_add_u32 s16, s16, s17")
    a("s_lshl_b32 s17, s20, 2"); a("s_add_u32 s16, s16, s17"); a("s_add_u32 s16, s16, %d" % WS_ZST)
    a("s_waitcnt lgkmcnt(0)")
    a("v_add_f32 v40, v40, v41"); a("v_add_f32 v42, v42, v43"); a("v_add_f32 v40, v40, v42")
    a("buffer_store_dword v40, v28, s[24:27], s16 offen")
    a.label("G1_END")
    a("s_endpgm")
    return a
```

```python
from gen_common import *
GRID = 256
RHO_OFF = 0
MU_OFF = 8192
C_OFF = 12288
RED_OFF = 16384
LDS = RED_OFF + 4 * 18432
D = 4
ACC = 128
CAC = ACC + 96

def gen():
    a = Asm()
    a("v_and_b32 v1, 63, v0"); a("v_lshrrev_b32 v2, 6, v0"); a("v_readfirstlane_b32 s20, v2")
    a("s_cmp_ge_u32 s2, %d" % GRID); a("s_cbranch_scc1 G2_END")
    load_ptr(a, 24, "ws"); load_ptr(a, 28, "wsp"); load_ptr(a, 32, "bsp")
    a("s_and_b32 s3, s2, 7"); a("s_lshl_b32 s3, s3, 2"); a("s_bfe_u32 s4, s2, 0x20003"); a("s_add_u32 s3, s3, s4")
    a("s_lshr_b32 s4, s2, 5")
    a("s_mul_i32 s5, s4, 3"); a("s_cmp_eq_u32 s4, 7"); a("s_cselect_b32 s5, 20, s5")
    a("s_movk_i32 s9, 4096"); a("s_cmp_ge_u32 s4, 6"); a("s_cselect_b32 s9, 0x7f000000, s9")
    a("v_lshlrev_b32 v8, 4, v1"); a("v_add_u32 v9, s9, v8")
    a("v_and_b32 v17, 15, v1"); a("v_lshrrev_b32 v10, 4, v1")
    a("v_lshrrev_b32 v2, 2, v17"); a("v_lshlrev_b32 v2, 3, v2"); a("v_and_b32 v3, 3, v17"); a("v_add_u32 v2, v2, v3")
    for tp in range(4):
        a("s_xor_b32 s16, s20, %d" % tp); a("s_lshr_b32 s17, s16, 1"); a("s_lshl_b32 s17, s17, 5"); a("s_and_b32 s16, s16, 1"); a("s_lshl_b32 s16, s16, 2")
        a("s_add_u32 s16, s16, s17")
        a("v_add_u32 v3, s16, v2")
        if tp == 0: a("v_lshlrev_b32 v11, 1, v3")
        a("v_lshlrev_b32 v3, 12, v3"); a("v_lshl_add_u32 v%d, v10, 4, v3" % (20 + tp))
    a("s_lshl_b32 s6, s3, 18"); a("s_lshl_b32 s7, s20, 10"); a("s_add_u32 s6, s6, s7")
    a("s_mul_i32 s7, s20, %d" % (16 * 44)); a("s_lshl_b32 s8, s5, 1"); a("s_add_u32 s7, s7, s8"); a("s_lshl_b32 s7, s7, 10"); a("s_add_u32 s7, s7, %d" % WS_Z2)
    a("v_lshlrev_b32 v4, 6, v1"); a("s_lshl_b32 s10, s20, 12"); a("s_add_u32 s10, s10, %d" % WS_ZST)
    a("s_waitcnt lgkmcnt(0)")
    make_srd(a, 24, "ws"); make_srd(a, 28, "wsp"); make_srd(a, 32, "bsp")
    SB = ACC
    for p in range(4):
        a("s_add_u32 s11, s10, %d" % (p * 16384))
        for q in range(4):
            a("buffer_load_dwordx4 v[%d:%d], v4, s[24:27], s11 offen offset:%d" % (SB + 16 * p + 4 * q, SB + 16 * p + 4 * q + 3, 16 * q), tag="st")
    def loads(ks):
        st = ks % D
        a("s_add_u32 s12, s7, %d" % (ks * 44 * 1024))
        for tp in range(4):
            a("buffer_load_dwordx4 v[%d:%d], v%d, s[28:31], s6 offen offset:%d" % (32 + 16 * st + 4 * tp, 35 + 16 * st + 4 * tp, 20 + tp, ks * 64), tag=("w", ks))
        for uu in range(6):
            a("buffer_load_dwordx4 a[%d:%d], v%d, s[24:27], s12 offen offset:%d" % (24 * st + 4 * uu, 24 * st + 4 * uu + 3, 9 if uu >= 4 else 8, (uu & 3) * 1024), tag=("z", ks))
    for ks in range(D): loads(ks)
    a.wait_vm("st")
    for p in range(1, 4):
        for i in range(0, 16, 2):
            a("v_pk_add_f32 v[%d:%d], v[%d:%d], v[%d:%d]" % (SB + i, SB + i + 1, SB + i, SB + i + 1, SB + 16 * p + i, SB + 16 * p + i + 1))
    for r in range(8):
        m = SB + 2 * r; v = m + 1
        a("v_mul_f32 v%d, %s, v%d" % (m, fl(1 / 688.), m)); a("v_mul_f32 v%d, %s, v%d" % (v, fl(1 / 688.), v))
        a("v_fma_f32 v%d, -v%d, v%d, v%d" % (v, m, m, v)); a("v_max_f32 v%d, 0, v%d" % (v, v)); bf16r(a, v, v)
        a("v_add_f32 v%d, %s, v%d" % (v, fl(1e-5), v)); bf16r(a, v, v)
        a("v_sqrt_f32 v%d, v%d" % (v, v)); bf16r(a, v, v)
        a("v_rcp_f32 v%d, v%d" % (SB + 16 + r, v))
    for r in range(4): a("v_cvt_pk_bf16_f32 v%d, v%d, v%d" % (SB + 24 + r, SB + 4 * r, SB + 4 * r + 2))
    a("v_lshlrev_b32 v5, 5, v1"); a("s_lshl_b32 s13, s20, 11"); a("v_add_u32 v5, s13, v5")
    a("ds_write_b128 v5, v[%d:%d] offset:%d" % (SB + 16, SB + 19, RHO_OFF)); a("ds_write_b128 v5, v[%d:%d] offset:%d" % (SB + 20, SB + 23, RHO_OFF + 16))
    a("s_lshl_b32 s14, s20, 10"); a("v_add_u32 v6, s14, v8")
    a("ds_write_b128 v6, v[%d:%d] offset:%d" % (SB + 24, SB + 27, MU_OFF))
    a("v_lshlrev_b32 v5, 5, v10"); a("v_add_u32 v5, s13, v5")
    a("v_lshlrev_b32 v6, 4, v10"); a("v_add_u32 v6, s14, v6")
    a("s_waitcnt lgkmcnt(0)")
    for i in range(112): a("v_mov_b32 v%d, 0" % (ACC + i))
    def tload(ks):
        b = ks & 1
        a("ds_read_b128 v[%d:%d], v5 offset:%d" % (96 + 8 * b, 99 + 8 * b, RHO_OFF + ks * 128), tag=ks)
        a("ds_read_b128 v[%d:%d], v5 offset:%d" % (100 + 8 * b, 103 + 8 * b, RHO_OFF + ks * 128 + 16), tag=ks)
        a("ds_read_b128 v[%d:%d], v6 offset:%d" % (112 + 4 * b, 115 + 4 * b, MU_OFF + ks * 64), tag=ks)
    tload(0)
    for ks in range(16):
        st = ks % D; b = ks & 1
        if ks + 1 < 16: tload(ks + 1)
        a.wait_lg(ks); a.wait_vm(("w", ks))
        def scale(tp):
            for q in range(4):
                w = 32 + 16 * st + 4 * tp + q; t = 120 + 2 * (q & 3)
                a("v_lshlrev_b32 v%d, 16, v%d" % (t, w)); a("v_and_b32 v%d, 0xffff0000, v%d" % (t + 1, w))
                a("v_pk_mul_f32 v[%d:%d], v[%d:%d], v[%d:%d]" % (t, t + 1, t, t + 1, 96 + 8 * b + 2 * q, 97 + 8 * b + 2 * q))
                a("v_cvt_pk_bf16_f32 v%d, v%d, v%d" % (w, t, t + 1))
        scale(0)
        a.wait_vm(("z", ks))
        for tp in range(4):
            w = 32 + 16 * st + 4 * tp
            if tp + 1 < 4: scale(tp + 1)
            for uu in range(6):
                acc = ACC + 24 * tp + 4 * uu
                a("v_mfma_f32_16x16x32_bf16 v[%d:%d], a[%d:%d], v[%d:%d], v[%d:%d]" % (acc, acc + 3, 24 * st + 4 * uu, 24 * st + 4 * uu + 3, w, w + 3, acc, acc + 3))
            acc = CAC + 4 * tp
            a("v_mfma_f32_16x16x32_bf16 v[%d:%d], v[%d:%d], v[%d:%d], v[%d:%d]" % (acc, acc + 3, 112 + 4 * b, 115 + 4 * b, w, w + 3, acc, acc + 3))
        if ks + D < 16: loads(ks + D)
        if ks == 11:
            a("s_lshl_b32 s16, s3, 2"); a("s_add_u32 s16, s16, s20")
            a("s_mul_i32 s17, s16, 44"); a("s_lshl_b32 s18, s5, 1"); a("s_add_u32 s17, s17, s18"); a("s_lshl_b32 s17, s17, 9"); a("s_add_u32 s17, s17, %d" % WS_Z1)
            a("v_lshlrev_b32 v12, 3, v1")
            for uu in range(6):
                a("buffer_load_dwordx2 v[%d:%d], v12, s[24:27], s17 offen offset:%d" % (240 + 2 * uu, 241 + 2 * uu, uu * 512), tag="z1")
            a("s_lshl_b32 s18, s3, 7")
            a("buffer_load_ushort v13, v11, s[32:35], s18 offen", tag="z1")
    for tp in range(1, 4):
        a("s_xor_b32 s21, s20, %d" % tp); a("s_mul_i32 s22, s21, 18432"); a("s_add_u32 s22, s22, %d" % (RED_OFF + (tp - 1) * 6144))
        a("v_add_u32 v14, s22, v8")
        for uu in range(6):
            acc = ACC + 24 * tp + 4 * uu
            a("ds_write_b128 v14, v[%d:%d] offset:%d" % (acc, acc + 3, uu * 1024))
        a("s_mul_i32 s22, s21, 768"); a("v_lshl_add_u32 v15, v1, 2, s22")
        a("ds_write_b32 v15, v%d offset:%d" % (CAC + 4 * tp, C_OFF + (tp - 1) * 256))
    a("s_mul_i32 s22, s20, 18432"); a("s_add_u32 s22, s22, %d" % RED_OFF); a("v_add_u32 v14, s22, v8")
    a("s_mul_i32 s22, s20, 768"); a("v_lshl_add_u32 v15, v1, 2, s22")
    a("s_waitcnt lgkmcnt(0)"); a("s_barrier")
    for sidx in range(3): a("ds_read_b32 v%d, v15 offset:%d" % (16 + sidx, C_OFF + sidx * 256))
    for sidx in range(3):
        for uu in range(6):
            r = 32 + 24 * sidx + 4 * uu
            a("ds_read_b128 v[%d:%d], v14 offset:%d" % (r, r + 3, sidx * 6144 + uu * 1024), tag=("r", sidx))
    a.wait_vm("z1")
    a("v_lshlrev_b32 v13, 16, v13")
    for sidx in range(3):
        a.wait_lg(("r", sidx))
        if sidx == 0:
            a("v_add_f32 v16, v16, v17"); a("v_add_f32 v18, v18, v%d" % CAC); a("v_add_f32 v16, v16, v18"); a("v_sub_f32 v16, v13, v16")
        for i in range(0, 24, 2):
            r = 32 + 24 * sidx + i
            a("v_pk_add_f32 v[%d:%d], v[%d:%d], v[%d:%d]" % (ACC + i, ACC + i + 1, ACC + i, ACC + i + 1, r, r + 1))
    for uu in range(6):
        for p in range(2):
            g = ACC + 4 * uu + 2 * p; zr = 240 + 2 * uu + p; t = 120 + 2 * p
            a("v_pk_add_f32 v[%d:%d], v[%d:%d], v[16:17] op_sel_hi:[1,0]" % (g, g + 1, g, g + 1))
            a("v_lshlrev_b32 v%d, 16, v%d" % (t, zr)); a("v_and_b32 v%d, 0xffff0000, v%d" % (t + 1, zr))
            a("v_pk_mul_f32 v[%d:%d], v[%d:%d], v[%d:%d]" % (g, g + 1, g, g + 1, t, t + 1))
            a("v_cvt_pk_bf16_f32 v%d, v%d, v%d" % (32 + 2 * uu + p, g, g + 1))
    a("s_mul_i32 s17, s16, 22"); a("s_add_u32 s17, s17, s5"); a("s_lshl_b32 s17, s17, 10"); a("s_add_u32 s17, s17, %d" % WS_V)
    for G in range(3):
        if G == 2: a("s_cmp_ge_u32 s4, 6"); a("s_cbranch_scc1 G2_END")
        a("buffer_store_dwordx4 v[%d:%d], v8, s[24:27], s17 offen offset:%d" % (32 + 4 * G, 35 + 4 * G, G * 1024))
    a.label("G2_END")
    a("s_endpgm")
    return a
```

```python
from gen_common import *
GRID = 256
LDS = 4 * 22 * 1024
def gen():
    a = Asm()
    a("v_and_b32 v1, 63, v0"); a("v_lshrrev_b32 v2, 6, v0"); a("v_readfirstlane_b32 s20, v2")
    a("s_cmp_ge_u32 s2, %d" % GRID); a("s_cbranch_scc1 G3_END")
    load_ptr(a, 24, "ws"); load_ptr(a, 28, "out")
    a("s_and_b32 s3, s2, 7"); a("s_lshl_b32 s3, s3, 2"); a("s_bfe_u32 s4, s2, 0x20003"); a("s_add_u32 s3, s3, s4")
    a("s_lshr_b32 s4, s2, 5")
    a("v_lshlrev_b32 v8, 4, v1")
    a("v_and_b32 v17, 15, v1"); a("v_lshrrev_b32 v10, 4, v1")
    a("s_lshl_b32 s5, s4, 2"); a("s_add_u32 s5, s5, s20"); a("s_mul_i32 s5, s5, %d" % (22 * 1024)); a("s_add_u32 s5, s5, %d" % WS_WOUT)
    a("s_mul_i32 s6, s20, %d" % (22 * 1024))
    a("s_lshl_b32 s16, s3, 2"); a("s_add_u32 s16, s16, s20")
    a("s_mul_i32 s7, s16, %d" % (22 * 1024)); a("s_add_u32 s7, s7, %d" % WS_V)
    a("s_waitcnt lgkmcnt(0)")
    make_srd(a, 24, "ws"); make_srd(a, 28, "out")
    for ks in range(22):
        if ks % 4 == 0:
            a("s_add_u32 m0, s6, %d" % (ks * 1024)); a("s_add_u32 s10, s5, %d" % (ks * 1024))
        a("buffer_load_dwordx4 v8, s[24:27], s10 offen offset:%d lds" % ((ks % 4) * 1024), tag="W")
    for ks in range(22):
        if ks % 4 == 0: a("s_add_u32 s11, s7, %d" % (ks * 1024))
        a("buffer_load_dwordx4 v[%d:%d], v8, s[24:27], s11 offen offset:%d" % (64 + 4 * ks, 67 + 4 * ks, (ks % 4) * 1024), tag=("v", ks))
    a("v_lshlrev_b32 v11, 15, v10"); a("v_lshl_add_u32 v11, v17, 1, v11")
    a("s_lshl_b32 s12, s4, 18"); a("s_lshl_b32 s13, s16, 5"); a("s_add_u32 s12, s12, s13"); a("s_add_u32 s12, s12, %d" % WS_X1T)
    for G in range(2):
        for e in range(8):
            a("s_add_u32 s13, s12, %d" % ((32 * G + e) * 4096))
            a("buffer_load_ushort v%d, v11, s[24:27], s13 offen" % (160 + 8 * G + e), tag="x")
    a("v_lshlrev_b32 v12, 5, v10"); a("s_lshl_b32 s13, s4, 8"); a("s_add_u32 s13, s13, %d" % (WS_MOD + 5 * 2048))
    for G in range(2):
        for hh in range(2):
            a("buffer_load_dwordx4 v[%d:%d], v12, s[24:27], s13 offen offset:%d" % (176 + 8 * G + 4 * hh, 179 + 8 * G + 4 * hh, G * 128 + hh * 16), tag="x")
    for i in range(16): a("v_mov_b32 v%d, 0" % (16 + i + 4))
    a("v_add_u32 v9, %d, v8" % (44 * 1024))
    a.wait_vm("W")
    a("s_barrier")
    def wload(ks):
        b = 192 + 16 * (ks % 3)
        for uu in range(4):
            a("ds_read_b128 v[%d:%d], v%d offset:%d" % (b + 4 * uu, b + 4 * uu + 3, 9 if uu >= 2 else 8, (uu & 1) * 22 * 1024 + ks * 1024), tag=ks)
    wload(0); wload(1)
    for ks in range(22):
        if ks + 2 < 22: wload(ks + 2)
        a.wait_lg(ks); a.wait_vm(("v", ks))
        b = 192 + 16 * (ks % 3)
        for uu in range(4):
            acc = 20 + 4 * uu
            a("v_mfma_f32_16x16x32_bf16 v[%d:%d], v[%d:%d], v[%d:%d], v[%d:%d]" % (acc, acc + 3, b + 4 * uu, b + 4 * uu + 3, 64 + 4 * ks, 67 + 4 * ks, acc, acc + 3))
    a("v_lshrrev_b32 v2, 2, v17"); a("v_lshlrev_b32 v2, 3, v2"); a("v_and_b32 v3, 3, v17"); a("v_add_u32 v2, v2, v3")
    a("v_lshlrev_b32 v2, 10, v2"); a("v_lshl_add_u32 v2, v10, 4, v2")
    a("s_lshr_b32 s13, s20, 1"); a("s_lshl_b32 s13, s13, 5"); a("s_and_b32 s14, s20, 1"); a("s_lshl_b32 s14, s14, 2"); a("s_add_u32 s13, s13, s14")
    a("s_lshl_b32 s14, s3, 6"); a("s_add_u32 s13, s13, s14"); a("s_lshl_b32 s13, s13, 10"); a("s_lshl_b32 s14, s4, 7"); a("s_add_u32 s13, s13, s14")
    a.wait_vm("x")
    from gen_conv import rnd_pk
    for G in range(2):
        for p in range(4):
            o = 20 + 8 * G + 2 * p; gbr = 176 + 8 * G + 2 * p; xr = 160 + 8 * G + 2 * p
            rnd_pk(a, o)
            a("v_pk_mul_f32 v[%d:%d], v[%d:%d], v[%d:%d]" % (o, o + 1, o, o + 1, gbr, gbr + 1)); rnd_pk(a, o)
            a("v_lshlrev_b32 v%d, 16, v%d" % (xr, xr)); a("v_lshlrev_b32 v%d, 16, v%d" % (xr + 1, xr + 1))
            a("v_pk_add_f32 v[%d:%d], v[%d:%d], v[%d:%d]" % (o, o + 1, o, o + 1, xr, xr + 1))
            a("v_cvt_pk_bf16_f32 v%d, v%d, v%d" % (40 + 4 * G + p, o, o + 1))
        a("buffer_store_dwordx4 v[%d:%d], v2, s[28:31], s13 offen offset:%d" % (40 + 4 * G, 43 + 4 * G, G * 64))
    a.label("G3_END")
    a("s_endpgm")
    return a
```

```python
from gen_common import *
import math
NK, NM, NX, NW = 256, 96, 64, 16
PREP_GRID = NK + NM + NX + NW
TP = 528
TSZ = 65 * TP
KC_OFF = 2 * TSZ
KC_SZ = 4352
PREP_LDS = KC_OFF + 2 * KC_SZ

def colsum_tail(a, accs, lds_off, nq):
    for acc in accs:
        for sh in (4, 8):
            for r in acc:
                a("v_add_f32_dpp v%d, v%d, v%d row_shr:%d row_mask:0xf bank_mask:0xf" % (r, r, r, sh))
    a("v_lshrrev_b32 v8, 4, v1")
    a("s_lshl_b32 s21, s20, 2")
    a("v_add_u32 v8, s21, v8")
    a("v_lshlrev_b32 v8, 7, v8")
    a("v_and_b32 v9, 3, v1")
    a("v_lshl_add_u32 v8, v9, 5, v8")
    a("v_and_b32 v9, 15, v1")
    a("v_cmp_le_u32 vcc, 12, v9")
    a("s_and_saveexec_b64 s[22:23], vcc")
    for q, acc in enumerate(accs):
        a("ds_write_b128 v8, v[%d:%d] offset:%d" % (acc[0], acc[3], lds_off + q * 2048))
        a("ds_write_b128 v8, v[%d:%d] offset:%d" % (acc[4], acc[7], lds_off + q * 2048 + 16))
    a("s_mov_b64 exec, s[22:23]")
    a("s_waitcnt lgkmcnt(0)")
    a("s_barrier")
    a("v_and_b32 v8, 31, v1")
    a("v_lshlrev_b32 v8, 2, v8")
    a("v_lshrrev_b32 v9, 5, v1")
    if nq == 1: a("v_mov_b32 v9, 0")
    a("v_lshl_add_u32 v8, v9, 11, v8")
    for i in range(16):
        a("ds_read_b32 v%d, v8 offset:%d" % (12 + i, lds_off + i * 128))
    a("s_waitcnt lgkmcnt(0)")
    for st in (8, 4, 2, 1):
        for i in range(st):
            a("v_add_f32 v%d, v%d, v%d" % (12 + i, 12 + i, 12 + i + st))
    a("v_mov_b32 v10, v12")

def role_kgen(a):
    for i, n in enumerate(("logA", "Aim", "Cr", "Ci", "logdt", "ws")):
        load_ptr(a, 24 + 4 * i, n)
    a("s_lshr_b32 s21, s20, 1")
    a("s_lshl_b32 s22, s2, 1")
    a("s_add_u32 s22, s22, s21")
    a("s_and_b32 s23, s20, 1")
    a("s_lshl_b32 s4, s22, 8")
    a("s_lshl_b32 s5, s23, 7")
    a("v_lshlrev_b32 v2, 1, v1")
    a("v_add_u32 v2, s5, v2")
    a("v_xor_b32 v3, 128, v2")
    a("s_lshl_b32 s6, s22, 1")
    a("v_mov_b32 v4, s6")
    a("s_waitcnt lgkmcnt(0)")
    for i, n in enumerate(("logA", "Aim", "Cr", "Ci", "logdt", "ws")):
        make_srd(a, 24 + 4 * i, n)
    a("buffer_load_ushort v10, v4, s[40:43], 0 offen")
    a("buffer_load_ushort v11, v2, s[24:27], s4 offen")
    a("buffer_load_ushort v12, v2, s[28:31], s4 offen")
    a("buffer_load_ushort v13, v2, s[32:35], s4 offen")
    a("buffer_load_ushort v14, v2, s[36:39], s4 offen")
    a("buffer_load_ushort v15, v3, s[32:35], s4 offen")
    a("buffer_load_ushort v16, v3, s[36:39], s4 offen")
    a("s_mul_i32 s7, s21, %d" % TSZ)
    a("v_lshlrev_b32 v5, 1, v2")
    a("v_add_u32 v5, s7, v5")
    a("s_waitcnt vmcnt(4)")
    for r in (10, 11, 12): a("v_lshlrev_b32 v%d, 16, v%d" % (r, r))
    exp_acc(a, 10, 10, 20, 21); bf16r(a, 10, 10)
    exp_acc(a, 11, 11, 20, 21); bf16r(a, 11, 11)
    a("v_mul_f32 v11, v11, v10")
    a("v_mul_f32 v12, v12, v10")
    a("v_mul_f32 v11, %s, v11" % fl(-LOG2E))
    a("v_mul_f32 v12, %s, v12" % fl(1.0 / (2 * math.pi)))
    def direct(dst, p):
        t0, t1 = 20, 21
        if p == 1:
            a("v_exp_f32 v%d, v11" % t0); a("v_fract_f32 v%d, v12" % t1)
        else:
            a("v_mul_f32 v%d, %s, v11" % (t0, fl(float(p)))); a("v_mul_f32 v%d, %s, v12" % (t1, fl(float(p))))
            a("v_exp_f32 v%d, v%d" % (t0, t0)); a("v_fract_f32 v%d, v%d" % (t1, t1))
        a("v_cos_f32 v%d, v%d" % (dst, t1)); a("v_sin_f32 v%d, v%d" % (dst + 1, t1))
        a("v_mul_f32 v%d, v%d, v%d" % (dst, dst, t0)); a("v_mul_f32 v%d, v%d, v%d" % (dst + 1, dst + 1, t0))
    W1, W2, W3, W4, W32, W64 = 30, 32, 34, 36, 38, 40
    S = [42, 44, 46, 48]; S2 = [50, 52, 54, 56]
    direct(W1, 1); direct(W32, 32); direct(W64, 64); direct(S[1], 512); direct(S[2], 1024); direct(S[3], 1536)
    a("v_mov_b32 v%d, 1.0" % S[0]); a("v_mov_b32 v%d, 0" % (S[0] + 1))
    cmul(a, W2, W1, W1); cmul2(a, [(W3, W2, W1), (W4, W2, W2)])
    a("s_waitcnt vmcnt(0)")
    a("v_and_b32 v17, 0x7fff, v13"); a("v_and_b32 v18, 0x7fff, v14"); a("v_and_b32 v15, 0x7fff, v15"); a("v_and_b32 v16, 0x7fff, v16")
    a("v_max3_u32 v17, v17, v18, v15"); a("v_max_u32 v17, v17, v16")
    for sh in (1, 2, 4, 8):
        a("v_max_u32_dpp v17, v17, v17 row_shr:%d row_mask:0xf bank_mask:0xf" % sh)
    a("v_max_u32_dpp v17, v17, v17 row_bcast:15 row_mask:0xa bank_mask:0xf")
    a("v_max_u32_dpp v17, v17, v17 row_bcast:31 row_mask:0xc bank_mask:0xf")
    a("v_readlane_b32 s8, v17, 63")
    a("s_lshl_b32 s8, s8, 16")
    a("s_and_b32 s8, s8, 0x7f800000")
    a("s_min_u32 s8, s8, 0x7e800000")
    a("s_sub_u32 s9, 0x7f000000, s8")
    CB = [58, 60]; CB2 = [62, 64]
    a("v_lshlrev_b32 v13, 16, v13"); a("v_lshlrev_b32 v14, 16, v14")
    a("v_mul_f32 v%d, s9, v13" % CB[0]); a("v_mul_f32 v%d, s9, v14" % (CB[0] + 1))
    cmul(a, CB[1], CB[0], W32)
    a("v_mul_f32 v19, s8, v10"); a("v_add_f32 v19, v19, v19")
    a("s_lshl_b32 s6, s22, 2"); a("v_mov_b32 v4, s6")
    a("buffer_store_dword v19, v4, s[44:47], 0 offen offset:0" if False else "s_add_u32 s6, s6, %d" % WS_KSC)
    a("v_mov_b32 v4, s6")
    a("v_cmp_eq_u32 vcc, 0, v1")
    a("s_and_saveexec_b64 s[10:11], vcc")
    a("buffer_store_dword v19, v4, s[44:47], 0 offen")
    a("s_mov_b64 exec, s[10:11]")
    tcnt = [0]
    def put(src, row, neg=False):
        t = 70 + (tcnt[0] % 8); tcnt[0] += 1
        a("v_cvt_pk_f16_f32 v%d, v%d, %sv%d" % (t, src, "-" if neg else "", src + 1))
        a("ds_write_b32 v5, v%d offset:%d" % (t, row * TP))
    def row_of_k(k):
        if k < 4: return 4 * k
        if k < 8: return 16 + 2 * (k - 4)
        if k < 16: return 16 + 8 + (k - 8)
        return 32 + (k - 16)
    T = [80, 82, 84]
    cur, nxt = S, S2; cb, cbn = CB, CB2
    for st in range(8):
        for c in range(4): put(cur[c], row_of_k(8 * c + st))
        for c in range(2): put(cb[c], 49 + 8 * c + st, neg=True)
        k = st
        if k < 4:
            cmul2(a, [(T[0], cur[0], W1), (T[1], cur[0], W2), (T[2], cur[0], W3)])
            for r in range(3): put(T[r], 4 * k + 1 + r)
        else:
            cmul(a, T[0], cur[0], W2); put(T[0], 16 + 2 * (k - 4) + 1)
        if st < 7:
            cmul2(a, [(nxt[c], cur[c], W64) for c in range(4)] + [(cbn[c], cb[c], W4) for c in range(2)])
        else:
            cmul(a, nxt[3], cur[3], W64); put(nxt[3], 48)
        cur, nxt = nxt, cur; cb, cbn = cbn, cb
    a("v_and_b32 v6, 15, v1")
    a("v_lshrrev_b32 v7, 4, v1")
    a("v_mul_u32_u24 v8, %d, v6" % TP)
    a("v_lshl_add_u32 v9, v7, 4, s7")
    a("v_add_u32 v8, v8, v9")
    a("s_mul_i32 s10, s23, %d" % (32 * TP))
    a("v_add_u32 v20, s10, v8")
    a("v_add_u32 v21, %d, v8" % (16 * TP))
    a("v_add_u32 v22, %d, v9" % (48 * TP))
    a("s_cmp_eq_u32 s23, 0")
    a("s_cselect_b64 vcc, -1, 0")
    a("v_cndmask_b32 v21, v22, v21, vcc")
    for i in range(8): a("v_mov_b32 v%d, 0" % (24 + i))
    a("s_waitcnt lgkmcnt(0)")
    a("s_barrier")
    for ks in range(8):
        a("ds_read_b128 v[%d:%d], v20 offset:%d" % (32 + 12 * ks, 35 + 12 * ks, ks * 64), tag=ks)
        a("ds_read_b128 v[%d:%d], v21 offset:%d" % (36 + 12 * ks, 39 + 12 * ks, ks * 64), tag=ks)
        a("ds_read_b128 v[%d:%d], v8 offset:%d" % (40 + 12 * ks, 43 + 12 * ks, 49 * TP + ks * 64), tag=ks)
        if ks >= 3:
            k2 = ks - 3
            a.wait_lg(k2)
            a("v_mfma_f32_16x16x32_f16 v[24:27], v[%d:%d], v[%d:%d], v[24:27]" % (32 + 12 * k2, 35 + 12 * k2, 40 + 12 * k2, 43 + 12 * k2))
            a("v_mfma_f32_16x16x32_f16 v[28:31], v[%d:%d], v[%d:%d], v[28:31]" % (36 + 12 * k2, 39 + 12 * k2, 40 + 12 * k2, 43 + 12 * k2))
    for k2 in range(5, 8):
        a.wait_lg(k2)
        a("v_mfma_f32_16x16x32_f16 v[24:27], v[%d:%d], v[%d:%d], v[24:27]" % (32 + 12 * k2, 35 + 12 * k2, 40 + 12 * k2, 43 + 12 * k2))
        a("v_mfma_f32_16x16x32_f16 v[28:31], v[%d:%d], v[%d:%d], v[28:31]" % (36 + 12 * k2, 39 + 12 * k2, 40 + 12 * k2, 43 + 12 * k2))
    a("s_mul_i32 s11, s21, %d" % KC_SZ)
    a("s_add_u32 s11, s11, %d" % KC_OFF)
    a("v_lshl_add_u32 v9, v6, 3, s11")
    a("s_cmp_eq_u32 s23, 0")
    a("s_cbranch_scc0 KG_HW1")
    a("v_lshl_add_u32 v20, v7, 7, v9")
    a("v_cvt_pk_f16_f32 v32, v24, v25"); a("v_cvt_pk_f16_f32 v33, v26, v27")
    a("ds_write_b64 v20, v[32:33]")
    a("v_cmp_gt_u32 vcc, 2, v7")
    a("v_lshlrev_b32 v21, 8, v7"); a("v_add_u32 v21, 512, v21")
    a("v_lshlrev_b32 v22, 9, v7")
    a("v_cndmask_b32 v21, v22, v21, vcc")
    a("v_add_u32 v21, v21, v9")
    a("v_mov_b32 v22, 128"); a("v_mov_b32 v23, 4")
    a("v_cndmask_b32 v34, v22, v23, vcc")
    a("v_mov_b32 v23, 256")
    a("v_cndmask_b32 v35, v23, v22, vcc")
    a("v_add_u32 v36, v21, v34"); a("v_add_u32 v37, v21, v35"); a("v_add_u32 v38, v37, v34")
    a("v_cvt_pk_f16_f32 v32, v28, v29"); a("v_cvt_pk_f16_f32 v33, v30, v31")
    a("ds_write_b16 v21, v32"); a("ds_write_b16_d16_hi v36, v32"); a("ds_write_b16 v37, v33"); a("ds_write_b16_d16_hi v38, v33")
    a("s_branch KG_EXP")
    a.label("KG_HW1")
    a("v_lshl_add_u32 v20, v7, 9, v9")
    a("v_cvt_pk_f16_f32 v32, v24, v25"); a("v_cvt_pk_f16_f32 v33, v26, v27"); a("v_cvt_pk_f16_f32 v34, v28, v28")
    a("ds_write_b16 v20, v32 offset:2048"); a("ds_write_b16_d16_hi v20, v32 offset:2176")
    a("ds_write_b16 v20, v33 offset:2304"); a("ds_write_b16_d16_hi v20, v33 offset:2432")
    a("ds_write_b16 v9, v34 offset:4096")
    a.label("KG_EXP")
    a("s_lshl_b32 s12, s23, 6")
    a("v_add_u32 v20, s12, v1")
    a("v_lshlrev_b32 v21, 5, v20")
    a("v_sub_u32 v21, 4094, v21")
    a("v_cvt_f32_u32 v21, v21")
    for k in range(0, 18, 2):
        a("v_subrev_f32 v22, %s, v21" % fl(2.0 * k)); a("v_subrev_f32 v23, %s, v21" % fl(2.0 * k + 2))
        if k == 16: a("v_max_f32 v22, 0, v22"); a("v_max_f32 v23, 0, v23")
        a("v_cvt_pk_bf16_f32 v22, v22, v23")
        a("v_and_b32 v23, 0xffff0000, v22"); a("v_lshlrev_b32 v22, 16, v22")
        a("v_cvt_u32_f32 v%d, v22" % (40 + k)); a("v_cvt_u32_f32 v%d, v23" % (41 + k))
        a("v_add_u32 v%d, s11, v%d" % (40 + k, 40 + k)); a("v_add_u32 v%d, s11, v%d" % (41 + k, 41 + k))
    a("s_waitcnt lgkmcnt(0)")
    a("s_barrier")
    for k in range(17):
        a("ds_read_u16 v%d, v%d" % (40 + k, 40 + k))
    a("s_mul_i32 s13, s22, %d" % (4 * KLEN)); a("s_add_u32 s13, s13, %d" % WS_KK)
    a("v_lshlrev_b32 v21, 5, v20")
    a("v_cmp_eq_u32 vcc, 127, v20")
    a("s_waitcnt lgkmcnt(0)")
    a("v_cndmask_b32 v56, v56, 0, vcc")
    for k in range(8): a("v_lshl_or_b32 v%d, v%d, 16, v%d" % (60 + k, 41 + 2 * k, 40 + 2 * k))
    for k in range(8): a("v_lshl_or_b32 v%d, v%d, 16, v%d" % (72 + k, 42 + 2 * k, 41 + 2 * k))
    a("buffer_store_dwordx4 v[60:63], v21, s[44:47], s13 offen")
    a("buffer_store_dwordx4 v[64:67], v21, s[44:47], s13 offen offset:16")
    a("s_add_u32 s14, s13, %d" % (2 * KLEN))
    a("buffer_store_dwordx4 v[72:75], v21, s[44:47], s14 offen")
    a("buffer_store_dwordx4 v[76:79], v21, s[44:47], s14 offen offset:16")
    for i in range(4): a("v_mov_b32 v%d, 0" % (80 + i))
    a("s_and_saveexec_b64 s[10:11], vcc")
    a("s_cbranch_execz KG_END")
    a("buffer_store_dwordx4 v[80:83], v21, s[44:47], s13 offen offset:32")
    a("buffer_store_dwordx4 v[80:83], v21, s[44:47], s13 offen offset:48")
    a("buffer_store_dwordx4 v[80:83], v21, s[44:47], s14 offen offset:32")
    a("buffer_store_dwordx4 v[80:83], v21, s[44:47], s14 offen offset:48")
    a.label("KG_END")
    a("s_endpgm")

def role_mod(a):
    a.reset_counts()
    for i, n in enumerate(("wmod", "c", "ws")): load_ptr(a, 24 + 4 * i, n)
    a("s_sub_u32 s3, s2, %d" % NK)
    a("s_lshl_b32 s4, s3, 6")
    a("v_lshrrev_b32 v2, 2, v1")
    a("s_lshl_b32 s5, s20, 4")
    a("v_add_u32 v2, s5, v2")
    a("v_mul_u32_u24 v3, 6144, v2")
    a("v_and_b32 v4, 3, v1")
    a("v_lshl_add_u32 v3, v4, 4, v3")
    a("v_add_u32 v3, s4, v3")
    a("v_lshlrev_b32 v4, 1, v2")
    a("s_waitcnt lgkmcnt(0)")
    for i, n in enumerate(("wmod", "c", "ws")): make_srd(a, 24 + 4 * i, n)
    for it in range(8): a("buffer_load_ushort v%d, v4, s[28:31], 0 offen offset:%d" % (30 + it, it * 128), tag="c")
    for it in range(8):
        a("s_mov_b32 s6, %d" % (it * 64 * 6144))
        a("buffer_load_dwordx4 v[%d:%d], v3, s[24:27], s6 offen" % (40 + 4 * it, 43 + 4 * it), tag=it)
    for i in range(8): a("v_mov_b32 v%d, 0" % (80 + i))
    a.wait_vm("c")
    for it in range(8):
        r = 30 + it
        a("v_lshlrev_b32 v%d, 16, v%d" % (r, r))
        a("v_mul_f32 v10, %s, v%d" % (fl(-LOG2E), r))
        a("v_exp_f32 v10, v10"); a("v_add_f32 v10, 1.0, v10"); a("v_rcp_f32 v10, v10")
        a("v_mul_f32 v%d, v%d, v10" % (r, r)); bf16r(a, r, r)
    for it in range(8):
        a.wait_vm(it)
        for q in range(4):
            w = 40 + 4 * it + q
            a("v_lshlrev_b32 v10, 16, v%d" % w); a("v_and_b32 v11, 0xffff0000, v%d" % w)
            a("v_fmac_f32 v%d, v10, v%d" % (80 + 2 * q, 30 + it)); a("v_fmac_f32 v%d, v11, v%d" % (81 + 2 * q, 30 + it))
    colsum_tail(a, [list(range(80, 88))], 0, 1)
    bf16r(a, 10, 10)
    a("v_lshlrev_b32 v8, 2, v0")
    a("s_lshl_b32 s4, s3, 7")
    a("v_cmp_gt_u32 vcc, 32, v0")
    a("s_and_saveexec_b64 s[10:11], vcc")
    a("s_cbranch_execz MOD_END")
    a("buffer_store_dword v10, v8, s[32:35], s4 offen")
    a.label("MOD_END")
    a("s_endpgm")

XP = 1056
def role_x(a):
    a.reset_counts()
    for i, n in enumerate(("u", "ws")): load_ptr(a, 24 + 4 * i, n)
    a("s_sub_u32 s3, s2, %d" % (NK + NM))
    a("s_lshl_b32 s4, s3, 2"); a("s_add_u32 s4, s4, s20"); a("s_lshl_b32 s4, s4, 13")
    a("v_lshlrev_b32 v2, 4, v1")
    a("s_waitcnt lgkmcnt(0)")
    for i, n in enumerate(("u", "ws")): make_srd(a, 24 + 4 * i, n)
    for r in range(8):
        if r == 4: a("s_add_u32 s4, s4, 4096")
        a("buffer_load_dwordx4 v[%d:%d], v2, s[24:27], s4 offen offset:%d" % (32 + 4 * r, 35 + 4 * r, (r & 3) * 1024), tag=r)
    a("s_mul_i32 s5, s20, %d" % (8 * XP))
    a("v_add_u32 v3, s5, v2")
    a("v_mov_b32 v4, 0x3f803f80")
    for r in range(8):
        a.wait_vm(r)
        a("ds_write_b128 v3, v[%d:%d] offset:%d" % (32 + 4 * r, 35 + 4 * r, r * XP))
        a("v_dot2_f32_bf16 v%d, v%d, v4, 0" % (8 + r, 32 + 4 * r))
        for q in range(1, 4): a("v_dot2_f32_bf16 v%d, v%d, v4, v%d" % (8 + r, 32 + 4 * r + q, 8 + r))
        for q in range(4):
            a("v_lshlrev_b32 v%d, 16, v%d" % (64 + 8 * r + 2 * q, 32 + 4 * r + q))
            a("v_and_b32 v%d, 0xffff0000, v%d" % (65 + 8 * r + 2 * q, 32 + 4 * r + q))
    R = list(range(8, 16))
    reduce8(a, R)
    a("v_mul_f32 v8, %s, v8" % fl(1 / 512.)); a("v_mul_f32 v9, %s, v9" % fl(1 / 512.))
    for r in range(8): a("v_readlane_b32 s%d, v%d, %d" % (40 + r, 8 + (r & 1), 15 + 16 * (r >> 1)))
    bf16r(a, 16, 8); bf16r(a, 17, 9)
    for r in range(8): a("v_readlane_b32 s%d, v%d, %d" % (48 + r, 16 + (r & 1), 15 + 16 * (r >> 1)))
    for r in range(8):
        for e in range(8):
            a("v_subrev_f32 v20, s%d, v%d" % (40 + r, 64 + 8 * r + e))
            if e == 0: a("v_mul_f32 v%d, v20, v20" % (8 + r))
            else: a("v_fmac_f32 v%d, v20, v20" % (8 + r))
    reduce8(a, R)
    for i in range(2):
        v = 8 + i
        a("v_mul_f32 v%d, %s, v%d" % (v, fl(1 / 512.), v)); bf16r(a, v, v)
        a("v_add_f32 v%d, %s, v%d" % (v, fl(1e-5), v)); bf16r(a, v, v)
        a("v_sqrt_f32 v%d, v%d" % (v, v)); bf16r(a, v, v)
        a("v_rcp_f32 v%d, v%d" % (v, v))
    for r in range(8): a("v_readlane_b32 s%d, v%d, %d" % (56 + r, 8 + (r & 1), 15 + 16 * (r >> 1)))
    for r in range(8):
        for q in range(4):
            e0 = 64 + 8 * r + 2 * q
            a("v_subrev_f32 v20, s%d, v%d" % (48 + r, e0)); a("v_subrev_f32 v21, s%d, v%d" % (48 + r, e0 + 1))
            a("v_cvt_pk_bf16_f32 v20, v20, v21")
            a("v_and_b32 v21, 0xffff0000, v20"); a("v_lshlrev_b32 v20, 16, v20")
            a("v_mul_f32 v20, s%d, v20" % (56 + r)); a("v_mul_f32 v21, s%d, v21" % (56 + r))
            a("v_cvt_pk_bf16_f32 v%d, v20, v21" % (32 + 4 * r + q))
        a("ds_write_b128 v3, v[%d:%d] offset:%d" % (32 + 4 * r, 35 + 4 * r, 32 * XP + r * XP))
    a("v_lshrrev_b32 v5, 4, v1"); a("v_bfe_u32 v6, v1, 2, 2"); a("v_and_b32 v7, 3, v1")
    a("s_lshl_b32 s6, s20, 8")
    a("v_lshl_add_u32 v7, v7, 3, s6")
    a("v_lshl_add_u32 v8, v5, 3, v6")
    a("v_mul_u32_u24 v8, %d, v8" % XP); a("v_add_u32 v8, v8, v7")
    a("v_and_b32 v9, 1, v5"); a("v_lshlrev_b32 v9, 4, v9"); a("v_lshrrev_b32 v10, 1, v5"); a("v_lshl_add_u32 v9, v10, 2, v9")
    a("v_add_u32 v9, v9, v6"); a("v_mul_u32_u24 v9, %d, v9" % XP); a("v_add_u32 v9, v9, v7")
    a("v_and_b32 v10, 15, v1"); a("v_lshlrev_b32 v10, 12, v10"); a("v_lshl_add_u32 v10, v5, 4, v10")
    a("s_lshl_b32 s7, s20, 19"); a("s_lshl_b32 s8, s3, 6"); a("s_add_u32 s7, s7, s8")
    a("s_waitcnt lgkmcnt(0)")
    a("s_barrier")
    for it in range(8):
        b = 32 + 8 * it
        a("ds_read_b64_tr_b16 v[%d:%d], v9 offset:%d" % (b, b + 1, it * 32), tag=it)
        a("ds_read_b64_tr_b16 v[%d:%d], v9 offset:%d" % (b + 2, b + 3, it * 32 + 8 * XP), tag=it)
        a("ds_read_b64_tr_b16 v[%d:%d], v8 offset:%d" % (b + 4, b + 5, 32 * XP + it * 32), tag=it)
        a("ds_read_b64_tr_b16 v[%d:%d], v8 offset:%d" % (b + 6, b + 7, 32 * XP + it * 32 + 4 * XP), tag=it)
        if it >= 2: x_store(a, it - 2)
    x_store(a, 6); x_store(a, 7)
    a("s_endpgm")
def x_store(a, it):
    b = 32 + 8 * it
    a.wait_lg(it)
    a("s_add_u32 s9, s7, %d" % (WS_XT + it * 16 * 4096)); a("s_add_u32 s10, s7, %d" % (WS_XNT + it * 16 * 4096))
    a("buffer_store_dwordx4 v[%d:%d], v10, s[28:31], s9 offen" % (b, b + 3))
    a("buffer_store_dwordx4 v[%d:%d], v10, s[28:31], s10 offen" % (b + 4, b + 7))

def pack_out(a, nks, ws_srd, s_dst, unit_stride):
    a("v_lshrrev_b32 v5, 4, v1"); a("v_bfe_u32 v6, v1, 2, 2"); a("v_and_b32 v7, 3, v1")
    a("v_lshl_add_u32 v8, v5, 3, v6")
    a("v_lshlrev_b32 v8, 6, v8"); a("v_lshl_add_u32 v8, v7, 4, v8")
    a("s_lshl_b32 s6, s20, 11"); a("v_add_u32 v8, s6, v8")
    a("v_lshlrev_b32 v9, 4, v1")
    a("s_lshl_b32 s6, s20, 10"); a("s_add_u32 s%d, s%d, s6" % (s_dst, s_dst))
    a("s_waitcnt lgkmcnt(0)")
    a("s_barrier")
    nit = (nks + 3) // 4
    for it in range(nit):
        for tau in range(2):
            b = 32 + 8 * it + 4 * tau
            a("ds_read_b64_tr_b16 v[%d:%d], v8 offset:%d" % (b, b + 1, it * 8192 + tau * 8))
            a("ds_read_b64_tr_b16 v[%d:%d], v8 offset:%d" % (b + 2, b + 3, it * 8192 + tau * 8 + 256))
    a("s_waitcnt lgkmcnt(0)")
    for it in range(nit):
        last = (it == nit - 1) and (nks % 4 != 0)
        if last:
            a("s_cmp_ge_u32 s20, %d" % (nks % 4)); a("s_cbranch_scc1 PK_END_%d" % nks)
        for tau in range(2):
            b = 32 + 8 * it + 4 * tau
            a("s_add_u32 s7, s%d, %d" % (s_dst, it * 4096 + tau * unit_stride))
            a("buffer_store_dwordx4 v[%d:%d], v9, s[%d:%d], s7 offen" % (b, b + 3, ws_srd, ws_srd + 3))
    if nks % 4: a.label("PK_END_%d" % nks)

def role_wout(a):
    a.reset_counts()
    for i, n in enumerate(("wout", "ws")): load_ptr(a, 24 + 4 * i, n)
    a("s_sub_u32 s3, s2, %d" % (NK + NM + NX))
    a("s_lshl_b32 s4, s3, 6")
    a("v_lshrrev_b32 v2, 2, v1"); a("s_lshl_b32 s5, s20, 4"); a("v_add_u32 v2, s5, v2")
    a("v_lshlrev_b32 v3, 10, v2"); a("v_and_b32 v4, 3, v1"); a("v_lshl_add_u32 v3, v4, 4, v3"); a("v_add_u32 v3, s4, v3")
    a("v_lshlrev_b32 v4, 4, v0")
    a("s_waitcnt lgkmcnt(0)")
    for i, n in enumerate(("wout", "ws")): make_srd(a, 24 + 4 * i, n)
    for it in range(12):
        a("s_mov_b32 s6, %d" % (it * 65536))
        a("buffer_load_dwordx4 v[%d:%d], v3, s[24:27], s6 offen" % (32 + 4 * it, 35 + 4 * it), tag=it)
    for it in range(12):
        a.wait_vm(it)
        a("ds_write_b128 v4, v[%d:%d] offset:%d" % (32 + 4 * it, 35 + 4 * it, it * 4096))
    a("s_mul_i32 s8, s3, %d" % (2 * 22 * 1024)); a("s_add_u32 s8, s8, %d" % WS_WOUT)
    pack_out(a, 22, 28, 8, 22 * 1024)
    a("s_endpgm")

def gen_prep():
    a = Asm()
    a("v_and_b32 v1, 63, v0")
    a("v_lshrrev_b32 v2, 6, v0")
    a("v_readfirstlane_b32 s20, v2")
    a("s_cmp_ge_u32 s2, %d" % PREP_GRID); a("s_cbranch_scc1 P_END")
    a("s_cmp_ge_u32 s2, %d" % (NK + NM + NX)); a("s_cbranch_scc1 P_WOUT")
    a("s_cmp_ge_u32 s2, %d" % (NK + NM)); a("s_cbranch_scc1 P_X")
    a("s_cmp_ge_u32 s2, %d" % NK); a("s_cbranch_scc1 P_MOD")
    role_kgen(a)
    a.label("P_MOD"); role_mod(a)
    a.label("P_X"); role_x(a)
    a.label("P_WOUT"); role_wout(a)
    a.label("P_END"); a("s_endpgm")
    return a
```

```python
import sys
sys.path.insert(0, "work")
from gen_common import *
import gen_prep
HEAD = open("adaLN_cond__ssm_conv_s4d__mixer_gmlp__prompt.s.ref").read().split("; Override")[0]
def build():
    ks = []
    ks.append(("prep_kernel", gen_prep.gen_prep(), gen_prep.PREP_GRID, 256, gen_prep.PREP_LDS))
    try:
        import gen_conv; ks.append(("conv_kernel", gen_conv.gen_conv(), gen_conv.GRID, 256, gen_conv.LDS))
        import gen_g1; ks.append(("g1_kernel", gen_g1.gen(), gen_g1.GRID, 256, gen_g1.LDS))
        import gen_g2; ks.append(("g2_kernel", gen_g2.gen(), gen_g2.GRID, 256, gen_g2.LDS))
        import gen_g3; ks.append(("g3_kernel", gen_g3.gen(), gen_g3.GRID, 256, gen_g3.LDS))
    except ImportError as e:
        print("partial:", e)
    s = HEAD
    for n, a, g, b, l in ks: s += "; @launch kernel=%s grid=(%d,1,1) block=(%d,1,1) lds=%d\n" % (n, g, b, l)
    s += '.amdgcn_target "amdgcn-amd-amdhsa--gfx950"\n'
    descs = ""
    for n, a, g, b, l in ks:
        body, desc = kernel_text(n, a); s += body; descs += desc
    return s + descs
if __name__ == "__main__":
    out = sys.argv[1] if len(sys.argv) > 1 else "adaLN_cond__ssm_conv_s4d__mixer_gmlp__prompt.s"
    open(out, "w").write(build())
```

```python
import re

TRANS = ("v_exp_f32", "v_log_f32", "v_rcp_f32", "v_rsq_f32", "v_sqrt_f32", "v_sin_f32", "v_cos_f32",
         "v_rcp_iflag_f32", "v_exp_f16", "v_rcp_f16")
REG_RE = re.compile(r"\b([vas])(\d+)\b|\b([vas])\[(\d+):(\d+)\]|\b(vcc|exec|m0|scc)\b")

def regs_of(op):
    out = []
    for m in REG_RE.finditer(op):
        if m.group(1):
            out.append((m.group(1), int(m.group(2))))
        elif m.group(3):
            for i in range(int(m.group(4)), int(m.group(5)) + 1):
                out.append((m.group(3), i))
        else:
            out.append((m.group(6), 0))
    return out

def split_ops(s):
    ops, depth, cur = [], 0, ""
    for ch in s:
        if ch == "[": depth += 1
        if ch == "]": depth -= 1
        if ch == "," and depth == 0:
            ops.append(cur.strip()); cur = ""
        else:
            cur += ch
    if cur.strip(): ops.append(cur.strip())
    return ops

class Ins:
    def __init__(self, text):
        self.text = text
        t = text.split(";")[0].strip()
        self.label = None
        if t.endswith(":"):
            self.label = t[:-1]; self.mn = ""; self.cls = "label"; self.w = []; self.r = []; return
        if t.startswith("."):
            self.mn = ""; self.cls = "dir"; self.w = []; self.r = []; return
        parts = t.split(None, 1)
        mn = parts[0]; self.mn = mn
        rest = parts[1] if len(parts) > 1 else ""
        ops = split_ops(rest)
        mods = ""
        if ops:
            lp = ops[-1].split()
            ops[-1] = lp[0]; mods = " ".join(lp[1:])
        self.ops = ops; self.mods = mods
        w, r = [], []
        self.passes = 0; self.srcc = []; self.srcab = []; self.sdata = []
        if mn.startswith("v_mfma"):
            self.cls = "mfma"
            w = regs_of(ops[0]); self.srcab = regs_of(ops[1]) + regs_of(ops[2]); self.srcc = regs_of(ops[3])
            r = self.srcab + self.srcc
            self.passes = 8 if "32x32x16" in mn else 4 if "16x16x32" in mn else None
            assert self.passes, mn
        elif mn.startswith("v_"):
            self.cls = "valu"
            base = mn.replace("_e32", "").replace("_e64", "").replace("_dpp", "").replace("_sdwa", "")
            self.base = base
            if base.startswith("v_cmp"):
                w = regs_of(ops[0]); r = sum((regs_of(o) for o in ops[1:]), [])
            elif base in ("v_add_co_u32", "v_sub_co_u32", "v_addc_co_u32", "v_mad_u64_u32"):
                w = regs_of(ops[0]) + regs_of(ops[1]); r = sum((regs_of(o) for o in ops[2:]), [])
            elif base.startswith("v_permlane") and "swap" in base:
                w = regs_of(ops[0]) + regs_of(ops[1]); r = list(w)
            else:
                w = regs_of(ops[0]); r = sum((regs_of(o) for o in ops[1:]), [])
                if base in ("v_fmac_f32", "v_dot2c_f32_bf16", "v_writelane_b32", "v_pk_fmac_f16") or "_dpp" in mn or "row_" in mods or "quad_perm" in mods or "dst_sel" in mods:
                    r = r + regs_of(ops[0])
            self.dpp = ("_dpp" in mn) or ("row_" in mods) or ("quad_perm" in mods)
            self.trans = base in TRANS
            self.dot = base.startswith("v_dot")
            self.opsel_dst = ("dst_sel" in mods and "DWORD" not in mods.split("dst_sel")[1][:8])
        elif mn.startswith(("buffer_", "global_", "flat_")):
            self.cls = "vmem"
            if mn in ("buffer_wbl2", "buffer_inv"):
                pass
            elif " lds" in (" " + mods) or "_lds_" in mn:
                r = sum((regs_of(o) for o in ops), []) + [("m0", 0)]
                self.ldsdma = True
            elif "store" in mn:
                r = sum((regs_of(o) for o in ops), [])
                d = ops[0] if mn.startswith("buffer_") else ops[1]
                if mn.endswith(("x3", "x4")): self.sdata = regs_of(d)
            elif "atomic" in mn:
                r = sum((regs_of(o) for o in ops), [])
                if "sc0" in mods: w = regs_of(ops[0])
            else:
                w = regs_of(ops[0]); r = sum((regs_of(o) for o in ops[1:]), [])
                if "d16" in mn: r = r + w
        elif mn.startswith("ds_"):
            self.cls = "ds"
            if mn.startswith(("ds_write", "ds_add", "ds_max", "ds_min", "ds_or")) and "rtn" not in mn:
                r = sum((regs_of(o) for o in ops), [])
            else:
                w = regs_of(ops[0]); r = sum((regs_of(o) for o in ops[1:]), [])
                if "d16" in mn: r = r + w
        elif mn.startswith("s_"):
            self.cls = "salu"
            if mn in ("s_nop", "s_waitcnt", "s_barrier", "s_endpgm", "s_sleep", "s_setprio", "s_branch") or mn.startswith("s_cbranch"):
                self.cls = "ctl"
            elif mn.startswith("s_cmp"):
                r = sum((regs_of(o) for o in ops), [])
            elif mn.startswith(("s_load", "s_memtime", "s_memrealtime", "s_buffer_load")):
                self.cls = "smem"; w = regs_of(ops[0]); r = sum((regs_of(o) for o in ops[1:]), [])
            else:
                w = regs_of(ops[0]); r = sum((regs_of(o) for o in ops[1:]), [])
                if "saveexec" in mn: w = w + [("exec", 0)]
        else:
            raise ValueError("unknown instr " + text)
        self.w = set(w); self.r = set(r)
    def states(self):
        if self.cls in ("label", "dir"): return 0
        if self.mn == "s_nop": return int(self.ops[0], 0) + 1
        return 1

XDL_RD = {2: 5, 4: 8, 8: 12, 16: 20}
XDL_C_OVL = {2: 4, 4: 6, 8: 10, 16: 18}
XDL_C_WAR = {2: 1, 4: 3, 8: 7, 16: 15}
def isv(x): return x[0] in ("v", "a")
def iss(x): return x[0] in ("s", "vcc")

def need(p, c):
    n = 0
    if p.cls == "valu":
        pv = {x for x in p.w if isv(x)}; ps = {x for x in p.w if iss(x)}
        if c.cls == "mfma" and pv & c.r: n = max(n, 2)
        if c.cls == "valu":
            if p.trans and (pv & c.r): n = max(n, 1)
            if p.dot and (pv & (c.r | c.w)):
                if not (c.base == p.base and not (pv & set(sum((regs_of(o) for o in c.ops[1:3]), [])))):
                    n = max(n, 3)
            if c.dpp and (pv & c.r): n = max(n, 2)
            if c.base.startswith("v_permlane") and (pv & c.r): n = max(n, 2)
            if c.base in ("v_readlane_b32", "v_readfirstlane_b32") and (pv & c.r): n = max(n, 1)
            if ps & c.r:
                n = max(n, 4 if c.base in ("v_readlane_b32", "v_writelane_b32") else 2)
            if p.opsel_dst and (pv & (c.r | c.w)): n = max(n, 1)
        if c.cls in ("vmem", "ds", "mfma") and (p.trans or p.dot) and (pv & c.r): n = max(n, 3 if p.dot else 1)
        if c.cls == "vmem" and (ps & c.r): n = max(n, 5)
        if c.cls in ("salu", "smem") and (ps & c.r): n = max(n, 1)
    if p.cls == "mfma":
        d = p.w
        if c.cls == "mfma":
            if d & set(c.srcab): n = max(n, XDL_RD[p.passes])
            cc = set(c.srcc)
            if d & cc:
                if not (d == cc and p.passes == c.passes): n = max(n, XDL_C_OVL[p.passes])
            if (d & c.w) and not (d & cc): n = max(n, XDL_RD[p.passes])
        elif c.cls in ("valu", "vmem", "ds"):
            if d & (c.r | c.w): n = max(n, XDL_RD[p.passes])
            if c.cls == "valu" and (set(p.srcc) & c.w): n = max(n, XDL_C_WAR[p.passes])
    if p.cls == "vmem" and p.sdata:
        if set(p.sdata) & c.w: n = max(n, 2 if c.cls in ("valu", "mfma") else 1)
    if p.cls == "salu" and ("m0", 0) in p.w and ("m0", 0) in c.r and c.cls != "salu": n = max(n, 1)
    return n

class Asm:
    def __init__(self):
        self.ins = []
        self.vm = []
        self.lg = []
        self.issued = set()
    def __call__(self, text, tag=None):
        for line in text.strip().split("\n"):
            line = line.strip()
            if not line or line.startswith(";"): continue
            i = Ins(line)
            self.ins.append(i)
            if tag is not None: self.issued.add(tag)
            if i.cls == "vmem" and i.mn not in ("buffer_wbl2", "buffer_inv"): self.vm.append(tag)
            if i.cls == "ds": self.lg.append(tag)
            if i.mn == "s_waitcnt":
                m = re.search(r"vmcnt\((\d+)\)", line)
                if m:
                    k = int(m.group(1)); self.vm = self.vm[len(self.vm) - k:] if k < len(self.vm) else self.vm
                m = re.search(r"lgkmcnt\((\d+)\)", line)
                if m:
                    k = int(m.group(1)); self.lg = self.lg[len(self.lg) - k:] if k < len(self.lg) else self.lg
    def label(self, name): self(name + ":")
    def wait_vm(self, tag):
        assert tag in self.issued, ("never issued", tag)
        idx = [i for i, t in enumerate(self.vm) if t == tag]
        if not idx: return
        n = len(self.vm) - 1 - idx[-1]
        self("s_waitcnt vmcnt(%d)" % min(n, 63))
    def wait_lg(self, tag):
        assert tag in self.issued, ("never issued", tag)
        idx = [i for i, t in enumerate(self.lg) if t == tag]
        if not idx: return
        n = len(self.lg) - 1 - idx[-1]
        self("s_waitcnt lgkmcnt(%d)" % min(n, 15))
    def reset_counts(self): self.vm = []; self.lg = []
    def finish(self):
        WIN = 24
        ins = self.ins
        def pad_needed(prev, c):
            dist = 0; req = 0
            for p in reversed(prev):
                if p.cls not in ("label", "dir"):
                    nd = need(p, c)
                    if nd > dist: req = max(req, nd - dist)
                dist += p.states()
                if dist >= WIN: break
            return req
        def nops(n):
            out = []
            while n > 0:
                k = min(n, 16); out.append(Ins("s_nop %d" % (k - 1))); n -= k
            return out
        out = []
        for c in ins:
            if c.cls not in ("label", "dir"):
                r = pad_needed(out[-64:], c)
                if r: out += nops(r)
            out.append(c)
        changed = True
        while changed:
            changed = False
            labels = {c.label: i for i, c in enumerate(out) if c.cls == "label"}
            for i, c in enumerate(out):
                if c.mn == "s_branch" or c.mn.startswith("s_cbranch"):
                    t = labels[c.ops[0]]
                    pre = out[max(0, i - 64): i + 1]
                    seq = list(pre); worst = 0; dist = 0
                    for d in out[t: t + 64]:
                        if d.cls not in ("label", "dir"):
                            dd = dist; req = 0
                            for p in reversed(pre):
                                if p.cls not in ("label", "dir"):
                                    nd = need(p, d)
                                    if nd > dd: req = max(req, nd - dd)
                                dd += p.states()
                                if dd >= WIN: break
                            worst = max(worst, req)
                        dist += d.states()
                        if dist >= WIN or d.mn in ("s_branch", "s_endpgm"): break
                    if worst:
                        out[i:i] = nops(worst); changed = True; break
        self.out = out
        return "\n".join((c.text if c.cls in ("label", "dir") else "  " + c.text) for c in out) + "\n"
    def maxregs(self):
        mv = ma = ms = -1
        for c in self.ins:
            for (k, n) in (set(c.w) | set(c.r)):
                if k == "v": mv = max(mv, n)
                if k == "a": ma = max(ma, n)
                if k == "s": ms = max(ms, n)
        return mv + 1, ma + 1, ms + 1

def kernel_text(name, a):
    body = a.finish()
    mv, ma, ms = a.maxregs()
    acc = (mv + 3) // 4 * 4
    nfv = acc + ma if ma else mv
    head = ".text\n.globl %s\n.p2align 8\n.type %s,@function\n%s:\n" % (name, name, name)
    desc = """.section .rodata,"a"
.p2align 6
.amdhsa_kernel %s
  .amdhsa_next_free_vgpr %d
  .amdhsa_next_free_sgpr %d
  .amdhsa_accum_offset %d
  .amdhsa_group_segment_fixed_size 0
  .amdhsa_kernarg_size 136
  .amdhsa_user_sgpr_count 2
  .amdhsa_user_sgpr_kernarg_segment_ptr 1
  .amdhsa_system_sgpr_workgroup_id_x 1
.end_amdhsa_kernel
""" % (name, nfv, max(ms, 16), acc)
    return head + body, desc
```

```python
from asmlib import *
import struct
KA = dict(u=0, logA=8, Aim=16, Cr=24, Ci=32, logdt=40, Dsk=48, bx=56, win=64, wsp=72, bsp=80, wout=88, c=96, wmod=104, out=112, dbg=120, ws=128)
SZ = dict(u=2048*512*2, logA=512*128*2, Aim=512*128*2, Cr=512*128*2, Ci=512*128*2, logdt=1024, Dsk=1024, win=512*1376*2,
          wsp=2048*2048*2, bsp=4096, wout=688*512*2, c=1024, wmod=512*3072*2, out=2048*512*2, dbg=256, ws=0x2000000)
WS_MOD  = 0x000000
WS_MODP = 0x040000
WS_WRAW = 0x1A00000
WS_KSC  = 0x004000
WS_CS1  = 0x005000
WS_CS2  = 0x006800
CS_PART = 0x3000
WS_FLG  = 0x00C000
WS_ZST  = 0x010000
WS_XT   = 0x100000
WS_XNT  = 0x300000
KLEN    = 2064
WS_KK   = 0x500000
WS_X1T  = 0xA00000
WS_WIN  = 0xC00000
WS_WOUT = 0xE00000
WS_Z1   = 0x1000000
WS_Z2   = 0x1400000
WS_V    = 0x1800000

def f2u(x): return struct.unpack("<I", struct.pack("<f", x))[0]
def fl(x): return "0x%08x" % f2u(x)
LOG2E = 1.4426950408889634
L2E_HI = struct.unpack("<f", struct.pack("<f", LOG2E))[0]
L2E_LO = LOG2E - L2E_HI
LN2 = 0.6931471805599453

def load_ptr(a, sreg, name):
    a("s_load_dwordx2 s[%d:%d], s[0:1], %d" % (sreg, sreg + 1, KA[name]))
def make_srd(a, srd, name):
    a("s_mov_b32 s%d, 0x%x" % (srd + 2, SZ[name]))
    a("s_mov_b32 s%d, 0x20000" % (srd + 3))
def bf16r(a, dst, src):
    a("v_cvt_pk_bf16_f32 v%d, v%d, v%d" % (dst, src, src))
    a("v_and_b32 v%d, 0xffff0000, v%d" % (dst, dst))
def exp_acc(a, dst, x, t0, t1):
    a("v_mul_f32 v%d, %s, v%d" % (t0, fl(L2E_HI), x))
    a("v_mov_b32 v%d, %s" % (t1, fl(L2E_HI)))
    a("v_fma_f32 v%d, v%d, v%d, -v%d" % (t1, x, t1, t0))
    a("v_fmac_f32 v%d, %s, v%d" % (t1, fl(L2E_LO), x))
    a("v_exp_f32 v%d, v%d" % (t0, t0))
    a("v_mul_f32 v%d, %s, v%d" % (t1, fl(LN2), t1))
    a("v_fma_f32 v%d, v%d, v%d, v%d" % (dst, t0, t1, t0))
def cmul(a, d, x, y):
    assert d != x and d != y and d % 2 == 0 and x % 2 == 0 and y % 2 == 0
    a("v_pk_mul_f32 v[%d:%d], v[%d:%d], v[%d:%d] op_sel_hi:[1,0]" % (d, d + 1, x, x + 1, y, y + 1))
    a("v_pk_fma_f32 v[%d:%d], v[%d:%d], v[%d:%d], v[%d:%d] op_sel:[1,1,0] op_sel_hi:[0,1,1] neg_lo:[1,0,0]" % (d, d + 1, x, x + 1, y, y + 1, d, d + 1))
def cmul2(a, pairs):
    for d, x, y in pairs:
        assert d != x and d != y
        a("v_pk_mul_f32 v[%d:%d], v[%d:%d], v[%d:%d] op_sel_hi:[1,0]" % (d, d + 1, x, x + 1, y, y + 1))
    for d, x, y in pairs:
        a("v_pk_fma_f32 v[%d:%d], v[%d:%d], v[%d:%d], v[%d:%d] op_sel:[1,1,0] op_sel_hi:[0,1,1] neg_lo:[1,0,0]" % (d, d + 1, x, x + 1, y, y + 1, d, d + 1))
def reduce8(a, r, op="v_add_f32"):
    for i in range(4):
        a("v_permlane32_swap_b32 v%d, v%d" % (r[i], r[i + 4]))
    for i in range(4):
        a("%s v%d, v%d, v%d" % (op, r[i], r[i], r[i + 4]))
    for i in range(2):
        a("v_permlane16_swap_b32 v%d, v%d" % (r[i], r[i + 2]))
    for i in range(2):
        a("%s v%d, v%d, v%d" % (op, r[i], r[i], r[i + 2]))
    for sh in (1, 2, 4, 8):
        for i in range(2):
            a("%s_dpp v%d, v%d, v%d row_shr:%d row_mask:0xf bank_mask:0xf" % (op, r[i], r[i], r[i], sh))

import os
PROF = int(os.environ.get("PROF", "0"))
WS_PROF = 0x1C00000
def stamp(a, idx):
    if PROF: a("%s s[%d:%d]" % ("s_memrealtime" if PROF == 1 else "s_memtime", 80 + 2 * idx, 81 + 2 * idx))
def stamp_init(a):
    if PROF:
        for i in range(16): a("s_mov_b32 s%d, 0" % (80 + i))
        stamp(a, 0)
def endp(a, kidx):
    if PROF:
        a("s_waitcnt vmcnt(0)")
        stamp(a, 7)
        a("s_load_dwordx2 s[96:97], s[0:1], 128")
        a("s_lshl_b32 s98, s2, 2"); a("s_add_u32 s98, s98, s20"); a("s_lshl_b32 s98, s98, 6"); a("s_add_u32 s98, s98, %d" % (WS_PROF + kidx * 0x40000))
        a("s_mov_b64 exec, 1")
        a("v_mov_b32 v0, s98")
        a("s_waitcnt lgkmcnt(0)")
        for i in range(8):
            a("v_mov_b32 v2, s%d" % (80 + 2 * i)); a("v_mov_b32 v3, s%d" % (81 + 2 * i))
            a("global_store_dwordx2 v0, v[2:3], s[96:97] offset:%d" % (8 * i))
    a("s_endpgm")
```

```python
from gen_common import *
from gen_prep import pack_rows
NC, NS_, NW = 256, 88, 48
GRID = NC + NS_ + NW
CSZ = 4160
UB = 8 * CSZ
USZ = 7680
XR = UB + 2 * USZ
KC = XR + 8192
KCS = 1536
XB = 0
LDS = KC + 2 * KCS
SC = " sc1"

def rnd_pk(a, p):
    a("v_cvt_pk_bf16_f32 v%d, v%d, v%d" % (p, p, p + 1))
    a("v_and_b32 v%d, 0xffff0000, v%d" % (p + 1, p)); a("v_lshlrev_b32 v%d, 16, v%d" % (p, p))

def role_conv(a):
    load_ptr(a, 24, "ws"); load_ptr(a, 4, "Dsk"); load_ptr(a, 28, "wsp")
    a("s_lshr_b32 s21, s20, 1"); a("s_and_b32 s23, s20, 1")
    a("s_lshl_b32 s22, s2, 1"); a("s_add_u32 s22, s22, s21")
    a("v_lshlrev_b32 v2, 4, v1"); a("v_lshlrev_b32 v3, 4, v0"); a("v_lshlrev_b32 v26, 3, v1")
    a("s_lshl_b32 s3, s2, 3"); a("s_lshl_b32 s6, s2, 2")
    a("s_lshl_b32 s10, s2, 13"); a("s_add_u32 s11, s10, %d" % WS_XT); a("s_add_u32 s10, s10, %d" % WS_XNT)
    a("s_lshl_b32 s12, s22, 12"); a("s_lshl_b32 s13, s23, 10"); a("s_add_u32 s12, s12, s13"); a("s_add_u32 s12, s12, %d" % WS_KK)
    a("v_lshrrev_b32 v6, 3, v1"); a("v_lshlrev_b32 v6, 4, v6"); a("v_xor_b32 v6, v6, v2"); a("v_and_b32 v7, 0x70, v6"); a("v_and_b32 v6, 0x380, v2"); a("v_or_b32 v6, v6, v7")
    a("s_lshl_b32 s13, s20, 11"); a("s_add_u32 s11, s11, s13")
    a("s_waitcnt lgkmcnt(0)")
    make_srd(a, 24, "ws"); make_srd(a, 28, "wsp")
    a("s_add_u32 s8, s24, s3"); a("s_addc_u32 s9, s25, 0")
    for hf in range(2):
        for t in range(2):
            a("buffer_load_dwordx2 v[%d:%d], v26, s[24:27], s12 offen offset:%d" % (16 + 4 * hf + 2 * t, 17 + 4 * hf + 2 * t, hf * 2048 + t * 512), tag="k")
    a("buffer_load_dwordx4 v[8:11], v3, s[24:27], s10 offen", tag="xn")
    a("s_add_u32 s10, s10, 4096")
    a("buffer_load_dwordx4 v[12:15], v3, s[24:27], s10 offen", tag="xn")
    for sec in range(3):
        for p in range(4):
            a("s_load_dwordx2 s[%d:%d], s[8:9], %d" % (36 + 8 * sec + 2 * p, 37 + 8 * sec + 2 * p, WS_MODP + p * 12288 + sec * 2048))
    a("s_load_dwordx2 s[60:61], s[8:9], %d" % WS_KSC)
    a("s_load_dword s62, s[4:5], s6")
    a("s_add_u32 m0, s13, %d" % XR)
    a("buffer_load_dwordx4 v6, s[24:27], s11 offen lds", tag="x")
    a("buffer_load_dwordx4 v6, s[24:27], s11 offen offset:1024 lds", tag="x")
    a("v_mov_b32 v24, -1"); a("v_mov_b32 v25, -1")
    a("s_lshl_b32 s16, s2, 9"); a("s_add_u32 s16, s16, %d" % WS_ZST)
    a("buffer_store_dwordx2 v[24:25], v26, s[24:27], s16 offen" + SC, tag="x")
    for i in range(4): a("v_mov_b32 v%d, 0" % (32 + i))
    a("v_lshrrev_b32 v28, 7, v0"); a("v_mul_u32_u24 v27, %d, v28" % KCS); a("v_mul_u32_u24 v28, %d, v28" % USZ)
    a("v_and_b32 v29, 127, v0"); a("v_add_u32 v30, 128, v29"); a("v_min_u32 v30, 154, v30")
    a("v_lshl_add_u32 v29, v29, 4, v28"); a("v_lshl_add_u32 v30, v30, 4, v28")
    a("ds_write_b128 v29, v[32:35] offset:%d" % UB); a("ds_write_b128 v30, v[32:35] offset:%d" % UB)
    a("v_bfe_u32 v28, v0, 2, 3"); a("v_mul_u32_u24 v28, %d, v28" % CSZ); a("v_and_b32 v29, 3, v0"); a("v_lshl_add_u32 v28, v29, 4, v28")
    a("ds_write_b128 v28, v[32:35] offset:4096")
    a("ds_write_b128 v27, v[32:35] offset:%d" % KC)
    for i in range(32): a("v_mov_b32 v%d, 0" % (96 + i))
    a("v_and_b32 v4, 31, v1"); a("v_lshrrev_b32 v5, 5, v1")
    a("v_and_b32 v28, 3, v4"); a("v_sub_u32 v28, 3, v28"); a("v_mul_u32_u24 v28, %d, v28" % CSZ)
    a("v_lshrrev_b32 v29, 2, v4"); a("v_lshlrev_b32 v29, 3, v29"); a("v_sub_u32 v28, v28, v29")
    a("v_lshl_add_u32 v28, v5, 4, v28")
    a("s_mul_i32 s14, s21, %d" % (4 * CSZ)); a("s_lshl_b32 s17, s23, 5"); a("s_add_u32 s16, s14, s17"); a("s_add_u32 s16, s16, 56")
    a("v_add_u32 v28, s16, v28")
    a("v_mul_u32_u24 v29, 80, v4"); a("v_lshl_add_u32 v30, v5, 4, v29")
    a("s_mul_i32 s18, s21, %d" % USZ); a("s_add_u32 s19, s18, s17"); a("s_add_u32 s19, s19, %d" % UB)
    a("v_add_u32 v30, s19, v30")
    a("v_lshl_add_u32 v31, v5, 3, v29"); a("s_mul_i32 s19, s23, 2560"); a("s_add_u32 s19, s19, s18"); a("s_add_u32 s19, s19, %d" % (UB + 31 * 80))
    a("v_add_u32 v31, s19, v31")
    a("v_and_b32 v29, 7, v4"); a("v_xor_b32 v29, s21, v29"); a("v_lshlrev_b32 v29, 4, v29"); a("v_lshl_add_u32 v29, v4, 7, v29"); a("v_lshl_add_u32 v29, v5, 3, v29")
    a("s_lshl_b32 s19, s23, 12"); a("v_add_u32 v88, s19, v29")
    for q in range(1, 4): a("v_xor_b32 v%d, %d, v88" % (88 + q, q * 32))
    a("v_lshrrev_b32 v32, 3, v0"); a("v_mul_u32_u24 v32, 80, v32"); a("v_bfe_u32 v33, v0, 1, 2"); a("v_lshl_add_u32 v32, v33, 4, v32")
    a("v_and_b32 v33, 1, v0"); a("v_mul_u32_u24 v34, %d, v33" % USZ); a("v_add_u32 v32, v32, v34")
    a("v_cmp_eq_u32 s[64:65], 1, v33")
    a("v_and_b32 v34, 15, v1"); a("v_lshrrev_b32 v35, 4, v1")
    a("s_mul_i32 s15, s21, %d" % KCS); a("s_add_u32 s15, s15, %d" % (KC + 16))
    a("v_lshlrev_b32 v36, 7, v35"); a("v_lshl_add_u32 v36, v34, 3, v36"); a("v_add_u32 v36, s15, v36")
    a("v_cmp_gt_u32 vcc, 2, v35")
    a("v_lshlrev_b32 v37, 1, v34"); a("v_lshlrev_b32 v38, 2, v34"); a("v_cndmask_b32 v37, v37, v38, vcc")
    a("v_lshl_add_u32 v37, v35, 7, v37"); a("v_add_u32 v37, s15, v37")
    a("v_mov_b32 v38, 32"); a("v_cndmask_b32 v38, v38, 2, vcc"); a("v_add_u32 v38, v38, v37")
    a("v_lshlrev_b32 v39, 6, v35"); a("v_add_u32 v39, v39, v34"); a("v_add_u32 v39, s15, v39")
    a("v_add_u32 v87, s15, v34")
    a("s_lshl_b32 s16, s23, 6"); a("v_add_u32 v60, s16, v1")
    a("v_lshlrev_b32 v61, 4, v60"); a("v_sub_u32 v61, 2047, v61")
    a("v_cvt_f32_u32 v62, v61")
    a("v_lshl_add_u32 v61, v61, 1, s15")
    a("s_add_u32 s16, s15, 256"); a("s_sub_u32 s17, s15, 0x8500")
    for k in range(0, 20, 2):
        a("v_subrev_f32 v63, %s, v62" % fl(float(k))); a("v_subrev_f32 v64, %s, v62" % fl(float(k + 1)))
        if k >= 16: a("v_max_f32 v63, 0, v63"); a("v_max_f32 v64, 0, v64")
        a("v_cvt_pk_bf16_f32 v63, v63, v64")
        a("v_lshrrev_b32 v64, 16, v63"); a("v_and_b32 v63, 0xffff, v63")
        a("v_lshl_add_u32 v63, v63, 1, s17"); a("v_subrev_u32 v65, %d, v61" % (2 * k)); a("v_med3_i32 v%d, v63, v65, s16" % (40 + k))
        if k < 18:
            a("v_lshl_add_u32 v64, v64, 1, s17"); a("v_subrev_u32 v65, %d, v61" % (2 * k + 2)); a("v_med3_i32 v%d, v64, v65, s16" % (41 + k))
    a("v_lshl_add_u32 v60, v60, 5, s14")
    stamp(a, 1)
    a.wait_vm("k")
    for i in range(4): a("v_pk_add_f16 v%d, v%d, v%d" % (16 + i, 16 + i, 20 + i))
    a("s_cmp_eq_u32 s23, 0"); a("s_cbranch_scc0 CV_K1")
    a("ds_write_b64 v36, v[16:17]")
    a("ds_write_b16 v37, v18 offset:512"); a("ds_write_b16_d16_hi v38, v18 offset:512"); a("ds_write_b16 v37, v19 offset:576"); a("ds_write_b16_d16_hi v38, v19 offset:576")
    a("s_branch CV_K2")
    a.label("CV_K1")
    a("s_mov_b32 exec_lo, 0x55555555"); a("s_mov_b32 exec_hi, 0x55555555")
    a("ds_write_b16 v39, v16 offset:1024"); a("ds_write_b16_d16_hi v39, v16 offset:1040"); a("ds_write_b16 v39, v17 offset:1056"); a("ds_write_b16_d16_hi v39, v17 offset:1072")
    a("ds_write_b16 v87, v18 offset:1280")
    a("s_mov_b64 exec, -1")
    a.label("CV_K2")
    a("s_waitcnt lgkmcnt(0)"); a("s_barrier")
    for k in range(19): a("ds_read_u16 v%d, v%d" % (40 + k, 40 + k))
    def msum(dst, sec):
        for c in range(2):
            b = 36 + 8 * sec + c
            a("v_mov_b32 v%d, s%d" % (70 + c, b)); a("v_add_f32 v%d, s%d, v%d" % (70 + c, b + 2, 70 + c))
            a("v_mov_b32 v72, s%d" % (b + 4)); a("v_add_f32 v72, s%d, v72" % (b + 6)); a("v_add_f32 v%d, v%d, v72" % (70 + c, 70 + c))
        a("v_cndmask_b32 v%d, v70, v71, s[64:65]" % dst); bf16r(a, dst, dst)
    msum(74, 0); msum(76, 1); msum(78, 2)
    a("v_add_f32 v76, 1.0, v76"); bf16r(a, 76, 76)
    a("v_mul_f32 v70, %s, v76" % fl(23.0)); a("v_add_f32 v70, abs(v70), abs(v74)")
    a("v_and_b32 v70, 0x7f800000, v70"); a("v_max_u32 v70, 0x%x, v70" % (14 << 23)); a("v_min_u32 v70, 0x7f000000, v70")
    a("v_sub_u32 v71, 0x%x, v70" % (267 << 23)); a("v_subrev_u32 v70, 0x%x, v70" % (13 << 23))
    a("v_mul_f32 v76, v76, v71"); a("v_mul_f32 v74, v74, v71")
    a("v_readlane_b32 s51, v70, s21"); a("v_readlane_b32 s54, v78, s21")
    a("s_lshl_b32 s52, s62, 16"); a("s_and_b32 s53, s62, 0xffff0000")
    a("s_cmp_eq_u32 s21, 0"); a("s_cselect_b32 s50, s60, s61"); a("s_cselect_b32 s52, s52, s53")
    a("v_mov_b32 v70, s51"); a("v_mul_f32 v71, s50, v70"); a("v_mul_f32 v72, s52, v70")
    a("v_readfirstlane_b32 s50, v71"); a("v_readfirstlane_b32 s52, v72")
    a.wait_vm("xn")
    for i in range(2):
        for q in range(4):
            w = 8 + 4 * i + q; p = 70 + 2 * (q & 1)
            a("v_lshlrev_b32 v%d, 16, v%d" % (p, w)); a("v_and_b32 v%d, 0xffff0000, v%d" % (p + 1, w))
            a("v_pk_mul_f32 v[%d:%d], v[%d:%d], v[76:77] op_sel_hi:[1,0]" % (p, p + 1, p, p + 1)); rnd_pk(a, p)
            a("v_pk_add_f32 v[%d:%d], v[%d:%d], v[74:75] op_sel_hi:[1,0]" % (p, p + 1, p, p + 1)); rnd_pk(a, p)
            a("v_cvt_pk_f16_f32 v%d, v%d, v%d" % (w, p, p + 1))
        a("ds_write_b128 v32, v[%d:%d] offset:%d" % (8 + 4 * i, 11 + 4 * i, UB + 31 * 80 + i * 2560))
    a("s_waitcnt lgkmcnt(2)")
    E, O = 62, 72
    for k in range(9): a("v_lshl_or_b32 v%d, v%d, 16, v%d" % (E + k, 41 + 2 * k, 40 + 2 * k))
    for k in range(9): a("v_lshl_or_b32 v%d, v%d, 16, v%d" % (O + k, 42 + 2 * k, 41 + 2 * k))
    for cp, R in ((0, E), (1, O)):
        a("ds_write_b128 v60, v[%d:%d] offset:%d" % (R, R + 3, cp * CSZ)); a("ds_write_b128 v60, v[%d:%d] offset:%d" % (R + 4, R + 7, cp * CSZ + 16))
    a("v_add_u32 v61, %d, v60" % (2 * CSZ)); a("v_add_u32 v59, %d, v60" % (3 * CSZ))
    for ad, R in ((61, E), (59, O)):
        for k in range(4): a("ds_write2_b32 v%d, v%d, v%d offset0:%d offset1:%d" % (ad, R + 1 + 2 * k, R + 2 + 2 * k, 2 * k, 2 * k + 1))
    a.wait_vm("x")
    a("s_bfe_u32 s66, s2, 0x20001"); a("s_lshl_b32 s66, s66, 9"); a("s_lshr_b32 s67, s2, 3"); a("s_lshl_b32 s67, s67, 4"); a("s_add_u32 s66, s66, s67")
    a("s_lshl_b32 s67, s20, 2"); a("s_add_u32 s66, s66, s67"); a("s_lshl_b32 s66, s66, 12")
    a("v_lshlrev_b32 v92, 6, v1")
    a("s_waitcnt lgkmcnt(0)"); a("s_barrier")
    stamp(a, 3)
    def loads(t):
        b = 40 + 16 * (t % 3); ops = []
        for j, m in enumerate((t, t + 32)):
            off = 4032 - 64 * m
            ops.append("ds_read_b64 v[%d:%d], v28 offset:%d" % (b + 4 * j, b + 4 * j + 1, off))
            ops.append("ds_read_b64 v[%d:%d], v28 offset:%d" % (b + 4 * j + 2, b + 4 * j + 3, off + 8))
        ops.append("ds_read_b128 v[%d:%d], v30 offset:%d" % (b + 8, b + 11, (31 - t) * 80))
        ops.append("ds_read_b128 v[%d:%d], v30 offset:%d" % (b + 12, b + 15, (63 - t) * 80))
        return ops
    for t in range(2):
        for o in loads(t): a(o, tag=t)
    for t in range(32):
        nx = loads(t + 2) if t + 2 < 32 else []
        a.wait_lg(t)
        b = 40 + 16 * (t % 3)
        ms = ["v_mfma_f32_32x32x16_f16 v[96:111], v[%d:%d], v[%d:%d], v[96:111]" % (b, b + 3, b + 8, b + 11),
              "v_mfma_f32_32x32x16_f16 v[112:127], v[%d:%d], v[%d:%d], v[112:127]" % (b, b + 3, b + 12, b + 15),
              "v_mfma_f32_32x32x16_f16 v[112:127], v[%d:%d], v[%d:%d], v[112:127]" % (b + 4, b + 7, b + 8, b + 11)]
        for i, m in enumerate(ms):
            a(m)
            for o in nx[2 * i: 2 * i + 2]: a(o, tag=t + 2)
        if t in (2, 6, 10, 14):
            a("buffer_load_dword v93, v92, s[28:31], s66 offen"); a("s_add_u32 s66, s66, 4096")
        if t == 30:
            for q in range(4): a("ds_read_b64 v[%d:%d], v31 offset:%d" % (8 + 2 * q, 9 + 2 * q, 16 * q))
            for q in range(4): a("ds_read_b64 v[%d:%d], v%d offset:%d" % (16 + 2 * q, 17 + 2 * q, 88 + q, XR))
            a.lg = a.lg[:-8] if False else a.lg
    stamp(a, 4)
    a("s_lshl_b32 s16, s20, 12"); a("v_add_u32 v33, s16, v2"); a("v_xor_b32 v34, 4096, v33")
    a("v_lshrrev_b32 v7, 1, v4"); a("v_lshlrev_b32 v7, 16, v7"); a("v_and_b32 v72, 1, v4"); a("v_lshl_add_u32 v7, v72, 6, v7"); a("v_lshl_add_u32 v7, v5, 5, v7")
    a("s_lshl_b32 s15, s23, 20"); a("s_lshl_b32 s16, s22, 7"); a("s_add_u32 s15, s15, s16"); a("s_add_u32 s15, s15, %d" % WS_X1T)
    a("s_waitcnt lgkmcnt(0)"); a("s_barrier")
    a("s_cmp_eq_u32 s23, 0"); a("s_cbranch_scc0 CV_H1")
    for hh in range(2):
        snd, keep = (112, 96) if hh == 0 else (96, 112)
        if hh == 1: a.label("CV_H1")
        for q in range(4): a("ds_write_b128 v33, v[%d:%d] offset:%d" % (snd + 4 * q, snd + 4 * q + 3, XB + q * 1024))
        for k in range(8):
            t = 60 + 2 * k; hreg = 8 + k
            a("v_cvt_f32_f16 v%d, v%d" % (t, hreg)); a("v_cvt_f32_f16_sdwa v%d, v%d dst_sel:DWORD dst_unused:UNUSED_PAD src0_sel:WORD_1" % (t + 1, hreg))
            a("v_pk_mul_f32 v[%d:%d], v[%d:%d], s[52:53] op_sel_hi:[1,0]" % (t, t + 1, t, t + 1)); rnd_pk(a, t)
        a("s_waitcnt lgkmcnt(0)"); a("s_barrier")
        for q in range(4): a("ds_read_b128 v[%d:%d], v34 offset:%d" % (40 + 4 * q, 43 + 4 * q, XB + q * 1024))
        a("s_waitcnt lgkmcnt(0)")
        for i in range(0, 16, 2): a("v_pk_add_f32 v[%d:%d], v[%d:%d], v[%d:%d]" % (40 + i, 41 + i, 40 + i, 41 + i, keep + i, keep + i + 1))
        if hh == 0: a("s_branch CV_EP")
    a.label("CV_EP")
    stamp(a, 5)
    for k in range(8):
        y = 40 + 2 * k; xreg = 16 + k; t = 60 + 2 * k
        a("v_pk_mul_f32 v[%d:%d], v[%d:%d], s[50:51] op_sel_hi:[1,0]" % (y, y + 1, y, y + 1)); rnd_pk(a, y)
        a("v_pk_add_f32 v[%d:%d], v[%d:%d], v[%d:%d]" % (y, y + 1, y, y + 1, t, t + 1)); rnd_pk(a, y)
        a("v_pk_mul_f32 v[%d:%d], v[%d:%d], s[54:55] op_sel_hi:[1,0]" % (y, y + 1, y, y + 1)); rnd_pk(a, y)
        a("v_lshlrev_b32 v%d, 16, v%d" % (t, xreg)); a("v_and_b32 v%d, 0xffff0000, v%d" % (t + 1, xreg))
        a("v_pk_add_f32 v[%d:%d], v[%d:%d], v[%d:%d]" % (y, y + 1, y, y + 1, t, t + 1))
        a("v_cvt_pk_bf16_f32 v%d, v%d, v%d" % (80 + k, y, y + 1))
        if k == 3: a("buffer_store_dwordx4 v[80:83], v7, s[24:27], s15 offen" + SC)
    a("buffer_store_dwordx4 v[84:87], v7, s[24:27], s15 offen offset:16" + SC)
    endp(a, 1)

def role_scale(a):
    a.reset_counts()
    load_ptr(a, 24, "ws")
    a("s_sub_u32 s3, s2, %d" % NC)
    a("v_lshlrev_b32 v2, 4, v1"); a("v_lshlrev_b32 v3, 3, v0")
    a("s_lshl_b32 s4, s3, 14"); a("s_lshl_b32 s5, s20, 12"); a("s_add_u32 s4, s4, s5"); a("s_add_u32 s5, s4, %d" % WS_WRAW); a("s_add_u32 s4, s4, %d" % WS_WIN)
    a("s_waitcnt lgkmcnt(0)")
    make_srd(a, 24, "ws")
    for p in range(4):
        a("s_mov_b32 s6, %d" % (WS_MODP + p * 12288 + 3 * 2048))
        a("buffer_load_dwordx2 v[%d:%d], v3, s[24:27], s6 offen" % (60 + 2 * p, 61 + 2 * p), tag="m")
        a("buffer_load_dwordx2 v[%d:%d], v3, s[24:27], s6 offen offset:2048" % (68 + 2 * p, 69 + 2 * p), tag="m")
    for k in range(4): a("buffer_load_dwordx4 v[%d:%d], v2, s[24:27], s5 offen offset:%d" % (40 + 4 * k, 43 + 4 * k, k * 1024), tag="w")
    a("s_cmp_lg_u32 s3, 0"); a("s_cbranch_scc1 SC_NOGB")
    vm0 = list(a.vm)
    for p in range(4):
        a("s_mov_b32 s6, %d" % (WS_MODP + p * 12288 + 5 * 2048))
        a("buffer_load_dwordx2 v[%d:%d], v3, s[24:27], s6 offen" % (76 + 2 * p, 77 + 2 * p))
    a("s_waitcnt vmcnt(0)")
    for c in range(2):
        a("v_add_f32 v%d, v%d, v%d" % (76 + c, 76 + c, 78 + c)); a("v_add_f32 v%d, v%d, v%d" % (80 + c, 80 + c, 82 + c)); a("v_add_f32 v%d, v%d, v%d" % (76 + c, 76 + c, 80 + c)); bf16r(a, 76 + c, 76 + c)
    a("s_mov_b32 s6, %d" % (WS_MOD + 5 * 2048))
    a("buffer_store_dwordx2 v[76:77], v3, s[24:27], s6 offen" + SC)
    a("s_waitcnt vmcnt(0)")
    a.label("SC_NOGB")
    a.vm = vm0
    a("v_lshrrev_b32 v10, 4, v1"); a("v_lshlrev_b32 v11, 5, v10"); a("s_lshl_b32 s7, s20, 9"); a("v_add_u32 v11, s7, v11")
    a.wait_vm("m")
    for b in (60, 68):
        for c in range(2):
            a("v_add_f32 v%d, v%d, v%d" % (b + c, b + c, b + 2 + c)); a("v_add_f32 v%d, v%d, v%d" % (b + 4 + c, b + 4 + c, b + 6 + c)); a("v_add_f32 v%d, v%d, v%d" % (b + c, b + c, b + 4 + c)); bf16r(a, b + c, b + c)
    for c in range(2): a("v_add_f32 v%d, 1.0, v%d" % (68 + c, 68 + c)); bf16r(a, 68 + c, 68 + c)
    a("ds_write_b64 v3, v[60:61]"); a("ds_write_b64 v3, v[68:69] offset:2048")
    a("s_waitcnt lgkmcnt(0)"); a("s_barrier")
    for k in range(4):
        for hh in range(2):
            a("ds_read_b128 v[%d:%d], v11 offset:%d" % (60 + 16 * k + 4 * hh, 63 + 16 * k + 4 * hh, k * 128 + hh * 16), tag=k)
            a("ds_read_b128 v[%d:%d], v11 offset:%d" % (68 + 16 * k + 4 * hh, 71 + 16 * k + 4 * hh, 2048 + k * 128 + hh * 16), tag=k)
    a("v_mov_b32 v20, 0"); a("v_mov_b32 v21, 0")
    a.wait_vm("w")
    for k in range(4):
        a.wait_lg(k)
        for q in range(4):
            w = 40 + 4 * k + q; sb = 60 + 16 * k + 2 * q; c1 = 68 + 16 * k + 2 * q
            a("v_lshlrev_b32 v12, 16, v%d" % w); a("v_and_b32 v13, 0xffff0000, v%d" % w)
            a("v_fmac_f32 v21, v12, v%d" % sb); a("v_fmac_f32 v21, v13, v%d" % (sb + 1))
            a("v_mul_f32 v12, v12, v%d" % c1); a("v_mul_f32 v13, v13, v%d" % (c1 + 1))
            a("v_cvt_pk_bf16_f32 v%d, v12, v13" % w)
            a("v_lshlrev_b32 v12, 16, v%d" % w); a("v_and_b32 v13, 0xffff0000, v%d" % w)
            a("v_add_f32 v20, v20, v12"); a("v_add_f32 v20, v20, v13")
        a("buffer_store_dwordx4 v[%d:%d], v2, s[24:27], s4 offen offset:%d%s" % (40 + 4 * k, 43 + 4 * k, k * 1024, SC))
    a("v_lshlrev_b32 v12, 2, v0")
    a("ds_write_b32 v12, v20 offset:4096"); a("ds_write_b32 v12, v21 offset:5120")
    a("s_waitcnt lgkmcnt(0)"); a("s_barrier")
    a("s_cmp_lg_u32 s20, 0"); a("s_cbranch_scc1 C_END")
    a("v_and_b32 v12, 15, v1"); a("v_lshlrev_b32 v12, 2, v12"); a("v_bfe_u32 v13, v1, 4, 1"); a("v_lshl_add_u32 v14, v13, 10, v12")
    for i in range(16): a("ds_read_b32 v%d, v14 offset:%d" % (20 + i, 4096 + i * 64))
    a("v_mul_u32_u24 v13, %d, v13" % (WS_CS2 - WS_CS1)); a("v_add_u32 v12, v12, v13")
    a("s_lshl_b32 s6, s3, 6"); a("s_add_u32 s6, s6, %d" % WS_CS1)
    a("s_waitcnt lgkmcnt(0)")
    for st in (8, 4, 2, 1):
        for i in range(st): a("v_add_f32 v%d, v%d, v%d" % (20 + i, 20 + i, 20 + i + st))
    a("buffer_store_dword v20, v12, s[24:27], s6 offen" + SC)
    endp(a, 1)

def role_wout(a):
    a.reset_counts()
    load_ptr(a, 24, "wout"); load_ptr(a, 28, "ws")
    a("s_sub_u32 s3, s2, %d" % (NC + NS_)); a("s_and_b32 s4, s3, 15"); a("s_lshr_b32 s11, s3, 4")
    a("s_lshl_b32 s5, s4, 6"); a("s_lshl_b32 s6, s11, 18"); a("s_add_u32 s5, s5, s6")
    a("v_lshrrev_b32 v2, 2, v1"); a("s_lshl_b32 s6, s20, 4"); a("v_add_u32 v2, s6, v2")
    a("v_lshlrev_b32 v3, 10, v2"); a("v_and_b32 v4, 3, v1"); a("v_lshl_add_u32 v3, v4, 4, v3")
    a("s_mul_i32 s8, s4, %d" % (2 * 24 * 1024)); a("s_lshl_b32 s6, s11, 13"); a("s_add_u32 s8, s8, s6"); a("s_add_u32 s8, s8, %d" % WS_WOUT)
    a("s_waitcnt lgkmcnt(0)")
    make_srd(a, 24, "wout"); make_srd(a, 28, "ws")
    pack_rows(a, 24, 28, 4, 1024, 5, 8, 24 * 1024, 3, "W")
    endp(a, 1)

def gen_conv():
    a = Asm()
    stamp_init(a)
    a("v_and_b32 v1, 63, v0"); a("v_lshrrev_b32 v2, 6, v0"); a("v_readfirstlane_b32 s20, v2")
    a("s_cmp_ge_u32 s2, %d" % GRID); a("s_cbranch_scc1 C_END")
    a("s_cmp_ge_u32 s2, %d" % (NC + NS_)); a("s_cbranch_scc1 C_WOUT")
    a("s_cmp_ge_u32 s2, %d" % NC); a("s_cbranch_scc1 C_SCALE")
    role_conv(a)
    a.label("C_SCALE"); role_scale(a)
    a.label("C_WOUT"); role_wout(a)
    a.label("C_END"); endp(a, 1)
    return a
```

```python
from gen_common import *
GRID = 256
A_OFF = 8192
CS_OFF = 4096
ST_OFF = 0
ZS_OFF = 512
ZF_OFF = 2560
TR_OFF = A_OFF + 65536
LDS = TR_OFF + 4 * 4096
Z2_NORMALIZED = True
K0 = -2 * 0.7978845608028654 * LOG2E
K1 = K0 * 0.044715
SC = " sc1"
NPRE = int(os.environ.get("NPRE", "24"))
VSL = (1, 4, 7, 9)

def gen():
    a = Asm()
    stamp_init(a)
    a("v_and_b32 v1, 63, v0"); a("v_lshrrev_b32 v2, 6, v0"); a("v_readfirstlane_b32 s20, v2")
    a("s_cmp_ge_u32 s2, %d" % GRID); a("s_cbranch_scc1 G1_END")
    load_ptr(a, 24, "ws")
    a("s_bfe_u32 s3, s2, 0x20001"); a("s_lshl_b32 s3, s3, 3"); a("s_bfe_u32 s4, s2, 0x30003"); a("s_add_u32 s3, s3, s4")
    a("s_and_b32 s4, s2, 1"); a("s_lshr_b32 s5, s2, 6")
    a("v_lshrrev_b32 v2, 3, v1")
    a("v_bfe_u32 v4, v1, 4, 1")
    a("v_lshlrev_b32 v4, 5, v4")
    a("v_and_b32 v5, 7, v1"); a("v_lshlrev_b32 v5, 4, v5"); a("v_xor_b32 v5, v5, v4")
    a("v_lshl_add_u32 v6, v2, 7, v5")
    a("v_xor_b32 v7, 64, v6")
    a("v_lshlrev_b32 v8, 4, v1")
    a("s_lshl_b32 s6, s20, 12"); a("s_lshl_b32 s7, s3, 16"); a("s_add_u32 s6, s6, s7"); a("s_add_u32 s6, s6, %d" % WS_X1T)
    a("s_lshl_b32 s7, s20, 12"); a("s_add_u32 s7, s7, %d" % A_OFF)
    a("s_mul_i32 s8, s5, 6"); a("s_mul_i32 s9, s5, 5"); a("s_add_u32 s10, s9, 24"); a("s_add_u32 s11, s8, 20")
    a("s_cmp_eq_u32 s4, 0"); a("s_cselect_b32 s8, s8, s10"); a("s_cselect_b32 s9, s9, s11"); a("s_cselect_b32 s10, 2, 1")
    a("s_add_u32 s8, s8, 44")
    a("s_add_u32 s30, s8, s20")
    a("s_add_u32 s11, s30, 4"); a("s_add_u32 s12, s9, s20"); a("s_sub_u32 s12, s12, s10")
    a("s_cmp_lt_u32 s20, s10"); a("s_cselect_b32 s31, s11, s12"); a("s_cselect_b32 s33, 1, 0")
    a("s_add_u32 s32, s12, 4")
    a("s_cmp_eq_u32 s20, 3"); a("s_cselect_b32 s13, 0x7f000000, 0")
    a("v_add_u32 v9, s13, v8")
    for uu in range(3):
        a("s_lshl_b32 s%d, s%d, 14" % (34 + uu, 30 + uu)); a("s_add_u32 s%d, s%d, %d" % (34 + uu, 34 + uu, WS_WIN))
    a("v_lshrrev_b32 v10, 4, v1")
    a("v_mov_b32 v11, s30"); a("v_mov_b32 v12, s31"); a("v_cmp_eq_u32 vcc, 1, v10"); a("v_cndmask_b32 v11, v11, v12, vcc")
    a("v_mov_b32 v12, s32"); a("v_cmp_eq_u32 vcc, 2, v10"); a("v_cndmask_b32 v11, v11, v12, vcc")
    a("v_and_b32 v17, 15, v1"); a("v_lshlrev_b32 v11, 6, v11"); a("v_lshl_add_u32 v11, v17, 2, v11")
    a("s_waitcnt lgkmcnt(0)")
    make_srd(a, 24, "ws")
    a("s_lshl_b32 s46, s20, 9"); a("s_add_u32 m0, s46, %d" % CS_OFF); a("s_mov_b32 s15, %d" % WS_CS1)
    a("buffer_load_dword v11, s[24:27], s15 offen lds", tag="cs")
    a("s_add_u32 m0, s46, %d" % (CS_OFF + 256)); a("s_mov_b32 s15, %d" % WS_CS2)
    a("buffer_load_dword v11, s[24:27], s15 offen lds", tag="cs")
    a("v_lshlrev_b32 v11, 4, v10"); a("v_add_u32 v11, s46, v11")
    def aop(Q, i):
        pre = ["s_add_u32 m0, s7, %d" % (Q * 16384), "s_add_u32 s14, s6, %d" % (Q * 16384)] if i == 0 else []
        return (pre, "buffer_load_dwordx4 v%d, s[24:27], s14 offen offset:%d lds" % (6 + (i & 1), i * 1024), ("A", Q))
    def bop(uu, ks):
        pre = ["s_add_u32 s%d, s%d, %d" % (38 + uu, 34 + uu, ks * 1024)] if ks % 4 == 0 else []
        r = 64 * uu + 4 * ks
        return (pre, "buffer_load_dwordx4 a[%d:%d], v%d, s[24:27], s%d offen offset:%d" % (r, r + 3, 9 if uu == 2 else 8, 38 + uu, (ks % 4) * 1024), ("B", uu, ks))
    def emit(op):
        for p in op[0]: a(p)
        a(op[1], tag=op[2])
    bq = []
    for Q in range(4):
        bq += [aop(Q, i) for i in range(4)]
        for ks in range(4 * Q, 4 * Q + 4): bq += [bop(0, ks), bop(1, ks)]
    bq += [bop(2, ks) for ks in range(16)]
    for _ in range(NPRE): emit(bq.pop(0))
    a("v_bfe_u32 v13, v1, 2, 2"); a("v_lshl_add_u32 v14, v10, 3, v13"); a("v_lshlrev_b32 v14, 7, v14")
    a("v_and_b32 v15, 3, v1"); a("v_lshl_add_u32 v14, v15, 3, v14"); a("v_add_u32 v14, %d, v14" % A_OFF)
    a("v_bfe_u32 v15, v1, 3, 2")
    a("v_xor_b32 v15, s20, v15"); a("v_lshl_add_u32 v20, v15, 5, v14")
    for sp in range(1, 4): a("v_xor_b32 v%d, %d, v20" % (20 + sp, sp * 32))
    for i in range(48): a("v_mov_b32 v%d, 0" % (64 + i))
    a("v_mov_b32 v26, 0x3f803f80")
    for i in range(8): a("v_mov_b32 v%d, 0" % (156 + i))
    for i in range(4): a("v_mov_b32 v%d, 0x3f803f80" % (164 + i))
    a("v_lshlrev_b32 v18, 3, v17")
    a("v_mov_b32 v30, %s" % fl(K0)); a("v_mov_b32 v31, %s" % fl(K0)); a("s_mov_b32 s18, %s" % fl(K1))
    stamp(a, 1)
    def aload_ops(tag, ks):
        b = 32 + 16 * (ks & 1); ops = []
        for sp in range(4):
            ops.append(([], "ds_read_b64_tr_b16 v[%d:%d], v%d offset:%d" % (b + 4 * sp, b + 4 * sp + 1, 20 + sp, ks * 4096), (tag, ks)))
            ops.append(([], "ds_read_b64_tr_b16 v[%d:%d], v%d offset:%d" % (b + 4 * sp + 2, b + 4 * sp + 3, 20 + sp, ks * 4096 + 512), (tag, ks)))
        return ops
    def mfma_s(uu, sp, ks):
        b = 32 + 16 * (ks & 1); acc = 64 + 16 * uu + 4 * sp; r = 64 * uu + 4 * ks
        return "v_mfma_f32_16x16x32_bf16 v[%d:%d], a[%d:%d], v[%d:%d], v[%d:%d]" % (acc, acc + 3, r, r + 3, b + 4 * sp, b + 4 * sp + 3, acc, acc + 3)
    def need_issued(tag):
        while any(o[2] == tag for o in bq): emit(bq.pop(0))
    def qbar(Q):
        need_issued(("A", Q)); a.wait_vm(("A", Q)); a("s_barrier")
    qbar(0)
    stamp(a, 2)
    for o in aload_ops("a", 0): emit(o)
    for ks in range(16):
        if ks % 4 == 3 and ks + 1 < 16: qbar((ks + 1) // 4)
        ds = aload_ops("a", ks + 1) if ks + 1 < 16 else aload_ops("b", 0)
        need_issued(("B", 1, ks))
        a.wait_lg(("a", ks)); a.wait_vm(("B", 1, ks))
        b = 32 + 16 * (ks & 1)
        ms = [mfma_s(uu, sp, ks) for uu in range(2) for sp in range(4)]
        ms += ["v_mfma_f32_16x16x32_bf16 v[156:159], v[164:167], v[%d:%d], v[156:159]" % (b, b + 3),
               "v_mfma_f32_16x16x32_bf16 v[160:163], v[%d:%d], v[%d:%d], v[160:163]" % (b, b + 3, b, b + 3)]
        for n, m in enumerate(ms):
            a(m)
            if ds: emit(ds.pop(0))
            if n in VSL and bq: emit(bq.pop(0))
    for o in bq: emit(o)
    stamp(a, 3)
    a("v_and_b32 v27, 3, v1")
    a("v_cmp_eq_u32 vcc, 1, v27"); a("v_cndmask_b32 v25, v160, v161, vcc")
    a("v_cmp_eq_u32 vcc, 2, v27"); a("v_cndmask_b32 v25, v25, v162, vcc")
    a("v_cmp_eq_u32 vcc, 3, v27"); a("v_cndmask_b32 v25, v25, v163, vcc")
    a("v_mul_f32 v24, %s, v156" % fl(1 / 512.)); a("v_mul_f32 v25, %s, v25" % fl(1 / 512.))
    a("v_fma_f32 v25, -v24, v24, v25"); a("v_max_f32 v25, 0, v25"); bf16r(a, 25, 25)
    a("v_add_f32 v25, %s, v25" % fl(1e-5)); bf16r(a, 25, 25)
    a("v_sqrt_f32 v25, v25"); bf16r(a, 25, 25); a("v_rcp_f32 v28, v25")
    bf16r(a, 24, 24); a("v_mul_f32 v29, v24, v28")
    a("s_lshl_b32 s16, s20, 7"); a("v_add_u32 v19, s16, v18")
    a("v_cmp_eq_u32 vcc, v13, v10")
    a("s_and_saveexec_b64 s[44:45], vcc")
    a("ds_write_b64 v19, v[28:29] offset:%d" % ST_OFF)
    a("s_mov_b64 exec, s[44:45]")
    a("s_waitcnt lgkmcnt(0)"); a("s_barrier")
    for sp in range(4):
        if sp: a("v_xor_b32 v27, %d, v19" % (sp * 128))
        a("ds_read_b64 v[%d:%d], v%d offset:%d" % (136 + 2 * sp, 137 + 2 * sp, 27 if sp else 19, ST_OFF))
    a.wait_vm("cs")
    for uu in range(3):
        a("ds_read_b128 v[%d:%d], v11 offset:%d" % (112 + 8 * uu, 115 + 8 * uu, CS_OFF + uu * 64))
        a("ds_read_b128 v[%d:%d], v11 offset:%d" % (116 + 8 * uu, 119 + 8 * uu, CS_OFF + 256 + uu * 64))
    a("s_waitcnt lgkmcnt(0)")
    def epi(uu):
        for sp in range(4):
            acc = 64 + 16 * uu + 4 * sp; rs = 136 + 2 * sp
            ops = [[], []]
            for p in range(2):
                z = acc + 2 * p; c1 = 112 + 8 * uu + 2 * p; c2 = 116 + 8 * uu + 2 * p; t = 144 + 2 * p
                ops[p] = [
                 "v_pk_fma_f32 v[%d:%d], v[%d:%d], v[%d:%d], v[%d:%d] op_sel:[0,1,0] op_sel_hi:[1,1,1] neg_lo:[0,1,0] neg_hi:[0,1,0]" % (t, t + 1, c1, c1 + 1, rs, rs + 1, c2, c2 + 1),
                 "v_pk_fma_f32 v[%d:%d], v[%d:%d], v[%d:%d], v[%d:%d] op_sel_hi:[1,0,1]" % (z, z + 1, z, z + 1, rs, rs + 1, t, t + 1),
                 "v_pk_mul_f32 v[%d:%d], v[%d:%d], v[%d:%d]" % (t, t + 1, z, z + 1, z, z + 1),
                 "v_pk_fma_f32 v[%d:%d], v[%d:%d], s[18:19], v[30:31] op_sel_hi:[1,0,1]" % (t, t + 1, t, t + 1),
                 "v_pk_mul_f32 v[%d:%d], v[%d:%d], v[%d:%d]" % (t, t + 1, t, t + 1, z, z + 1),
                 "v_exp_f32 v%d, v%d" % (t, t), "v_exp_f32 v%d, v%d" % (t + 1, t + 1),
                 "v_pk_add_f32 v[%d:%d], v[%d:%d], 1.0 op_sel_hi:[1,0]" % (t, t + 1, t, t + 1),
                 "v_rcp_f32 v%d, v%d" % (t, t), "v_rcp_f32 v%d, v%d" % (t + 1, t + 1),
                 "v_pk_mul_f32 v[%d:%d], v[%d:%d], v[%d:%d]" % (z, z + 1, z, z + 1, t, t + 1)]
            for o0, o1 in zip(*ops): a(o0); a(o1)
            a("v_cvt_pk_bf16_f32 v%d, v%d, v%d" % (acc, acc, acc + 1)); a("v_cvt_pk_bf16_f32 v%d, v%d, v%d" % (acc + 1, acc + 2, acc + 3))
    def zstat(uu, first):
        for sp in range(4):
            acc = 64 + 16 * uu + 4 * sp
            for p in range(2):
                z1_ = "0" if (first and p == 0) else "v%d" % (148 + sp); z2_ = "0" if (first and p == 0) else "v%d" % (152 + sp)
                a("v_dot2_f32_bf16 v%d, v%d, v26, %s" % (148 + sp, acc + p, z1_))
                a("v_dot2_f32_bf16 v%d, v%d, v%d, %s" % (152 + sp, acc + p, acc + p, z2_))
    def z1store(uu):
        for sp in range(4):
            acc = 64 + 16 * uu + 4 * sp
            a("s_xor_b32 s16, s20, %d" % sp); a("s_mul_i32 s16, s16, %d" % (44 * 512)); a("s_add_u32 s16, s16, s17")
            a("buffer_store_dwordx2 v[%d:%d], v29, s[24:27], s16 offen%s" % (acc, acc + 1, SC))
    epi(0); zstat(0, True)
    a("s_cmp_eq_u32 s33, 0"); a("s_cbranch_scc1 G1_NOZ2B")
    epi(1); zstat(1, False)
    a.label("G1_NOZ2B")
    for i in range(4): a("v_permlane32_swap_b32 v%d, v%d" % (148 + i, 152 + i))
    for i in range(4): a("v_add_f32 v%d, v%d, v%d" % (148 + i, 148 + i, 152 + i))
    for i in range(2): a("v_permlane16_swap_b32 v%d, v%d" % (148 + i, 150 + i))
    for i in range(2): a("v_add_f32 v%d, v%d, v%d" % (148 + i, 148 + i, 150 + i))
    a("v_and_b32 v27, 1, v10"); a("v_lshlrev_b32 v27, 1, v27"); a("v_xor_b32 v27, s20, v27")
    a("v_lshl_add_u32 v28, v27, 7, v18")
    a("v_lshrrev_b32 v29, 1, v10"); a("v_lshl_add_u32 v28, v29, 2, v28")
    a("s_lshl_b32 s16, s20, 9"); a("v_add_u32 v28, s16, v28"); a("v_xor_b32 v29, 128, v28")
    a("ds_write_b32 v28, v148 offset:%d" % ZS_OFF); a("ds_write_b32 v29, v149 offset:%d" % ZS_OFF)
    a("v_lshlrev_b32 v29, 3, v1")
    a("s_lshl_b32 s21, s3, 12"); a("s_add_u32 s21, s21, %d" % WS_ZST)
    a("s_lshl_b32 s22, s4, 2"); a("s_add_u32 s22, s22, s5"); a("s_lshl_b32 s22, s22, 9"); a("s_add_u32 s22, s22, s21")
    a("s_waitcnt lgkmcnt(0)"); a("s_barrier")
    a("s_cmp_lg_u32 s20, 3"); a("s_cbranch_scc1 G1_PB")
    vm_save = list(a.vm)
    for w in range(4): a("ds_read_b64 v[%d:%d], v29 offset:%d" % (148 + 2 * w, 149 + 2 * w, ZS_OFF + w * 512))
    a("s_waitcnt lgkmcnt(0)")
    a("v_pk_add_f32 v[148:149], v[148:149], v[150:151]"); a("v_pk_add_f32 v[152:153], v[152:153], v[154:155]"); a("v_pk_add_f32 v[148:149], v[148:149], v[152:153]")
    a("v_max_f32 v149, 0, v149")
    a("buffer_store_dwordx2 v[148:149], v29, s[24:27], s22 offen sc0 sc1")
    epi(1)
    a("s_mul_i32 s17, s3, %d" % (4 * 44)); a("s_add_u32 s17, s17, s31"); a("s_lshl_b32 s17, s17, 9"); a("s_add_u32 s17, s17, %d" % WS_Z1)
    z1store(1)
    a("s_mov_b32 s23, 0")
    a.label("G1_POLL")
    for c in range(8): a("buffer_load_dwordx2 v[%d:%d], v29, s[24:27], s21 offen offset:%d sc0 sc1" % (32 + 2 * c, 33 + 2 * c, c * 512))
    a("s_add_u32 s23, s23, 1")
    a("s_waitcnt vmcnt(0)")
    a("v_max3_u32 v48, v33, v35, v37"); a("v_max3_u32 v49, v39, v41, v43"); a("v_max3_u32 v48, v48, v45, v47"); a("v_max_u32 v48, v48, v49")
    a("v_cmp_eq_u32 vcc, -1, v48")
    a("s_cmp_gt_u32 s23, 100000"); a("s_cbranch_scc1 G1_GOT")
    a("s_cbranch_vccnz G1_POLL")
    a.label("G1_GOT")
    for st in (4, 2, 1):
        for c in range(st): a("v_pk_add_f32 v[%d:%d], v[%d:%d], v[%d:%d]" % (32 + 2 * c, 33 + 2 * c, 32 + 2 * c, 33 + 2 * c, 32 + 2 * (c + st), 33 + 2 * (c + st)))
    a("v_mul_f32 v32, %s, v32" % fl(1 / 688.)); a("v_mul_f32 v33, %s, v33" % fl(1 / 688.))
    a("v_fma_f32 v33, -v32, v32, v33"); a("v_max_f32 v33, 0, v33"); bf16r(a, 33, 33)
    a("v_add_f32 v33, %s, v33" % fl(1e-5)); bf16r(a, 33, 33)
    a("v_sqrt_f32 v33, v33"); bf16r(a, 33, 33); a("v_rcp_f32 v34, v33")
    bf16r(a, 32, 32); a("v_mul_f32 v35, -v32, v34")
    a("ds_write_b64 v29, v[34:35] offset:%d" % ZF_OFF)
    a("s_branch G1_FIN")
    a.label("G1_PB")
    a.lg = []; a.vm = vm_save
    for ks in range(16):
        ds = aload_ops("b", ks + 1) if ks + 1 < 16 else []
        if ks: a.wait_lg(("b", ks))
        a.wait_vm(("B", 2, ks))
        for sp in range(4):
            a(mfma_s(2, sp, ks))
            for o in ds[2 * sp: 2 * sp + 2]: emit(o)
    stamp(a, 4)
    a("s_cmp_lg_u32 s33, 0"); a("s_cbranch_scc1 G1_Z1B")
    epi(1)
    a("s_mul_i32 s17, s3, %d" % (4 * 44)); a("s_add_u32 s17, s17, s31"); a("s_lshl_b32 s17, s17, 9"); a("s_add_u32 s17, s17, %d" % WS_Z1)
    z1store(1)
    a.label("G1_Z1B")
    epi(2)
    a("s_mul_i32 s17, s3, %d" % (4 * 44)); a("s_add_u32 s17, s17, s32"); a("s_lshl_b32 s17, s17, 9"); a("s_add_u32 s17, s17, %d" % WS_Z1)
    z1store(2)
    a.label("G1_FIN")
    a("v_lshrrev_b32 v27, 2, v17"); a("v_lshlrev_b32 v27, 3, v27"); a("v_and_b32 v28, 3, v17"); a("v_add_u32 v27, v27, v28")
    a("v_lshlrev_b32 v27, 5, v27"); a("v_lshl_add_u32 v27, v10, 3, v27")
    a("s_lshl_b32 s17, s20, 12"); a("s_add_u32 s17, s17, %d" % TR_OFF)
    a("s_lshr_b32 s16, s20, 1"); a("s_lshl_b32 s16, s16, 10"); a("s_and_b32 s23, s20, 1"); a("s_lshl_b32 s23, s23, 7"); a("s_add_u32 s16, s16, s23")
    a("v_add_u32 v27, s16, v27")
    for sp in range(4):
        a("v_xor_b32 v%d, %d, v27" % (20 + sp, (sp >> 1) * 1024 + (sp & 1) * 128)); a("v_add_u32 v%d, s17, v%d" % (20 + sp, 20 + sp))
    a("v_lshl_add_u32 v27, v10, 3, v13"); a("v_lshlrev_b32 v27, 5, v27"); a("v_and_b32 v28, 3, v1"); a("v_lshl_add_u32 v27, v28, 3, v27"); a("v_add_u32 v27, s17, v27")
    a("s_waitcnt lgkmcnt(0)"); a("s_barrier")
    stamp(a, 5)
    for sp in range(4):
        if sp: a("v_xor_b32 v28, %d, v19" % (sp * 128))
        a("ds_read_b64 v[%d:%d], v%d offset:%d" % (136 + 2 * sp, 137 + 2 * sp, 28 if sp else 19, ZF_OFF))
    a("s_waitcnt lgkmcnt(0)")
    def znorm(uu):
        for sp in range(4):
            acc = 64 + 16 * uu + 4 * sp; rs = 136 + 2 * sp
            a("v_lshlrev_b32 v144, 16, v%d" % acc); a("v_and_b32 v145, 0xffff0000, v%d" % acc)
            a("v_lshlrev_b32 v146, 16, v%d" % (acc + 1)); a("v_and_b32 v147, 0xffff0000, v%d" % (acc + 1))
            a("v_pk_fma_f32 v[144:145], v[144:145], v[%d:%d], v[%d:%d] op_sel:[0,0,1] op_sel_hi:[1,0,1]" % (rs, rs + 1, rs, rs + 1))
            a("v_pk_fma_f32 v[146:147], v[146:147], v[%d:%d], v[%d:%d] op_sel:[0,0,1] op_sel_hi:[1,0,1]" % (rs, rs + 1, rs, rs + 1))
            a("v_cvt_pk_bf16_f32 v%d, v144, v145" % acc); a("v_cvt_pk_bf16_f32 v%d, v146, v147" % (acc + 1))
            a("ds_write_b64 v%d, v[%d:%d] offset:%d" % (20 + sp, acc, acc + 1, uu * 2048))
        a("s_waitcnt lgkmcnt(0)")
        for T in range(2):
            b = 32 + 8 * uu + 4 * T
            a("ds_read_b64_tr_b16 v[%d:%d], v27 offset:%d" % (b, b + 1, uu * 2048 + T * 1024))
            a("ds_read_b64_tr_b16 v[%d:%d], v27 offset:%d" % (b + 2, b + 3, uu * 2048 + T * 1024 + 128))
        a("s_mul_i32 s16, s3, 88"); a("s_add_u32 s16, s16, s%d" % (30 + uu)); a("s_lshl_b32 s16, s16, 10")
        a("s_add_u32 s16, s16, %d" % (WS_Z2 - 44 * 1024)); a("s_add_u32 s23, s16, %d" % (44 * 1024))
        a("s_waitcnt lgkmcnt(0)")
        for T in range(2):
            b = 32 + 8 * uu + 4 * T
            a("buffer_store_dwordx4 v[%d:%d], v8, s[24:27], s%d offen%s" % (b, b + 3, 23 if T else 16, SC))
    znorm(0)
    a("s_cmp_eq_u32 s33, 0"); a("s_cbranch_scc1 G1_END")
    znorm(1)
    a.label("G1_END")
    endp(a, 2)
    return a
```

```python
from gen_common import *
GRID = 256
RING_OFF = 0
NS = 4
LDS = RING_OFF + 4 * NS * 8192
D = 6
ACC = 128
SC = " sc1"

def gen():
    a = Asm()
    stamp_init(a)
    a("v_and_b32 v1, 63, v0"); a("v_lshrrev_b32 v2, 6, v0"); a("v_readfirstlane_b32 s20, v2")
    a("s_cmp_ge_u32 s2, %d" % GRID); a("s_cbranch_scc1 G2_END")
    load_ptr(a, 24, "ws"); load_ptr(a, 28, "wsp"); load_ptr(a, 32, "bsp")
    a("s_bfe_u32 s3, s2, 0x20001"); a("s_lshl_b32 s3, s3, 3"); a("s_bfe_u32 s4, s2, 0x30003"); a("s_add_u32 s3, s3, s4")
    a("s_lshr_b32 s4, s2, 6")
    a("s_and_b32 s5, s2, 1"); a("s_mul_i32 s5, s5, 11"); a("s_mul_i32 s9, s4, 3"); a("s_add_u32 s5, s5, s9")
    a("s_movk_i32 s9, 4096"); a("s_cmp_ge_u32 s4, 3"); a("s_cselect_b32 s9, 0x7f000000, s9")
    a("v_lshlrev_b32 v8, 4, v1"); a("v_add_u32 v9, s9, v8")
    a("s_mul_i32 s7, s20, %d" % (16 * 44)); a("s_lshl_b32 s8, s5, 1"); a("s_add_u32 s7, s7, s8"); a("s_lshl_b32 s7, s7, 10"); a("s_add_u32 s7, s7, %d" % WS_Z2)
    a("v_lshrrev_b32 v2, 3, v1"); a("v_lshrrev_b32 v3, 2, v2"); a("v_lshlrev_b32 v3, 3, v3"); a("v_and_b32 v4, 3, v2"); a("v_add_u32 v3, v3, v4")
    a("v_lshlrev_b32 v3, 12, v3")
    a("v_and_b32 v4, 7, v1"); a("v_lshrrev_b32 v5, 1, v2"); a("v_xor_b32 v4, v4, v5")
    a("v_lshl_add_u32 v6, v4, 4, v3")
    a("v_xor_b32 v7, 64, v6"); a("v_add_u32 v7, 0x10000, v7")
    for i in range(8):
        tt = i >> 1
        a("v_add_u32 v%d, %d, v%d" % (64 + i, (32 * (tt >> 1) + 4 * (tt & 1)) * 4096 - (i & 3) * 1024 + 4096, 6 + (i & 1)))
    a("s_lshl_b32 s6, s3, 18"); a("s_lshl_b32 s8, s20, 10"); a("s_add_u32 s6, s6, s8")
    a("s_mul_i32 s19, s20, %d" % (NS * 8192))
    a("s_waitcnt lgkmcnt(0)")
    make_srd(a, 24, "ws"); make_srd(a, 28, "wsp"); make_srd(a, 32, "bsp")
    a("s_sub_u32 s28, s28, 4096"); a("s_subb_u32 s29, s29, 0"); a("s_add_u32 s30, s30, 4096")
    def wdma_ops(c):
        ops = []
        for i in range(8):
            pre = []
            if i == 0: pre.append("s_add_u32 s13, s6, %d" % (c * 128))
            if i % 4 == 0: pre.append("s_add_u32 m0, s19, %d" % ((c % NS) * 8192 + i * 1024))
            ops.append((pre, "buffer_load_dwordx4 v%d, s[28:31], s13 offen offset:%d lds" % (64 + i, (i & 3) * 1024), ("w", c)))
        return ops
    def zload_ops(ks):
        st = ks % D; ops = []
        for uu in range(6):
            pre = ["s_add_u32 s12, s7, %d" % (ks * 44 * 1024)] if uu == 0 else []
            ops.append((pre, "buffer_load_dwordx4 a[%d:%d], v%d, s[24:27], s12 offen offset:%d" % (24 * st + 4 * uu, 24 * st + 4 * uu + 3, 9 if uu >= 4 else 8, (uu & 3) * 1024), ("z", ks)))
        return ops
    def emit(op):
        for p in op[0]: a(p)
        a(op[1], tag=op[2])
    for o in zload_ops(0) + wdma_ops(0) + zload_ops(1) + zload_ops(2) + wdma_ops(1): emit(o)
    a("v_and_b32 v17, 15, v1"); a("v_lshrrev_b32 v10, 4, v1")
    a("v_lshrrev_b32 v2, 1, v17"); a("v_xor_b32 v2, v2, v10"); a("v_lshlrev_b32 v2, 4, v2"); a("v_lshl_add_u32 v2, v17, 7, v2")
    a("s_lshl_b32 s16, s20, 11"); a("v_add_u32 v2, s16, v2")
    for tp in range(4):
        a("v_xor_b32 v%d, %d, v2" % (20 + tp, tp * 2048)); a("v_add_u32 v%d, s19, v%d" % (20 + tp, 20 + tp)); a("v_xor_b32 v%d, 64, v%d" % (24 + tp, 20 + tp))
    a("v_lshrrev_b32 v2, 2, v17"); a("v_lshlrev_b32 v2, 3, v2"); a("v_and_b32 v3, 3, v17"); a("v_add_u32 v2, v2, v3")
    a("s_lshr_b32 s17, s20, 1"); a("s_lshl_b32 s17, s17, 5"); a("s_and_b32 s16, s20, 1"); a("s_lshl_b32 s16, s16, 2"); a("s_add_u32 s16, s16, s17")
    a("v_add_u32 v3, s16, v2"); a("v_lshlrev_b32 v11, 1, v3")
    for i in range(96): a("v_mov_b32 v%d, 0" % (ACC + i))
    def tload(ks):
        b = ks & 1; c = ks >> 1
        assert not any(o[1][2] == ("w", c) for o in q), ("w", c)
        a.wait_vm(("w", c))
        for tp in range(4):
            a("ds_read_b128 v[%d:%d], v%d offset:%d" % (32 + 16 * b + 4 * tp, 35 + 16 * b + 4 * tp, (24 if ks & 1 else 20) + tp, (c % NS) * 8192), tag=ks)
    q = []
    for ks in range(3, 16):
        q += [(max(0, ks - D + 1), o) for o in zload_ops(ks)]
        if ks % 2 == 1 and (ks + 1) // 2 < 8:
            c = (ks + 1) // 2
            q += [(max(0, 2 * (c - NS) + 2), o) for o in wdma_ops(c)]
    stamp(a, 1)
    tload(0)
    stamp(a, 3)
    for ks in range(16):
        st = ks % D; b = ks & 1
        if ks + 1 < 16: tload(ks + 1)
        a.wait_lg(ks)
        assert not any(o[1][2] == ("z", ks) for o in q), ("z", ks)
        a.wait_vm(("z", ks))
        nm = 0
        for tp in range(4):
            w = 32 + 16 * b + 4 * tp
            for uu in range(6):
                acc = ACC + 24 * tp + 4 * uu
                a("v_mfma_f32_16x16x32_bf16 v[%d:%d], a[%d:%d], v[%d:%d], v[%d:%d]" % (acc, acc + 3, 24 * st + 4 * uu, 24 * st + 4 * uu + 3, w, w + 3, acc, acc + 3))
                nm += 1
                if q and q[0][0] <= ks and nm % 2 == 0: emit(q.pop(0)[1])
        if ks == 7: stamp(a, 4)
        if ks == 12:
            assert not q
            a("s_lshl_b32 s16, s3, 2"); a("s_add_u32 s16, s16, s20")
            a("s_mul_i32 s17, s16, 44"); a("s_lshl_b32 s18, s5, 1"); a("s_add_u32 s17, s17, s18"); a("s_lshl_b32 s17, s17, 9"); a("s_add_u32 s17, s17, %d" % WS_Z1)
            a("v_lshlrev_b32 v14, 3, v1")
            for uu in range(6):
                a("buffer_load_dwordx2 v[%d:%d], v14, s[24:27], s17 offen offset:%d" % (112 + 2 * uu, 113 + 2 * uu, uu * 512), tag="z1")
            a("s_lshl_b32 s18, s3, 7")
            a("buffer_load_ushort v16, v11, s[32:35], s18 offen", tag="z1")
    stamp(a, 5)
    a("v_add_u32 v14, s19, v8")
    for tp in range(1, 4):
        for uu in range(6):
            acc = ACC + 24 * tp + 4 * uu
            a("ds_write_b128 v14, v[%d:%d] offset:%d" % (acc, acc + 3, (tp - 1) * 6144 + uu * 1024))
    for tp in range(1, 4):
        a("s_xor_b32 s21, s20, %d" % tp); a("s_mul_i32 s22, s21, %d" % (NS * 8192)); a("s_add_u32 s22, s22, %d" % (RING_OFF + (tp - 1) * 6144))
        a("v_add_u32 v%d, s22, v8" % (19 + tp))
    a.wait_vm("z1")
    a("v_lshlrev_b32 v16, 16, v16")
    for i in range(0, 24, 2): a("v_pk_add_f32 v[%d:%d], v[%d:%d], v[16:17] op_sel_hi:[1,0]" % (ACC + i, ACC + i + 1, ACC + i, ACC + i + 1))
    a("s_waitcnt lgkmcnt(0)"); a("s_barrier")
    for sidx in range(3):
        for uu in range(6):
            r = 32 + 24 * sidx + 4 * uu
            a("ds_read_b128 v[%d:%d], v%d offset:%d" % (r, r + 3, 20 + sidx, uu * 1024), tag=("r", sidx))
    for i in range(12):
        a("v_lshlrev_b32 v%d, 16, v%d" % (ACC + 24 + 2 * i, 112 + i)); a("v_and_b32 v%d, 0xffff0000, v%d" % (ACC + 25 + 2 * i, 112 + i))
    for sidx in range(3):
        a.wait_lg(("r", sidx))
        for i in range(0, 24, 2):
            r = 32 + 24 * sidx + i
            a("v_pk_add_f32 v[%d:%d], v[%d:%d], v[%d:%d]" % (ACC + i, ACC + i + 1, ACC + i, ACC + i + 1, r, r + 1))
    for i in range(12):
        g = ACC + 2 * i
        a("v_pk_mul_f32 v[%d:%d], v[%d:%d], v[%d:%d]" % (g, g + 1, g, g + 1, g + 24, g + 25))
        a("v_cvt_pk_bf16_f32 v%d, v%d, v%d" % (32 + i, g, g + 1))
    a("s_mul_i32 s17, s16, 22"); a("s_add_u32 s17, s17, s5"); a("s_lshl_b32 s17, s17, 10"); a("s_add_u32 s17, s17, %d" % WS_V)
    for G in range(3):
        if G == 2: a("s_cmp_ge_u32 s4, 3"); a("s_cbranch_scc1 G2_END")
        a("buffer_store_dwordx4 v[%d:%d], v8, s[24:27], s17 offen offset:%d%s" % (32 + 4 * G, 35 + 4 * G, G * 1024, SC))
    a.label("G2_END")
    endp(a, 3)
    return a
```

```python
from gen_common import *
GRID = 256
LDS = 4 * 22 * 1024
def gen():
    a = Asm()
    stamp_init(a)
    a("v_and_b32 v1, 63, v0"); a("v_lshrrev_b32 v2, 6, v0"); a("v_readfirstlane_b32 s20, v2")
    a("s_cmp_ge_u32 s2, %d" % GRID); a("s_cbranch_scc1 G3_END")
    load_ptr(a, 24, "ws"); load_ptr(a, 28, "out")
    a("s_and_b32 s3, s2, 7"); a("s_lshl_b32 s3, s3, 2"); a("s_bfe_u32 s4, s2, 0x20003"); a("s_add_u32 s3, s3, s4")
    a("s_lshr_b32 s4, s2, 5")
    a("v_lshlrev_b32 v8, 4, v1")
    a("v_and_b32 v17, 15, v1"); a("v_lshrrev_b32 v10, 4, v1")
    a("s_lshl_b32 s5, s4, 2"); a("s_add_u32 s5, s5, s20"); a("s_mul_i32 s5, s5, %d" % (24 * 1024)); a("s_add_u32 s5, s5, %d" % WS_WOUT)
    a("s_mul_i32 s6, s20, %d" % (22 * 1024))
    a("s_lshl_b32 s16, s3, 2"); a("s_add_u32 s16, s16, s20")
    a("s_mul_i32 s7, s16, %d" % (22 * 1024)); a("s_add_u32 s7, s7, %d" % WS_V)
    a("s_waitcnt lgkmcnt(0)")
    make_srd(a, 24, "ws"); make_srd(a, 28, "out")
    for ks in range(22):
        if ks % 4 == 0:
            a("s_add_u32 m0, s6, %d" % (ks * 1024)); a("s_add_u32 s10, s5, %d" % (ks * 1024))
        a("buffer_load_dwordx4 v8, s[24:27], s10 offen offset:%d lds" % ((ks % 4) * 1024), tag="W")
    for ks in range(22):
        if ks % 4 == 0: a("s_add_u32 s11, s7, %d" % (ks * 1024))
        a("buffer_load_dwordx4 v[%d:%d], v8, s[24:27], s11 offen offset:%d" % (64 + 4 * ks, 67 + 4 * ks, (ks % 4) * 1024), tag=("v", ks))
    a("v_lshlrev_b32 v11, 10, v10"); a("v_lshl_add_u32 v11, v17, 1, v11")
    a("s_lshl_b32 s12, s4, 13"); a("s_lshl_b32 s13, s3, 16"); a("s_add_u32 s12, s12, s13"); a("s_lshl_b32 s13, s20, 5"); a("s_add_u32 s12, s12, s13"); a("s_add_u32 s12, s12, %d" % WS_X1T)
    a("s_add_u32 s13, s12, 4096")
    for G in range(2):
        for e in range(8):
            a("buffer_load_ushort v%d, v11, s[24:27], s%d offen offset:%d" % (160 + 8 * G + e, 12 + G, e * 128), tag="x")
    a("v_lshlrev_b32 v12, 5, v10"); a("s_lshl_b32 s13, s4, 8"); a("s_add_u32 s13, s13, %d" % (WS_MOD + 5 * 2048))
    for G in range(2):
        for hh in range(2):
            a("buffer_load_dwordx4 v[%d:%d], v12, s[24:27], s13 offen offset:%d" % (176 + 8 * G + 4 * hh, 179 + 8 * G + 4 * hh, G * 128 + hh * 16), tag="x")
    for i in range(16): a("v_mov_b32 v%d, 0" % (16 + i + 4))
    a("v_add_u32 v9, %d, v8" % (44 * 1024))
    stamp(a, 1)
    a.wait_vm("W")
    stamp(a, 2)
    a("s_barrier")
    stamp(a, 3)
    def wload(ks):
        b = 192 + 16 * (ks % 3)
        for uu in range(4):
            a("ds_read_b128 v[%d:%d], v%d offset:%d" % (b + 4 * uu, b + 4 * uu + 3, 9 if uu >= 2 else 8, (uu & 1) * 22 * 1024 + ks * 1024), tag=ks)
    wload(0); wload(1)
    for ks in range(22):
        if ks + 2 < 22: wload(ks + 2)
        a.wait_lg(ks); a.wait_vm(("v", ks))
        b = 192 + 16 * (ks % 3)
        for uu in range(4):
            acc = 20 + 4 * uu
            a("v_mfma_f32_16x16x32_bf16 v[%d:%d], v[%d:%d], v[%d:%d], v[%d:%d]" % (acc, acc + 3, b + 4 * uu, b + 4 * uu + 3, 64 + 4 * ks, 67 + 4 * ks, acc, acc + 3))
    stamp(a, 4)
    a("v_lshrrev_b32 v2, 2, v17"); a("v_lshlrev_b32 v2, 3, v2"); a("v_and_b32 v3, 3, v17"); a("v_add_u32 v2, v2, v3")
    a("v_lshlrev_b32 v2, 10, v2"); a("v_lshl_add_u32 v2, v10, 4, v2")
    a("s_lshr_b32 s13, s20, 1"); a("s_lshl_b32 s13, s13, 5"); a("s_and_b32 s14, s20, 1"); a("s_lshl_b32 s14, s14, 2"); a("s_add_u32 s13, s13, s14")
    a("s_lshl_b32 s14, s3, 6"); a("s_add_u32 s13, s13, s14"); a("s_lshl_b32 s13, s13, 10"); a("s_lshl_b32 s14, s4, 7"); a("s_add_u32 s13, s13, s14")
    a.wait_vm("x")
    from gen_f1 import rnd_pk
    for G in range(2):
        for p in range(4):
            o = 20 + 8 * G + 2 * p; gbr = 176 + 8 * G + 2 * p; xr = 160 + 8 * G + 2 * p
            rnd_pk(a, o)
            a("v_pk_mul_f32 v[%d:%d], v[%d:%d], v[%d:%d]" % (o, o + 1, o, o + 1, gbr, gbr + 1)); rnd_pk(a, o)
            a("v_lshlrev_b32 v%d, 16, v%d" % (xr, xr)); a("v_lshlrev_b32 v%d, 16, v%d" % (xr + 1, xr + 1))
            a("v_pk_add_f32 v[%d:%d], v[%d:%d], v[%d:%d]" % (o, o + 1, o, o + 1, xr, xr + 1))
            a("v_cvt_pk_bf16_f32 v%d, v%d, v%d" % (40 + 4 * G + p, o, o + 1))
        a("buffer_store_dwordx4 v[%d:%d], v2, s[28:31], s13 offen offset:%d" % (40 + 4 * G, 43 + 4 * G, G * 64))
    a.label("G3_END")
    endp(a, 3)
    return a
```

```python
from gen_common import *
import math
NK, NX, NM, NP = 256, 128, 192, 176
O_X, O_M, O_P = NK, NK + NX, NK + NX + NM
PREP_GRID = NK + NX + NM + NP
TP = 272
BUF = 17 * TP
XP = 1056
PREP_LDS = max(4 * 2 * BUF, 32 * XP)
SC = " sc1"

def role_kgen(a):
    for i, n in enumerate(("logA", "Aim", "Cr", "Ci", "logdt", "ws")):
        load_ptr(a, 24 + 4 * i, n)
    a("s_lshr_b32 s21, s20, 1")
    a("s_lshl_b32 s22, s2, 1"); a("s_add_u32 s22, s22, s21")
    a("s_and_b32 s23, s20, 1")
    a("s_lshl_b32 s4, s22, 8"); a("s_lshl_b32 s5, s23, 7")
    a("v_lshlrev_b32 v2, 1, v1"); a("v_add_u32 v2, s5, v2"); a("v_xor_b32 v3, 128, v2")
    a("s_lshl_b32 s6, s22, 1"); a("v_mov_b32 v4, s6")
    a("s_waitcnt lgkmcnt(0)")
    for i, n in enumerate(("logA", "Aim", "Cr", "Ci", "logdt", "ws")):
        make_srd(a, 24 + 4 * i, n)
    a("buffer_load_ushort v10, v4, s[40:43], 0 offen")
    a("buffer_load_ushort v11, v2, s[24:27], s4 offen")
    a("buffer_load_ushort v12, v2, s[28:31], s4 offen")
    a("buffer_load_ushort v13, v2, s[32:35], s4 offen")
    a("buffer_load_ushort v14, v2, s[36:39], s4 offen")
    a("buffer_load_ushort v15, v3, s[32:35], s4 offen")
    a("buffer_load_ushort v16, v3, s[36:39], s4 offen")
    a("s_mul_i32 s7, s20, %d" % (2 * BUF))
    a("v_lshl_add_u32 v5, v1, 2, s7")
    a("v_and_b32 v6, 15, v1"); a("v_lshrrev_b32 v7, 4, v1")
    a("v_lshl_add_u32 v9, v7, 4, s7")
    a("v_mul_u32_u24 v8, %d, v6" % TP); a("v_add_u32 v8, v8, v9")
    for i in range(16): a("v_mov_b32 v%d, 0" % (96 + i))
    a("s_lshl_b32 s13, s22, 12"); a("s_lshl_b32 s14, s23, 11"); a("s_add_u32 s13, s13, s14"); a("s_add_u32 s13, s13, %d" % WS_KK)
    a("v_lshlrev_b32 v18, 3, v1")
    a("s_waitcnt vmcnt(4)")
    stamp(a, 1)
    for r in (10, 11, 12): a("v_lshlrev_b32 v%d, 16, v%d" % (r, r))
    exp_acc(a, 10, 10, 20, 21); bf16r(a, 10, 10)
    exp_acc(a, 11, 11, 20, 21); bf16r(a, 11, 11)
    a("v_mul_f32 v11, v11, v10"); a("v_mul_f32 v12, v12, v10")
    a("v_mul_f32 v11, %s, v11" % fl(-LOG2E)); a("v_mul_f32 v12, %s, v12" % fl(1.0 / (2 * math.pi)))
    def direct(dst, p):
        t0, t1 = 20, 21
        if p == 1:
            a("v_exp_f32 v%d, v11" % t0); a("v_fract_f32 v%d, v12" % t1)
        else:
            a("v_mul_f32 v%d, %s, v11" % (t0, fl(float(p)))); a("v_mul_f32 v%d, %s, v12" % (t1, fl(float(p))))
            a("v_exp_f32 v%d, v%d" % (t0, t0)); a("v_fract_f32 v%d, v%d" % (t1, t1))
        a("v_cos_f32 v%d, v%d" % (dst, t1)); a("v_sin_f32 v%d, v%d" % (dst + 1, t1))
        a("v_mul_f32 v%d, v%d, v%d" % (dst, dst, t0)); a("v_mul_f32 v%d, v%d, v%d" % (dst + 1, dst + 1, t0))
    W1, W2, W3, W4, W64, W1K = 30, 32, 34, 36, 38, 40
    direct(W1, 1); direct(W4, 4); direct(W64, 64); direct(W1K, 1024)
    cmul(a, W2, W1, W1); cmul(a, W3, W2, W1)
    a("s_waitcnt vmcnt(0)")
    a("v_and_b32 v17, 0x7fff, v13"); a("v_and_b32 v19, 0x7fff, v14"); a("v_and_b32 v15, 0x7fff, v15"); a("v_and_b32 v16, 0x7fff, v16")
    a("v_max3_u32 v17, v17, v19, v15"); a("v_max_u32 v17, v17, v16")
    for sh in (1, 2, 4, 8):
        a("v_max_u32_dpp v17, v17, v17 row_shr:%d row_mask:0xf bank_mask:0xf" % sh)
    a("v_max_u32_dpp v17, v17, v17 row_bcast:15 row_mask:0xa bank_mask:0xf")
    a("v_max_u32_dpp v17, v17, v17 row_bcast:31 row_mask:0xc bank_mask:0xf")
    a("v_readlane_b32 s8, v17, 63")
    a("s_lshl_b32 s8, s8, 16"); a("s_and_b32 s8, s8, 0x7f800000"); a("s_min_u32 s8, s8, 0x7e800000")
    a("s_sub_u32 s9, 0x7f000000, s8")
    P0, P1, T0 = 42, 44, 46
    a("v_lshlrev_b32 v13, 16, v13"); a("v_lshlrev_b32 v14, 16, v14")
    a("v_mul_f32 v%d, s9, v13" % P0); a("v_mul_f32 v%d, s9, v14" % (P0 + 1))
    a("v_mul_f32 v19, s8, v10"); a("v_add_f32 v19, v19, v19")
    a("s_lshl_b32 s6, s22, 2"); a("s_add_u32 s6, s6, %d" % WS_KSC); a("v_mov_b32 v4, 0")
    a("s_mov_b64 exec, 1")
    a("buffer_store_dword v19, v4, s[44:47], s6 offen" + SC)
    a("s_mov_b64 exec, -1")
    tcnt = [0]
    def put(src, buf, row, neg=False):
        t = 50 + (tcnt[0] % 8); tcnt[0] += 1
        a("v_cvt_pk_f16_f32 v%d, v%d, %sv%d" % (t, src, "-" if neg else "", src + 1))
        a("ds_write_b32 v5, v%d offset:%d" % (t, buf * BUF + row * TP))
    def frags(dst, buf, addr=8, rowoff=0):
        for ks in range(4): a("ds_read_b128 v[%d:%d], v%d offset:%d" % (dst + 4 * ks, dst + 4 * ks + 3, addr, buf * BUF + rowoff * TP + ks * 64))
    def mm(tile, src):
        a("s_waitcnt lgkmcnt(0)")
        for ks in range(4):
            a("v_mfma_f32_16x16x32_f16 v[%d:%d], v[%d:%d], v[%d:%d], v[%d:%d]" % (96 + 4 * tile, 99 + 4 * tile, src + 4 * ks, src + 4 * ks + 3, 60 + 4 * ks, 63 + 4 * ks, 96 + 4 * tile, 99 + 4 * tile))
    cur, nxt = P0, P1
    for j in range(16):
        put(cur, 0, j, neg=True)
        if j < 15: cmul(a, nxt, cur, W4); cur, nxt = nxt, cur
    frags(60, 0)
    a("v_mov_b32 v%d, 1.0" % P0); a("v_mov_b32 v%d, 0" % (P0 + 1))
    cur, nxt = P0, P1
    for i1 in range(4):
        put(cur, 1, 4 * i1)
        for r, W in enumerate((W1, W2, W3)):
            if i1 == 0: put(W, 1, 1 + r)
            else: cmul(a, T0, cur, W); put(T0, 1, 4 * i1 + 1 + r)
        if i1 == 0: cur = W64
        else:
            d = P0 if cur != P0 else P1
            cmul(a, d, cur, W64); cur = d
    frags(76, 1)
    for k in range(12):
        if k < 4:
            put(cur, 0, 2 * k); cmul(a, T0, cur, W2); put(T0, 0, 2 * k + 1)
        else: put(cur, 0, 8 + k - 4)
        if k == 1: mm(0, 76)
        if k < 11:
            d = P0 if cur != P0 else P1
            cmul(a, d, cur, W64); cur = d
    frags(76, 0)
    cur = W1K
    for k in range(17):
        put(cur, 1, k)
        if k == 2: mm(1, 76)
        if k < 16:
            d = P0 if cur != P0 else P1
            cmul(a, d, cur, W64); cur = d
    frags(76, 1); frags(112, 1, addr=9, rowoff=16)
    stamp(a, 2)
    for t in range(2):
        a("v_cvt_pk_f16_f32 v%d, v%d, v%d" % (50 + 2 * t, 96 + 4 * t, 97 + 4 * t)); a("v_cvt_pk_f16_f32 v%d, v%d, v%d" % (51 + 2 * t, 98 + 4 * t, 99 + 4 * t))
        a("buffer_store_dwordx2 v[%d:%d], v18, s[44:47], s13 offen offset:%d%s" % (50 + 2 * t, 51 + 2 * t, t * 512, SC))
    mm(2, 76); mm(3, 112)
    for t in range(2, 4):
        a("v_cvt_pk_f16_f32 v%d, v%d, v%d" % (50 + 2 * t, 96 + 4 * t, 97 + 4 * t)); a("v_cvt_pk_f16_f32 v%d, v%d, v%d" % (51 + 2 * t, 98 + 4 * t, 99 + 4 * t))
        a("buffer_store_dwordx2 v[%d:%d], v18, s[44:47], s13 offen offset:%d%s" % (50 + 2 * t, 51 + 2 * t, t * 512, SC))
    endp(a, 0)

def reduce4(a, r):
    a("v_permlane32_swap_b32 v%d, v%d" % (r[0], r[2])); a("v_permlane32_swap_b32 v%d, v%d" % (r[1], r[3]))
    a("v_add_f32 v%d, v%d, v%d" % (r[0], r[0], r[2])); a("v_add_f32 v%d, v%d, v%d" % (r[1], r[1], r[3]))
    a("v_permlane16_swap_b32 v%d, v%d" % (r[0], r[1])); a("v_add_f32 v%d, v%d, v%d" % (r[0], r[0], r[1]))
    for sh in (1, 2, 4, 8): a("v_add_f32_dpp v%d, v%d, v%d row_shr:%d row_mask:0xf bank_mask:0xf" % (r[0], r[0], r[0], sh))

def role_x(a):
    a.reset_counts()
    for i, n in enumerate(("u", "ws")): load_ptr(a, 24 + 4 * i, n)
    a("s_sub_u32 s3, s2, %d" % O_X)
    a("s_lshl_b32 s4, s3, 2"); a("s_add_u32 s4, s4, s20"); a("s_lshl_b32 s4, s4, 12")
    a("v_lshlrev_b32 v2, 4, v1")
    a("s_waitcnt lgkmcnt(0)")
    for i, n in enumerate(("u", "ws")): make_srd(a, 24 + 4 * i, n)
    for r in range(4):
        a("buffer_load_dwordx4 v[%d:%d], v2, s[24:27], s4 offen offset:%d" % (32 + 4 * r, 35 + 4 * r, r * 1024), tag=r)
    a("s_mul_i32 s5, s20, %d" % (4 * XP)); a("v_add_u32 v3, s5, v2")
    a("v_mov_b32 v4, 0x3f803f80")
    a("v_lshrrev_b32 v5, 4, v1"); a("v_bfe_u32 v6, v1, 2, 2"); a("v_and_b32 v7, 3, v1")
    a("v_and_b32 v8, 1, v5"); a("v_lshl_add_u32 v8, v8, 3, v6"); a("v_mul_u32_u24 v8, %d, v8" % XP)
    a("v_lshl_add_u32 v8, v7, 3, v8"); a("v_lshrrev_b32 v9, 1, v5"); a("v_lshl_add_u32 v8, v9, 5, v8")
    a("s_lshl_b32 s6, s20, 8"); a("v_add_u32 v26, s6, v8")
    a("v_and_b32 v10, 15, v1"); a("v_lshl_add_u32 v10, v9, 4, v10")
    a("v_lshrrev_b32 v11, 1, v10"); a("v_lshlrev_b32 v11, 13, v11"); a("v_and_b32 v10, 1, v10"); a("v_lshl_add_u32 v11, v10, 4, v11")
    a("v_and_b32 v10, 1, v5"); a("v_lshl_add_u32 v27, v10, 5, v11")
    a("s_lshl_b32 s7, s20, 19"); a("s_lshl_b32 s8, s3, 6"); a("s_add_u32 s7, s7, s8")
    for r in range(4):
        a.wait_vm(r)
        a("ds_write_b128 v3, v[%d:%d] offset:%d" % (32 + 4 * r, 35 + 4 * r, r * XP))
        a("v_dot2_f32_bf16 v%d, v%d, v4, 0" % (8 + r, 32 + 4 * r))
        for q in range(1, 4): a("v_dot2_f32_bf16 v%d, v%d, v4, v%d" % (8 + r, 32 + 4 * r + q, 8 + r))
        for q in range(4):
            a("v_lshlrev_b32 v%d, 16, v%d" % (64 + 8 * r + 2 * q, 32 + 4 * r + q))
            a("v_and_b32 v%d, 0xffff0000, v%d" % (65 + 8 * r + 2 * q, 32 + 4 * r + q))
    stamp(a, 1)
    R = [8, 9, 10, 11]
    reduce4(a, R)
    a("v_mul_f32 v8, %s, v8" % fl(-1 / 512.))
    for r in range(4): a("v_readlane_b32 s%d, v8, %d" % (40 + 2 * r, 15 + 16 * r))
    bf16r(a, 16, 8)
    for r in range(4): a("v_readlane_b32 s%d, v16, %d" % (48 + 2 * r, 15 + 16 * r))
    for r in range(4):
        for q in range(4):
            e = 64 + 8 * r + 2 * q
            a("v_pk_add_f32 v[20:21], v[%d:%d], s[%d:%d] op_sel_hi:[1,0]" % (e, e + 1, 40 + 2 * r, 41 + 2 * r))
            if q == 0: a("v_pk_mul_f32 v[22:23], v[20:21], v[20:21]")
            else: a("v_pk_fma_f32 v[22:23], v[20:21], v[20:21], v[22:23]")
        a("v_add_f32 v%d, v22, v23" % (8 + r))
    reduce4(a, R)
    a("v_mul_f32 v8, %s, v8" % fl(1 / 512.)); bf16r(a, 8, 8)
    a("v_add_f32 v8, %s, v8" % fl(1e-5)); bf16r(a, 8, 8)
    a("v_sqrt_f32 v8, v8"); bf16r(a, 8, 8); a("v_rcp_f32 v8, v8")
    for r in range(4): a("v_readlane_b32 s%d, v8, %d" % (56 + 2 * r, 15 + 16 * r))
    for r in range(4):
        for q in range(4):
            e = 64 + 8 * r + 2 * q
            a("v_pk_add_f32 v[20:21], v[%d:%d], s[%d:%d] op_sel_hi:[1,0]" % (e, e + 1, 48 + 2 * r, 49 + 2 * r))
            a("v_cvt_pk_bf16_f32 v20, v20, v21")
            a("v_and_b32 v21, 0xffff0000, v20"); a("v_lshlrev_b32 v20, 16, v20")
            a("v_pk_mul_f32 v[20:21], v[20:21], s[%d:%d] op_sel_hi:[1,0]" % (56 + 2 * r, 57 + 2 * r))
            a("v_cvt_pk_bf16_f32 v%d, v20, v21" % (48 + 4 * r + q))
        a("ds_write_b128 v3, v[%d:%d] offset:%d" % (48 + 4 * r, 51 + 4 * r, 16 * XP + r * XP))
    stamp(a, 2)
    a("s_waitcnt lgkmcnt(0)"); a("s_barrier")
    for arr in range(2):
        for it in range(4):
            b = 64 + 16 * arr + 4 * it
            a("ds_read_b64_tr_b16 v[%d:%d], v26 offset:%d" % (b, b + 1, arr * 16 * XP + it * 64), tag=(arr, it))
            a("ds_read_b64_tr_b16 v[%d:%d], v26 offset:%d" % (b + 2, b + 3, arr * 16 * XP + it * 64 + 4 * XP), tag=(arr, it))
    for arr in (1, 0):
        for it in range(4):
            b = 64 + 16 * arr + 4 * it
            a("s_add_u32 s9, s7, %d" % ((WS_XNT if arr else WS_XT) + it * 16 * 8192))
            if arr == 1 and it == 0: a("s_waitcnt lgkmcnt(0)")
            a("buffer_store_dwordx4 v[%d:%d], v27, s[28:31], s9 offen%s" % (b, b + 3, SC))
    endp(a, 0)

def role_mod(a):
    a.reset_counts()
    for i, n in enumerate(("wmod", "c", "ws")): load_ptr(a, 24 + 4 * i, n)
    a("s_sub_u32 s3, s2, %d" % O_M)
    a("s_lshr_b32 s4, s3, 2"); a("s_and_b32 s5, s3, 3")
    a("v_lshrrev_b32 v2, 3, v1"); a("s_lshl_b32 s6, s5, 7"); a("s_lshl_b32 s7, s20, 5"); a("s_add_u32 s6, s6, s7")
    a("v_add_u32 v2, s6, v2")
    a("v_mul_u32_u24 v3, 6144, v2"); a("v_and_b32 v4, 7, v1"); a("v_lshl_add_u32 v3, v4, 4, v3")
    a("s_lshl_b32 s7, s4, 7")
    a("v_lshlrev_b32 v5, 1, v2")
    a("s_waitcnt lgkmcnt(0)")
    for i, n in enumerate(("wmod", "c", "ws")): make_srd(a, 24 + 4 * i, n)
    for it in range(4):
        a("buffer_load_dwordx4 v[%d:%d], v3, s[24:27], s7 offen" % (40 + 4 * it, 43 + 4 * it), tag=it)
        if it < 3: a("s_add_u32 s7, s7, %d" % (8 * 6144))
    for it in range(4): a("buffer_load_ushort v%d, v5, s[28:31], 0 offen offset:%d" % (30 + it, it * 16), tag="c")
    a("v_lshrrev_b32 v8, 4, v1"); a("s_lshl_b32 s8, s20, 2"); a("v_add_u32 v8, s8, v8"); a("v_lshlrev_b32 v8, 8, v8"); a("v_lshl_add_u32 v8, v4, 5, v8")
    a("v_lshlrev_b32 v9, 2, v1")
    a.wait_vm("c")
    for it in range(4):
        r = 30 + it
        a("v_lshlrev_b32 v%d, 16, v%d" % (r, r))
        a("v_mul_f32 v10, %s, v%d" % (fl(-LOG2E), r))
        a("v_exp_f32 v10, v10"); a("v_add_f32 v10, 1.0, v10"); a("v_rcp_f32 v10, v10")
        a("v_mul_f32 v%d, v%d, v10" % (r, r)); bf16r(a, r, r)
    for it in range(4):
        for q in range(4):
            w = 40 + 4 * it + q
            a("v_lshlrev_b32 v10, 16, v%d" % w); a("v_and_b32 v11, 0xffff0000, v%d" % w)
            op = "v_mul_f32" if it == 0 else "v_fmac_f32"
            a("%s v%d, v10, v%d" % (op, 80 + 2 * q, 30 + it)); a("%s v%d, v11, v%d" % (op, 81 + 2 * q, 30 + it))
    stamp(a, 2)
    for r in range(80, 88): a("v_add_f32_dpp v%d, v%d, v%d row_shr:8 row_mask:0xf bank_mask:0xf" % (r, r, r))
    a("s_mov_b32 exec_lo, 0xff00ff00"); a("s_mov_b32 exec_hi, 0xff00ff00")
    a("ds_write_b128 v8, v[80:83]"); a("ds_write_b128 v8, v[84:87] offset:16")
    a("s_mov_b64 exec, -1")
    a("s_waitcnt lgkmcnt(0)"); a("s_barrier")
    a("s_cmp_lg_u32 s20, 0"); a("s_cbranch_scc1 P_END")
    for i in range(16): a("ds_read_b32 v%d, v9 offset:%d" % (12 + i, i * 256))
    a("s_mul_i32 s9, s5, 12288"); a("s_lshl_b32 s10, s4, 8"); a("s_add_u32 s9, s9, s10"); a("s_add_u32 s9, s9, %d" % WS_MODP)
    a("s_waitcnt lgkmcnt(0)")
    for st in (8, 4, 2, 1):
        for i in range(st): a("v_add_f32 v%d, v%d, v%d" % (12 + i, 12 + i, 12 + i + st))
    a("buffer_store_dword v12, v9, s[32:35], s9 offen" + SC)
    endp(a, 0)

def pack_rows(a, src_srd, ws_srd, nit, pitch, s_src, s_dst, unit_stride, vsrc, lbl):
    for it in range(nit):
        a("buffer_load_dwordx4 v[%d:%d], v%d, s[%d:%d], s%d offen" % (32 + 4 * it, 35 + 4 * it, vsrc, src_srd, src_srd + 3, s_src), tag=it)
        if it < nit - 1: a("s_add_u32 s%d, s%d, %d" % (s_src, s_src, 64 * pitch))
    a("v_lshlrev_b32 v4, 4, v0")
    a("v_lshrrev_b32 v5, 4, v1"); a("v_bfe_u32 v6, v1, 2, 2"); a("v_and_b32 v7, 3, v1")
    a("v_lshl_add_u32 v8, v5, 3, v6"); a("v_lshlrev_b32 v8, 6, v8"); a("v_lshl_add_u32 v8, v7, 4, v8")
    a("s_lshr_b32 s6, s20, 1"); a("s_and_b32 s7, s20, 1")
    a("s_lshl_b32 s9, s6, 11"); a("s_lshl_b32 s10, s7, 3"); a("s_add_u32 s9, s9, s10"); a("v_add_u32 v8, s9, v8")
    a("v_lshlrev_b32 v9, 4, v1")
    a("s_lshl_b32 s9, s6, 10"); a("s_mul_i32 s10, s7, %d" % unit_stride); a("s_add_u32 s9, s9, s10"); a("s_add_u32 s%d, s%d, s9" % (s_dst, s_dst))
    for it in range(nit):
        a.wait_vm(it)
        a("ds_write_b128 v4, v[%d:%d] offset:%d" % (32 + 4 * it, 35 + 4 * it, it * 4096))
    a("s_waitcnt lgkmcnt(0)"); a("s_barrier")
    for it in range(nit):
        b = 32 + 4 * it
        a("ds_read_b64_tr_b16 v[%d:%d], v8 offset:%d" % (b, b + 1, it * 4096), tag=("t", it))
        a("ds_read_b64_tr_b16 v[%d:%d], v8 offset:%d" % (b + 2, b + 3, it * 4096 + 256), tag=("t", it))
    for it in range(nit):
        b = 32 + 4 * it
        if it and it % 2 == 0: a("s_add_u32 s%d, s%d, 4096" % (s_dst, s_dst))
        a.wait_lg(("t", it))
        a("buffer_store_dwordx4 v[%d:%d], v9, s[%d:%d], s%d offen offset:%d%s" % (b, b + 3, ws_srd, ws_srd + 3, s_dst, (it & 1) * 2048, SC))

def role_pack(a):
    a.reset_counts()
    load_ptr(a, 24, "win"); load_ptr(a, 28, "ws")
    a("s_sub_u32 s3, s2, %d" % O_P); a("s_and_b32 s11, s3, 3"); a("s_lshr_b32 s3, s3, 2")
    a("s_cmp_ge_u32 s3, 22"); a("s_cselect_b32 s4, 22, 0"); a("s_cselect_b32 s5, 1376, 0")
    a("s_sub_u32 s4, s3, s4")
    a("s_lshl_b32 s6, s4, 6"); a("s_add_u32 s5, s5, s6"); a("s_mul_i32 s6, s11, %d" % (128 * 2752)); a("s_add_u32 s5, s5, s6")
    a("v_lshrrev_b32 v2, 2, v1"); a("s_lshl_b32 s6, s20, 4"); a("v_add_u32 v2, s6, v2")
    a("v_mul_u32_u24 v3, 2752, v2"); a("v_and_b32 v4, 3, v1"); a("v_lshl_add_u32 v3, v4, 4, v3")
    a("s_cmp_eq_u32 s4, 21"); a("s_cselect_b32 s7, 2, 4")
    a("v_cmp_gt_u32 vcc, s7, v4"); a("v_mov_b32 v5, 0x7f000000"); a("v_cndmask_b32 v3, v5, v3, vcc")
    a("s_lshl_b32 s8, s3, 15"); a("s_lshl_b32 s6, s11, 12"); a("s_add_u32 s8, s8, s6"); a("s_add_u32 s8, s8, %d" % WS_WRAW)
    a("s_waitcnt lgkmcnt(0)")
    make_srd(a, 24, "win"); make_srd(a, 28, "ws")
    pack_rows(a, 24, 28, 2, 2752, 5, 8, 16384, 3, "P")
    endp(a, 0)

def gen_prep():
    a = Asm()
    stamp_init(a)
    a("v_and_b32 v1, 63, v0"); a("v_lshrrev_b32 v2, 6, v0"); a("v_readfirstlane_b32 s20, v2")
    a("s_cmp_ge_u32 s2, %d" % PREP_GRID); a("s_cbranch_scc1 P_END")
    a("s_cmp_ge_u32 s2, %d" % O_P); a("s_cbranch_scc1 P_PACK")
    a("s_cmp_ge_u32 s2, %d" % O_M); a("s_cbranch_scc1 P_MOD")
    a("s_cmp_ge_u32 s2, %d" % O_X); a("s_cbranch_scc1 P_X")
    role_kgen(a)
    a.label("P_MOD"); role_mod(a)
    a.label("P_X"); role_x(a)
    a.label("P_PACK"); role_pack(a)
    a.label("P_END"); endp(a, 0)
    return a
```

```python
from gen_common import *
from gen_prep import pack_rows
NC, NS_, NW = 256, 88, 0
GRID = NC + NS_ + NW
CSZ = 4160
UB = 8 * CSZ
USZ = 7680
XR = UB + 2 * USZ
KC = XR + 8192
KCS = 1536
XB = 0
LDS = KC
SC = " sc1"
PFC = int(os.environ.get("PFC", "1"))
PFT = {0: (), 1: (0, 1), 2: (0, 8), 3: ()}

def rnd_pk(a, p):
    a("v_cvt_pk_bf16_f32 v%d, v%d, v%d" % (p, p, p + 1))
    a("v_and_b32 v%d, 0xffff0000, v%d" % (p + 1, p)); a("v_lshlrev_b32 v%d, 16, v%d" % (p, p))

def role_conv(a):
    load_ptr(a, 24, "ws"); load_ptr(a, 4, "Dsk"); load_ptr(a, 28, "wsp")
    a("s_lshr_b32 s21, s20, 1"); a("s_and_b32 s23, s20, 1")
    a("s_and_b32 s7, s2, 7"); a("s_lshl_b32 s7, s7, 5"); a("s_lshr_b32 s6, s2, 3"); a("s_add_u32 s7, s7, s6")
    a("s_lshl_b32 s22, s7, 1"); a("s_add_u32 s22, s22, s21")
    a("v_lshlrev_b32 v2, 4, v1"); a("v_lshlrev_b32 v26, 3, v1")
    a("v_lshrrev_b32 v3, 1, v0"); a("v_lshlrev_b32 v3, 6, v3"); a("v_and_b32 v33, 1, v0"); a("v_lshl_add_u32 v3, v33, 4, v3")
    a("s_lshl_b32 s3, s7, 3"); a("s_lshl_b32 s6, s7, 2")
    a("s_lshr_b32 s10, s7, 1"); a("s_lshl_b32 s10, s10, 14"); a("s_and_b32 s11, s7, 1"); a("s_lshl_b32 s11, s11, 5"); a("s_add_u32 s10, s10, s11")
    a("s_add_u32 s11, s10, %d" % WS_XT); a("s_add_u32 s10, s10, %d" % WS_XNT)
    a("s_mul_i32 s12, s22, %d" % (4 * KLEN)); a("s_lshl_b32 s13, s23, 2"); a("s_add_u32 s12, s12, s13"); a("s_add_u32 s12, s12, %d" % WS_KK)
    a("s_mul_i32 s14, s20, %d" % (2 * CSZ))
    a("v_lshrrev_b32 v6, 3, v1"); a("v_xor_b32 v7, v6, v1"); a("v_and_b32 v7, 7, v7")
    a("v_lshlrev_b32 v6, 8, v6"); a("v_lshrrev_b32 v27, 1, v7"); a("v_lshl_add_u32 v6, v27, 6, v6"); a("v_and_b32 v7, 1, v7"); a("v_lshl_add_u32 v6, v7, 4, v6")
    a("s_lshl_b32 s13, s20, 12"); a("s_add_u32 s11, s11, s13"); a("s_lshl_b32 s13, s20, 11")
    a("s_waitcnt lgkmcnt(0)")
    make_srd(a, 24, "ws"); make_srd(a, 28, "wsp")
    a("s_add_u32 s8, s24, s3"); a("s_addc_u32 s9, s25, 0")
    a("buffer_load_dwordx4 v[8:11], v3, s[24:27], s10 offen", tag="xn")
    a("s_add_u32 s10, s10, 8192")
    a("buffer_load_dwordx4 v[12:15], v3, s[24:27], s10 offen", tag="xn")
    for sec in range(3):
        for p in range(4):
            a("s_load_dwordx2 s[%d:%d], s[8:9], %d" % (36 + 8 * sec + 2 * p, 37 + 8 * sec + 2 * p, WS_MODP + p * 12288 + sec * 2048))
    a("s_load_dwordx2 s[60:61], s[8:9], %d" % WS_KSC)
    a("s_load_dword s62, s[4:5], s6")
    for b in range(2):
        a("s_add_u32 m0, s14, %d" % (b * CSZ))
        if b: a("s_add_u32 s12, s12, %d" % (2 * KLEN))
        for c in range(4): a("buffer_load_dwordx4 v2, s[24:27], s12 offen offset:%d lds" % (c * 1024), tag="x")
    a("s_add_u32 m0, s13, %d" % XR)
    a("buffer_load_dwordx4 v6, s[24:27], s11 offen lds", tag="x")
    a("s_add_u32 m0, s13, %d" % (XR + 1024)); a("s_add_u32 s11, s11, 2048")
    a("buffer_load_dwordx4 v6, s[24:27], s11 offen lds", tag="x")
    a("v_mov_b32 v24, -1"); a("v_mov_b32 v25, -1")
    a("s_lshl_b32 s16, s2, 9"); a("s_add_u32 s16, s16, %d" % WS_ZST)
    a("buffer_store_dwordx2 v[24:25], v26, s[24:27], s16 offen" + SC, tag="x")
    for i in range(4): a("v_mov_b32 v%d, 0" % (32 + i))
    a("v_lshrrev_b32 v28, 7, v0"); a("v_mul_u32_u24 v28, %d, v28" % USZ)
    a("v_and_b32 v29, 127, v0"); a("v_add_u32 v30, 128, v29"); a("v_min_u32 v30, 154, v30")
    a("v_lshl_add_u32 v29, v29, 4, v28"); a("v_lshl_add_u32 v30, v30, 4, v28")
    a("ds_write_b128 v29, v[32:35] offset:%d" % UB); a("ds_write_b128 v30, v[32:35] offset:%d" % UB)
    a("v_bfe_u32 v28, v0, 2, 3"); a("v_mul_u32_u24 v28, %d, v28" % CSZ); a("v_and_b32 v29, 3, v0"); a("v_lshl_add_u32 v28, v29, 4, v28")
    a("ds_write_b128 v28, v[32:35] offset:4096")
    a("s_and_b32 s66, s2, 7"); a("s_lshl_b32 s66, s66, 8"); a("s_lshr_b32 s67, s2, 3"); a("s_lshl_b32 s67, s67, 3"); a("s_add_u32 s66, s66, s67")
    a("s_lshl_b32 s67, s20, 1"); a("s_add_u32 s66, s66, s67"); a("s_lshl_b32 s66, s66, 12")
    a("v_lshlrev_b32 v92, 6, v1")
    for i in range(32): a("v_mov_b32 v%d, 0" % (96 + i))
    a("v_and_b32 v4, 31, v1"); a("v_lshrrev_b32 v5, 5, v1")
    a("v_and_b32 v28, 3, v4"); a("v_sub_u32 v28, 3, v28"); a("v_mul_u32_u24 v28, %d, v28" % CSZ)
    a("v_lshrrev_b32 v29, 2, v4"); a("v_lshlrev_b32 v29, 3, v29"); a("v_sub_u32 v28, v28, v29")
    a("v_lshl_add_u32 v28, v5, 4, v28")
    a("s_mul_i32 s14, s21, %d" % (4 * CSZ)); a("s_lshl_b32 s17, s23, 5"); a("s_add_u32 s16, s14, s17"); a("s_add_u32 s16, s16, 56")
    a("v_add_u32 v28, s16, v28")
    a("v_mul_u32_u24 v29, 80, v4"); a("v_lshl_add_u32 v30, v5, 4, v29")
    a("s_mul_i32 s18, s21, %d" % USZ); a("s_add_u32 s19, s18, s17"); a("s_add_u32 s19, s19, %d" % UB)
    a("v_add_u32 v30, s19, v30")
    a("v_lshl_add_u32 v31, v5, 3, v29"); a("s_mul_i32 s19, s23, 2560"); a("s_add_u32 s19, s19, s18"); a("s_add_u32 s19, s19, %d" % (UB + 31 * 80))
    a("v_add_u32 v31, s19, v31")
    a("v_and_b32 v29, 7, v4"); a("v_xor_b32 v29, s21, v29"); a("v_lshlrev_b32 v29, 4, v29"); a("v_lshl_add_u32 v29, v4, 7, v29"); a("v_lshl_add_u32 v29, v5, 3, v29")
    a("s_lshl_b32 s19, s23, 12"); a("v_add_u32 v88, s19, v29")
    for q in range(1, 4): a("v_xor_b32 v%d, %d, v88" % (88 + q, q * 32))
    a("v_lshrrev_b32 v32, 3, v0"); a("v_mul_u32_u24 v32, 80, v32"); a("v_bfe_u32 v33, v0, 1, 2"); a("v_lshl_add_u32 v32, v33, 4, v32")
    a("v_and_b32 v33, 1, v0"); a("v_mul_u32_u24 v34, %d, v33" % USZ); a("v_add_u32 v32, v32, v34")
    a("v_cmp_eq_u32 s[64:65], 1, v33")
    stamp(a, 1)
    a("s_waitcnt lgkmcnt(0)")
    def msum(dst, sec):
        for c in range(2):
            b = 36 + 8 * sec + c
            a("v_mov_b32 v%d, s%d" % (70 + c, b)); a("v_add_f32 v%d, s%d, v%d" % (70 + c, b + 2, 70 + c))
            a("v_mov_b32 v72, s%d" % (b + 4)); a("v_add_f32 v72, s%d, v72" % (b + 6)); a("v_add_f32 v%d, v%d, v72" % (70 + c, 70 + c))
        a("v_cndmask_b32 v%d, v70, v71, s[64:65]" % dst); bf16r(a, dst, dst)
    msum(74, 0); msum(76, 1); msum(78, 2)
    a("v_add_f32 v76, 1.0, v76"); bf16r(a, 76, 76)
    a("v_mul_f32 v70, %s, v76" % fl(23.0)); a("v_add_f32 v70, abs(v70), abs(v74)")
    a("v_and_b32 v70, 0x7f800000, v70"); a("v_max_u32 v70, 0x%x, v70" % (14 << 23)); a("v_min_u32 v70, 0x7f000000, v70")
    a("v_sub_u32 v71, 0x%x, v70" % (267 << 23)); a("v_subrev_u32 v70, 0x%x, v70" % (13 << 23))
    a("v_mul_f32 v76, v76, v71"); a("v_mul_f32 v74, v74, v71")
    a("v_readlane_b32 s51, v70, s21"); a("v_readlane_b32 s54, v78, s21")
    a("s_lshl_b32 s52, s62, 16"); a("s_and_b32 s53, s62, 0xffff0000")
    a("s_cmp_eq_u32 s21, 0"); a("s_cselect_b32 s50, s60, s61"); a("s_cselect_b32 s52, s52, s53")
    a("v_mov_b32 v70, s51"); a("v_mul_f32 v71, s50, v70"); a("v_mul_f32 v72, s52, v70")
    a("v_readfirstlane_b32 s50, v71"); a("v_readfirstlane_b32 s52, v72")
    a.wait_vm("xn")
    if PFC == 3:
        for _ in range(2): a("buffer_load_dword v93, v92, s[28:31], s66 offen"); a("s_add_u32 s66, s66, 4096")
    for i in range(2):
        for q in range(4):
            w = 8 + 4 * i + q; p = 70 + 2 * (q & 1)
            a("v_lshlrev_b32 v%d, 16, v%d" % (p, w)); a("v_and_b32 v%d, 0xffff0000, v%d" % (p + 1, w))
            a("v_pk_mul_f32 v[%d:%d], v[%d:%d], v[76:77] op_sel_hi:[1,0]" % (p, p + 1, p, p + 1)); rnd_pk(a, p)
            a("v_pk_add_f32 v[%d:%d], v[%d:%d], v[74:75] op_sel_hi:[1,0]" % (p, p + 1, p, p + 1)); rnd_pk(a, p)
            a("v_cvt_pk_f16_f32 v%d, v%d, v%d" % (w, p, p + 1))
        a("ds_write_b128 v32, v[%d:%d] offset:%d" % (8 + 4 * i, 11 + 4 * i, UB + 31 * 80 + i * 2560))
    a.wait_vm("x")
    a("s_waitcnt lgkmcnt(0)"); a("s_barrier")
    stamp(a, 3)
    def loads(t):
        b = 40 + 16 * (t % 3); ops = []
        for j, m in enumerate((t, t + 32)):
            off = 4032 - 64 * m
            ops.append("ds_read_b64 v[%d:%d], v28 offset:%d" % (b + 4 * j, b + 4 * j + 1, off))
            ops.append("ds_read_b64 v[%d:%d], v28 offset:%d" % (b + 4 * j + 2, b + 4 * j + 3, off + 8))
        ops.append("ds_read_b128 v[%d:%d], v30 offset:%d" % (b + 8, b + 11, (31 - t) * 80))
        ops.append("ds_read_b128 v[%d:%d], v30 offset:%d" % (b + 12, b + 15, (63 - t) * 80))
        return ops
    for t in range(2):
        for o in loads(t): a(o, tag=t)
    for t in range(32):
        nx = loads(t + 2) if t + 2 < 32 else []
        a.wait_lg(t)
        b = 40 + 16 * (t % 3)
        ms = ["v_mfma_f32_32x32x16_f16 v[96:111], v[%d:%d], v[%d:%d], v[96:111]" % (b, b + 3, b + 8, b + 11),
              "v_mfma_f32_32x32x16_f16 v[112:127], v[%d:%d], v[%d:%d], v[112:127]" % (b, b + 3, b + 12, b + 15),
              "v_mfma_f32_32x32x16_f16 v[112:127], v[%d:%d], v[%d:%d], v[112:127]" % (b + 4, b + 7, b + 8, b + 11)]
        for i, m in enumerate(ms):
            a(m)
            for o in nx[2 * i: 2 * i + 2]: a(o, tag=t + 2)
        if t in PFT[PFC]:
            a("buffer_load_dword v93, v92, s[28:31], s66 offen"); a("s_add_u32 s66, s66, 4096")
        if t == 30:
            for q in range(4): a("ds_read_b64 v[%d:%d], v31 offset:%d" % (8 + 2 * q, 9 + 2 * q, 16 * q))
            for q in range(4): a("ds_read_b64 v[%d:%d], v%d offset:%d" % (16 + 2 * q, 17 + 2 * q, 88 + q, XR))
            a.lg = a.lg[:-8] if False else a.lg
    stamp(a, 4)
    a("s_lshl_b32 s16, s20, 12"); a("v_add_u32 v33, s16, v2"); a("v_xor_b32 v34, 4096, v33")
    a("v_lshrrev_b32 v7, 3, v1"); a("v_lshlrev_b32 v7, 16, v7"); a("v_and_b32 v72, 7, v1"); a("v_lshl_add_u32 v7, v72, 4, v7")
    a("s_lshl_b32 s17, s20, 11"); a("s_add_u32 s17, s17, 16384"); a("v_lshlrev_b32 v35, 6, v4"); a("v_lshl_add_u32 v35, v5, 5, v35"); a("v_add_u32 v35, s17, v35"); a("v_add_u32 v36, s17, v2")
    a("s_lshl_b32 s15, s23, 20"); a("s_lshl_b32 s16, s22, 7"); a("s_add_u32 s15, s15, s16"); a("s_add_u32 s15, s15, %d" % WS_X1T)
    a("s_waitcnt lgkmcnt(0)"); a("s_barrier")
    a("s_cmp_eq_u32 s23, 0"); a("s_cbranch_scc0 CV_H1")
    for hh in range(2):
        snd, keep = (112, 96) if hh == 0 else (96, 112)
        if hh == 1: a.label("CV_H1")
        for q in range(4): a("ds_write_b128 v33, v[%d:%d] offset:%d" % (snd + 4 * q, snd + 4 * q + 3, XB + q * 1024))
        for k in range(8):
            t = 60 + 2 * k; hreg = 8 + k
            a("v_cvt_f32_f16 v%d, v%d" % (t, hreg)); a("v_cvt_f32_f16_sdwa v%d, v%d dst_sel:DWORD dst_unused:UNUSED_PAD src0_sel:WORD_1" % (t + 1, hreg))
            a("v_pk_mul_f32 v[%d:%d], v[%d:%d], s[52:53] op_sel_hi:[1,0]" % (t, t + 1, t, t + 1)); rnd_pk(a, t)
        a("s_waitcnt lgkmcnt(0)"); a("s_barrier")
        for q in range(4): a("ds_read_b128 v[%d:%d], v34 offset:%d" % (40 + 4 * q, 43 + 4 * q, XB + q * 1024))
        a("s_waitcnt lgkmcnt(0)")
        for i in range(0, 16, 2): a("v_pk_add_f32 v[%d:%d], v[%d:%d], v[%d:%d]" % (40 + i, 41 + i, 40 + i, 41 + i, keep + i, keep + i + 1))
        if hh == 0: a("s_branch CV_EP")
    a.label("CV_EP")
    stamp(a, 5)
    for k in range(8):
        y = 40 + 2 * k; xreg = 16 + k; t = 60 + 2 * k
        a("v_pk_mul_f32 v[%d:%d], v[%d:%d], s[50:51] op_sel_hi:[1,0]" % (y, y + 1, y, y + 1)); rnd_pk(a, y)
        a("v_pk_add_f32 v[%d:%d], v[%d:%d], v[%d:%d]" % (y, y + 1, y, y + 1, t, t + 1)); rnd_pk(a, y)
        a("v_pk_mul_f32 v[%d:%d], v[%d:%d], s[54:55] op_sel_hi:[1,0]" % (y, y + 1, y, y + 1)); rnd_pk(a, y)
        a("v_lshlrev_b32 v%d, 16, v%d" % (t, xreg)); a("v_and_b32 v%d, 0xffff0000, v%d" % (t + 1, xreg))
        a("v_pk_add_f32 v[%d:%d], v[%d:%d], v[%d:%d]" % (y, y + 1, y, y + 1, t, t + 1))
        a("v_cvt_pk_bf16_f32 v%d, v%d, v%d" % (80 + k, y, y + 1))
        if k == 3: a("ds_write_b128 v35, v[80:83]")
    a("ds_write_b128 v35, v[84:87] offset:16")
    a("ds_read_b128 v[80:83], v36"); a("ds_read_b128 v[84:87], v36 offset:1024")
    a("s_add_u32 s16, s15, %d" % (8 * 65536))
    a("s_waitcnt lgkmcnt(1)"); a("buffer_store_dwordx4 v[80:83], v7, s[24:27], s15 offen" + SC)
    a("s_waitcnt lgkmcnt(0)"); a("buffer_store_dwordx4 v[84:87], v7, s[24:27], s16 offen" + SC)
    endp(a, 1)

def role_scale(a):
    a.reset_counts()
    load_ptr(a, 24, "ws")
    a("s_sub_u32 s3, s2, %d" % NC)
    a("v_lshlrev_b32 v2, 4, v1"); a("v_lshlrev_b32 v3, 3, v0")
    a("s_lshl_b32 s4, s3, 14"); a("s_lshl_b32 s5, s20, 12"); a("s_add_u32 s4, s4, s5"); a("s_add_u32 s5, s4, %d" % WS_WRAW); a("s_add_u32 s4, s4, %d" % WS_WIN)
    a("s_waitcnt lgkmcnt(0)")
    make_srd(a, 24, "ws")
    for p in range(4):
        a("s_mov_b32 s6, %d" % (WS_MODP + p * 12288 + 3 * 2048))
        a("buffer_load_dwordx2 v[%d:%d], v3, s[24:27], s6 offen" % (60 + 2 * p, 61 + 2 * p), tag="m")
        a("buffer_load_dwordx2 v[%d:%d], v3, s[24:27], s6 offen offset:2048" % (68 + 2 * p, 69 + 2 * p), tag="m")
    for k in range(4): a("buffer_load_dwordx4 v[%d:%d], v2, s[24:27], s5 offen offset:%d" % (40 + 4 * k, 43 + 4 * k, k * 1024), tag="w")
    a("s_cmp_lg_u32 s3, 0"); a("s_cbranch_scc1 SC_NOGB")
    vm0 = list(a.vm)
    for p in range(4):
        a("s_mov_b32 s6, %d" % (WS_MODP + p * 12288 + 5 * 2048))
        a("buffer_load_dwordx2 v[%d:%d], v3, s[24:27], s6 offen" % (76 + 2 * p, 77 + 2 * p))
    a("s_waitcnt vmcnt(0)")
    for c in range(2):
        a("v_add_f32 v%d, v%d, v%d" % (76 + c, 76 + c, 78 + c)); a("v_add_f32 v%d, v%d, v%d" % (80 + c, 80 + c, 82 + c)); a("v_add_f32 v%d, v%d, v%d" % (76 + c, 76 + c, 80 + c)); bf16r(a, 76 + c, 76 + c)
    a("s_mov_b32 s6, %d" % (WS_MOD + 5 * 2048))
    a("buffer_store_dwordx2 v[76:77], v3, s[24:27], s6 offen" + SC)
    a("s_waitcnt vmcnt(0)")
    a.label("SC_NOGB")
    a.vm = vm0
    a("v_lshrrev_b32 v10, 4, v1"); a("v_lshlrev_b32 v11, 5, v10"); a("s_lshl_b32 s7, s20, 9"); a("v_add_u32 v11, s7, v11")
    a.wait_vm("m")
    for b in (60, 68):
        for c in range(2):
            a("v_add_f32 v%d, v%d, v%d" % (b + c, b + c, b + 2 + c)); a("v_add_f32 v%d, v%d, v%d" % (b + 4 + c, b + 4 + c, b + 6 + c)); a("v_add_f32 v%d, v%d, v%d" % (b + c, b + c, b + 4 + c)); bf16r(a, b + c, b + c)
    for c in range(2): a("v_add_f32 v%d, 1.0, v%d" % (68 + c, 68 + c)); bf16r(a, 68 + c, 68 + c)
    a("ds_write_b64 v3, v[60:61]"); a("ds_write_b64 v3, v[68:69] offset:2048")
    a("s_waitcnt lgkmcnt(0)"); a("s_barrier")
    for k in range(4):
        for hh in range(2):
            a("ds_read_b128 v[%d:%d], v11 offset:%d" % (60 + 16 * k + 4 * hh, 63 + 16 * k + 4 * hh, k * 128 + hh * 16), tag=k)
            a("ds_read_b128 v[%d:%d], v11 offset:%d" % (68 + 16 * k + 4 * hh, 71 + 16 * k + 4 * hh, 2048 + k * 128 + hh * 16), tag=k)
    a("v_mov_b32 v20, 0"); a("v_mov_b32 v21, 0")
    a.wait_vm("w")
    for k in range(4):
        a.wait_lg(k)
        for q in range(4):
            w = 40 + 4 * k + q; sb = 60 + 16 * k + 2 * q; c1 = 68 + 16 * k + 2 * q
            a("v_lshlrev_b32 v12, 16, v%d" % w); a("v_and_b32 v13, 0xffff0000, v%d" % w)
            a("v_fmac_f32 v21, v12, v%d" % sb); a("v_fmac_f32 v21, v13, v%d" % (sb + 1))
            a("v_mul_f32 v12, v12, v%d" % c1); a("v_mul_f32 v13, v13, v%d" % (c1 + 1))
            a("v_cvt_pk_bf16_f32 v%d, v12, v13" % w)
            a("v_lshlrev_b32 v12, 16, v%d" % w); a("v_and_b32 v13, 0xffff0000, v%d" % w)
            a("v_add_f32 v20, v20, v12"); a("v_add_f32 v20, v20, v13")
        a("buffer_store_dwordx4 v[%d:%d], v2, s[24:27], s4 offen offset:%d%s" % (40 + 4 * k, 43 + 4 * k, k * 1024, SC))
    a("v_lshlrev_b32 v12, 2, v0")
    a("ds_write_b32 v12, v20 offset:4096"); a("ds_write_b32 v12, v21 offset:5120")
    a("s_waitcnt lgkmcnt(0)"); a("s_barrier")
    a("s_cmp_lg_u32 s20, 0"); a("s_cbranch_scc1 C_END")
    a("v_and_b32 v12, 15, v1"); a("v_lshlrev_b32 v12, 2, v12"); a("v_bfe_u32 v13, v1, 4, 1"); a("v_lshl_add_u32 v14, v13, 10, v12")
    for i in range(16): a("ds_read_b32 v%d, v14 offset:%d" % (20 + i, 4096 + i * 64))
    a("v_mul_u32_u24 v13, %d, v13" % (WS_CS2 - WS_CS1)); a("v_add_u32 v12, v12, v13")
    a("s_lshl_b32 s6, s3, 6"); a("s_add_u32 s6, s6, %d" % WS_CS1)
    a("s_waitcnt lgkmcnt(0)")
    for st in (8, 4, 2, 1):
        for i in range(st): a("v_add_f32 v%d, v%d, v%d" % (20 + i, 20 + i, 20 + i + st))
    a("buffer_store_dword v20, v12, s[24:27], s6 offen" + SC)
    endp(a, 1)

def role_wout(a):
    a.reset_counts()
    load_ptr(a, 24, "wout"); load_ptr(a, 28, "ws")
    a("s_sub_u32 s3, s2, %d" % (NC + NS_)); a("s_and_b32 s4, s3, 15"); a("s_lshr_b32 s11, s3, 4")
    a("s_lshl_b32 s5, s4, 6"); a("s_lshl_b32 s6, s11, 18"); a("s_add_u32 s5, s5, s6")
    a("v_lshrrev_b32 v2, 2, v1"); a("s_lshl_b32 s6, s20, 4"); a("v_add_u32 v2, s6, v2")
    a("v_lshlrev_b32 v3, 10, v2"); a("v_and_b32 v4, 3, v1"); a("v_lshl_add_u32 v3, v4, 4, v3")
    a("s_mul_i32 s8, s4, %d" % (2 * 24 * 1024)); a("s_lshl_b32 s6, s11, 13"); a("s_add_u32 s8, s8, s6"); a("s_add_u32 s8, s8, %d" % WS_WOUT)
    a("s_waitcnt lgkmcnt(0)")
    make_srd(a, 24, "wout"); make_srd(a, 28, "ws")
    pack_rows(a, 24, 28, 4, 1024, 5, 8, 24 * 1024, 3, "W")
    endp(a, 1)

def gen_conv():
    a = Asm()
    stamp_init(a)
    a("v_and_b32 v1, 63, v0"); a("v_lshrrev_b32 v2, 6, v0"); a("v_readfirstlane_b32 s20, v2")
    a("s_cmp_ge_u32 s2, %d" % GRID); a("s_cbranch_scc1 C_END")
    a("s_cmp_ge_u32 s2, %d" % NC); a("s_cbranch_scc1 C_SCALE")
    role_conv(a)
    a.label("C_SCALE"); role_scale(a)
    a.label("C_END"); endp(a, 1)
    return a
```

```python
from gen_common import *
import math
NK, NX, NM, NP, NW = 256, 128, 192, 176, 48
O_X, O_M, O_P, O_W = NK, NK + NX, NK + NX + NM, NK + NX + NM + NP
PREP_GRID = O_W + NW
TP = 272
BUF = 17 * TP
XP = 1056
KC = 4 * 2 * BUF
KCS = 1536
EX = 0
PREP_LDS = max(KC + 2 * KCS, 32 * XP)
PFP = int(os.environ.get('PFP', '0'))
SC = " sc1"

def role_kgen(a):
    for i, n in enumerate(("logA", "Aim", "Cr", "Ci", "logdt", "ws", "wsp")):
        load_ptr(a, 24 + 4 * i, n)
    a("s_lshr_b32 s21, s20, 1")
    a("s_lshl_b32 s22, s2, 1"); a("s_add_u32 s22, s22, s21")
    a("s_and_b32 s23, s20, 1")
    a("s_lshl_b32 s4, s22, 8"); a("s_lshl_b32 s5, s23, 7")
    a("v_lshlrev_b32 v2, 1, v1"); a("v_add_u32 v2, s5, v2"); a("v_xor_b32 v3, 128, v2")
    a("s_lshl_b32 s6, s22, 1"); a("v_mov_b32 v4, s6")
    a("s_waitcnt lgkmcnt(0)")
    for i, n in enumerate(("logA", "Aim", "Cr", "Ci", "logdt", "ws", "wsp")):
        make_srd(a, 24 + 4 * i, n)
    a("buffer_load_ushort v10, v4, s[40:43], 0 offen")
    a("buffer_load_ushort v11, v2, s[24:27], s4 offen")
    a("buffer_load_ushort v12, v2, s[28:31], s4 offen")
    a("buffer_load_ushort v13, v2, s[32:35], s4 offen")
    a("buffer_load_ushort v14, v2, s[36:39], s4 offen")
    a("buffer_load_ushort v15, v3, s[32:35], s4 offen")
    a("buffer_load_ushort v16, v3, s[36:39], s4 offen")
    a("s_mul_i32 s7, s20, %d" % (2 * BUF))
    a("v_lshl_add_u32 v5, v1, 2, s7")
    a("v_and_b32 v6, 15, v1"); a("v_lshrrev_b32 v7, 4, v1")
    a("v_lshl_add_u32 v9, v7, 4, s7")
    a("v_mul_u32_u24 v8, %d, v6" % TP); a("v_add_u32 v8, v8, v9")
    for i in range(16): a("v_mov_b32 v%d, 0" % (92 + i))
    a("s_mul_i32 s15, s21, %d" % KCS); a("s_add_u32 s15, s15, %d" % (KC + 16))
    a("v_mov_b32 v56, 0"); a("v_mov_b32 v57, 0"); a("v_mov_b32 v55, s15"); a("v_subrev_u32 v55, 8, v55")
    a("ds_write_b64 v55, v[56:57]")
    a("v_lshlrev_b32 v22, 7, v7"); a("v_lshl_add_u32 v22, v6, 3, v22"); a("v_add_u32 v22, s15, v22")
    a("v_cmp_gt_u32 vcc, 2, v7")
    a("v_lshlrev_b32 v23, 1, v6"); a("v_lshlrev_b32 v24, 2, v6"); a("v_cndmask_b32 v23, v23, v24, vcc")
    a("v_lshl_add_u32 v23, v7, 7, v23"); a("v_add_u32 v23, s15, v23")
    a("v_mov_b32 v24, 32"); a("v_cndmask_b32 v24, v24, 2, vcc"); a("v_add_u32 v24, v24, v23")
    a("v_lshlrev_b32 v25, 6, v7"); a("v_add_u32 v25, v25, v6"); a("v_add_u32 v25, s15, v25")
    a("v_add_u32 v26, s15, v6")
    a("s_lshl_b32 s16, s23, 10"); a("s_sub_u32 s16, 2047, s16"); a("v_lshlrev_b32 v50, 3, v1"); a("v_sub_u32 v50, s16, v50")
    a("v_cvt_f32_u32 v51, v50"); a("v_lshl_add_u32 v50, v50, 1, s15")
    a("s_add_u32 s16, s15, 256"); a("s_sub_u32 s17, s15, 0x8500")
    for k in range(9):
        a("v_subrev_f32 v52, %s, v51" % fl(float(k))); a("v_subrev_f32 v53, %s, v51" % fl(float(k + 512)))
        if k == 8: a("v_max_f32 v53, 0, v53")
        a("v_cvt_pk_bf16_f32 v52, v52, v53")
        a("v_lshrrev_b32 v53, 16, v52"); a("v_and_b32 v52, 0xffff, v52")
        a("v_lshl_add_u32 v%d, v52, 1, s17" % (108 + k))
        a("v_lshl_add_u32 v53, v53, 1, s17"); a("v_subrev_u32 v54, %d, v50" % (2 * k + 1024)); a("v_med3_i32 v%d, v53, v54, s16" % (117 + k))
    a("s_mul_i32 s13, s22, %d" % (4 * KLEN)); a("s_lshl_b32 s14, s23, 11"); a("s_add_u32 s13, s13, s14"); a("s_add_u32 s13, s13, %d" % WS_KK)
    a("s_add_u32 s14, s13, %d" % (2 * KLEN))
    a("v_lshlrev_b32 v18, 4, v1")
    a("v_add_u32 v27, s7, v18"); a("s_xor_b32 s18, s20, 1"); a("s_mul_i32 s18, s18, %d" % (2 * BUF)); a("v_add_u32 v28, s18, v18")
    a("s_waitcnt vmcnt(4)")
    stamp(a, 1)
    for r in (10, 11, 12): a("v_lshlrev_b32 v%d, 16, v%d" % (r, r))
    exp_acc(a, 10, 10, 20, 21); bf16r(a, 10, 10)
    exp_acc(a, 11, 11, 20, 21); bf16r(a, 11, 11)
    a("v_mul_f32 v11, v11, v10"); a("v_mul_f32 v12, v12, v10")
    a("v_mul_f32 v11, %s, v11" % fl(-LOG2E)); a("v_mul_f32 v12, %s, v12" % fl(1.0 / (2 * math.pi)))
    def direct(dst, p):
        t0, t1 = 20, 21
        if p == 1:
            a("v_exp_f32 v%d, v11" % t0); a("v_fract_f32 v%d, v12" % t1)
        else:
            a("v_mul_f32 v%d, %s, v11" % (t0, fl(float(p)))); a("v_mul_f32 v%d, %s, v12" % (t1, fl(float(p))))
            a("v_exp_f32 v%d, v%d" % (t0, t0)); a("v_fract_f32 v%d, v%d" % (t1, t1))
        a("v_cos_f32 v%d, v%d" % (dst, t1)); a("v_sin_f32 v%d, v%d" % (dst + 1, t1))
        a("v_mul_f32 v%d, v%d, v%d" % (dst, dst, t0)); a("v_mul_f32 v%d, v%d, v%d" % (dst + 1, dst + 1, t0))
    W1, W2, W3, W4, W64, W1K = 30, 32, 34, 36, 38, 40
    direct(W1, 1); direct(W4, 4); direct(W64, 64); direct(W1K, 1024)
    cmul(a, W2, W1, W1); cmul(a, W3, W2, W1)
    a("s_waitcnt vmcnt(0)")
    a("v_and_b32 v17, 0x7fff, v13"); a("v_and_b32 v19, 0x7fff, v14"); a("v_and_b32 v15, 0x7fff, v15"); a("v_and_b32 v16, 0x7fff, v16")
    a("v_max3_u32 v17, v17, v19, v15"); a("v_max_u32 v17, v17, v16")
    for sh in (1, 2, 4, 8):
        a("v_max_u32_dpp v17, v17, v17 row_shr:%d row_mask:0xf bank_mask:0xf" % sh)
    a("v_max_u32_dpp v17, v17, v17 row_bcast:15 row_mask:0xa bank_mask:0xf")
    a("v_max_u32_dpp v17, v17, v17 row_bcast:31 row_mask:0xc bank_mask:0xf")
    a("v_readlane_b32 s8, v17, 63")
    a("s_lshl_b32 s8, s8, 16"); a("s_and_b32 s8, s8, 0x7f800000"); a("s_min_u32 s8, s8, 0x7e800000")
    a("s_sub_u32 s9, 0x7f000000, s8")
    P0, P1, T0 = 42, 44, 46
    a("v_lshlrev_b32 v13, 16, v13"); a("v_lshlrev_b32 v14, 16, v14")
    a("v_mul_f32 v%d, s9, v13" % P0); a("v_mul_f32 v%d, s9, v14" % (P0 + 1))
    a("v_mul_f32 v19, s8, v10"); a("v_add_f32 v19, v19, v19")
    a("s_lshl_b32 s6, s22, 2"); a("s_add_u32 s6, s6, %d" % WS_KSC); a("v_mov_b32 v4, 0")
    a("s_mov_b64 exec, 1")
    a("buffer_store_dword v19, v4, s[44:47], s6 offen" + SC)
    a("s_mov_b64 exec, -1")
    tcnt = [0]
    def put(src, buf, row, neg=False):
        t = 50 + (tcnt[0] % 8); tcnt[0] += 1
        a("v_cvt_pk_f16_f32 v%d, v%d, %sv%d" % (t, src, "-" if neg else "", src + 1))
        a("ds_write_b32 v5, v%d offset:%d" % (t, buf * BUF + row * TP))
    def frags(dst, buf, addr=8, rowoff=0):
        for ks in range(4): a("ds_read_b128 v[%d:%d], v%d offset:%d" % (dst + 4 * ks, dst + 4 * ks + 3, addr, buf * BUF + rowoff * TP + ks * 64))
    def mm(tile, src):
        a("s_waitcnt lgkmcnt(0)")
        for ks in range(4):
            a("v_mfma_f32_16x16x32_f16 v[%d:%d], v[%d:%d], v[%d:%d], v[%d:%d]" % (92 + 4 * tile, 95 + 4 * tile, src + 4 * ks, src + 4 * ks + 3, 60 + 4 * ks, 63 + 4 * ks, 92 + 4 * tile, 95 + 4 * tile))
    cur, nxt = P0, P1
    for j in range(16):
        put(cur, 0, j, neg=True)
        if j < 15: cmul(a, nxt, cur, W4); cur, nxt = nxt, cur
    def pf():
        a("s_and_b32 s66, s2, 7"); a("s_lshl_b32 s66, s66, 8"); a("s_lshr_b32 s67, s2, 3"); a("s_lshl_b32 s67, s67, 3"); a("s_add_u32 s66, s66, s67")
        a("s_lshl_b32 s67, s20, 1"); a("s_add_u32 s66, s66, s67"); a("s_lshl_b32 s66, s66, 12"); a("s_add_u32 s67, s66, 4096")
        a("v_lshlrev_b32 v29, 6, v1")
        a("buffer_load_dword v48, v29, s[48:51], s66 offen"); a("buffer_load_dword v48, v29, s[48:51], s67 offen")
    if PFP == 1: pf()
    frags(60, 0)
    a("v_mov_b32 v%d, 1.0" % P0); a("v_mov_b32 v%d, 0" % (P0 + 1))
    cur, nxt = P0, P1
    for i1 in range(4):
        put(cur, 1, 4 * i1)
        for r, W in enumerate((W1, W2, W3)):
            if i1 == 0: put(W, 1, 1 + r)
            else: cmul(a, T0, cur, W); put(T0, 1, 4 * i1 + 1 + r)
        if i1 == 0: cur = W64
        else:
            d = P0 if cur != P0 else P1
            cmul(a, d, cur, W64); cur = d
    frags(76, 1)
    for k in range(12):
        if k < 4:
            put(cur, 0, 2 * k); cmul(a, T0, cur, W2); put(T0, 0, 2 * k + 1)
        else: put(cur, 0, 8 + k - 4)
        if k == 1: mm(0, 76)
        if k < 11:
            d = P0 if cur != P0 else P1
            cmul(a, d, cur, W64); cur = d
    frags(76, 0)
    if PFP == 2: pf()
    cur = W1K
    for k in range(17):
        put(cur, 1, k)
        if k == 2: mm(1, 76)
        if k < 16:
            d = P0 if cur != P0 else P1
            cmul(a, d, cur, W64); cur = d
    frags(76, 1); frags(30, 1, addr=9, rowoff=16)
    mm(2, 76); mm(3, 30)
    stamp(a, 2)
    a("s_cmp_eq_u32 s23, 0"); a("s_cbranch_scc0 KG_H1")
    for hh in range(2):
        snd, keep = (100, 92) if hh == 0 else (92, 100)
        if hh: a.label("KG_H1")
        a("ds_write_b128 v27, v[%d:%d] offset:%d" % (snd, snd + 3, EX)); a("ds_write_b128 v27, v[%d:%d] offset:%d" % (snd + 4, snd + 7, EX + 1024))
        a("s_waitcnt lgkmcnt(0)"); a("s_barrier")
        a("ds_read_b128 v[60:63], v28 offset:%d" % EX); a("ds_read_b128 v[64:67], v28 offset:%d" % (EX + 1024))
        a("s_waitcnt lgkmcnt(0)")
        for i in range(0, 8, 2): a("v_pk_add_f32 v[%d:%d], v[%d:%d], v[%d:%d]" % (60 + i, 61 + i, 60 + i, 61 + i, keep + i, keep + i + 1))
        for i in range(4): a("v_cvt_pk_f16_f32 v%d, v%d, v%d" % (68 + i, 60 + 2 * i, 61 + 2 * i))
        if hh == 0:
            a("ds_write_b64 v22, v[68:69]")
            a("ds_write_b16 v23, v70 offset:512"); a("ds_write_b16_d16_hi v24, v70 offset:512"); a("ds_write_b16 v23, v71 offset:576"); a("ds_write_b16_d16_hi v24, v71 offset:576")
            a("s_branch KG_G")
        else:
            a("s_mov_b32 exec_lo, 0x55555555"); a("s_mov_b32 exec_hi, 0x55555555")
            a("ds_write_b16 v25, v68 offset:1024"); a("ds_write_b16_d16_hi v25, v68 offset:1040"); a("ds_write_b16 v25, v69 offset:1056"); a("ds_write_b16_d16_hi v25, v69 offset:1072")
            a("ds_write_b16 v26, v70 offset:1280")
            a("s_mov_b64 exec, -1")
    a.label("KG_G")
    a("s_waitcnt lgkmcnt(0)"); a("s_barrier")
    for o in range(2):
        for k in range(9): a("ds_read_u16 v%d, v%d" % (108 + 9 * o + k, 108 + 9 * o + k), tag=("g", o))
    for o in range(2):
        a.wait_lg(("g", o))
        b = 108 + 9 * o
        for k in range(4): a("v_lshl_or_b32 v%d, v%d, 16, v%d" % (60 + 8 * o + k, b + 1 + 2 * k, b + 2 * k))
        for k in range(4): a("v_lshl_or_b32 v%d, v%d, 16, v%d" % (64 + 8 * o + k, b + 2 + 2 * k, b + 1 + 2 * k))
        a("buffer_store_dwordx4 v[%d:%d], v18, s[44:47], s13 offen offset:%d%s" % (60 + 8 * o, 63 + 8 * o, o * 1024, SC))
        a("buffer_store_dwordx4 v[%d:%d], v18, s[44:47], s14 offen offset:%d%s" % (64 + 8 * o, 67 + 8 * o, o * 1024, SC))
    a("s_cmp_eq_u32 s23, 0"); a("s_cbranch_scc1 P_END")
    a("v_mov_b32 v76, 0"); a("v_mov_b32 v77, 0"); a("v_mov_b32 v78, 0"); a("v_mov_b32 v79, 0"); a("s_mov_b64 exec, 1")
    a("buffer_store_dwordx4 v[76:79], v18, s[44:47], s13 offen offset:2048" + SC)
    a("buffer_store_dwordx4 v[76:79], v18, s[44:47], s14 offen offset:2048" + SC)
    endp(a, 0)

def reduce4(a, r):
    a("v_permlane32_swap_b32 v%d, v%d" % (r[0], r[2])); a("v_permlane32_swap_b32 v%d, v%d" % (r[1], r[3]))
    a("v_add_f32 v%d, v%d, v%d" % (r[0], r[0], r[2])); a("v_add_f32 v%d, v%d, v%d" % (r[1], r[1], r[3]))
    a("v_permlane16_swap_b32 v%d, v%d" % (r[0], r[1])); a("v_add_f32 v%d, v%d, v%d" % (r[0], r[0], r[1]))
    for sh in (1, 2, 4, 8): a("v_add_f32_dpp v%d, v%d, v%d row_shr:%d row_mask:0xf bank_mask:0xf" % (r[0], r[0], r[0], sh))

def role_x(a):
    a.reset_counts()
    for i, n in enumerate(("u", "ws")): load_ptr(a, 24 + 4 * i, n)
    a("s_sub_u32 s3, s2, %d" % O_X)
    a("s_lshl_b32 s4, s3, 2"); a("s_add_u32 s4, s4, s20"); a("s_lshl_b32 s4, s4, 12")
    a("v_lshlrev_b32 v2, 4, v1")
    a("s_waitcnt lgkmcnt(0)")
    for i, n in enumerate(("u", "ws")): make_srd(a, 24 + 4 * i, n)
    for r in range(4):
        a("buffer_load_dwordx4 v[%d:%d], v2, s[24:27], s4 offen offset:%d" % (32 + 4 * r, 35 + 4 * r, r * 1024), tag=r)
    a("s_mul_i32 s5, s20, %d" % (4 * XP)); a("v_add_u32 v3, s5, v2")
    a("v_mov_b32 v4, 0x3f803f80")
    a("v_lshrrev_b32 v5, 4, v1"); a("v_bfe_u32 v6, v1, 2, 2"); a("v_and_b32 v7, 3, v1")
    a("v_and_b32 v8, 1, v5"); a("v_lshl_add_u32 v8, v8, 3, v6"); a("v_mul_u32_u24 v8, %d, v8" % XP)
    a("v_lshl_add_u32 v8, v7, 3, v8"); a("v_lshrrev_b32 v9, 1, v5"); a("v_lshl_add_u32 v8, v9, 5, v8")
    a("s_lshl_b32 s6, s20, 8"); a("v_add_u32 v26, s6, v8")
    a("v_and_b32 v10, 15, v1"); a("v_lshl_add_u32 v10, v9, 4, v10")
    a("v_lshrrev_b32 v11, 2, v10"); a("v_lshlrev_b32 v11, 14, v11"); a("v_and_b32 v10, 3, v10"); a("v_lshl_add_u32 v11, v10, 4, v11")
    a("v_and_b32 v10, 1, v5"); a("v_lshl_add_u32 v27, v10, 6, v11")
    a("s_lshl_b32 s7, s20, 19"); a("s_lshl_b32 s8, s3, 7"); a("s_add_u32 s7, s7, s8")
    for r in range(4):
        a.wait_vm(r)
        a("ds_write_b128 v3, v[%d:%d] offset:%d" % (32 + 4 * r, 35 + 4 * r, r * XP))
        a("v_dot2_f32_bf16 v%d, v%d, v4, 0" % (8 + r, 32 + 4 * r))
        for q in range(1, 4): a("v_dot2_f32_bf16 v%d, v%d, v4, v%d" % (8 + r, 32 + 4 * r + q, 8 + r))
        for q in range(4):
            a("v_lshlrev_b32 v%d, 16, v%d" % (64 + 8 * r + 2 * q, 32 + 4 * r + q))
            a("v_and_b32 v%d, 0xffff0000, v%d" % (65 + 8 * r + 2 * q, 32 + 4 * r + q))
    stamp(a, 1)
    R = [8, 9, 10, 11]
    reduce4(a, R)
    a("v_mul_f32 v8, %s, v8" % fl(-1 / 512.))
    for r in range(4): a("v_readlane_b32 s%d, v8, %d" % (40 + 2 * r, 15 + 16 * r))
    bf16r(a, 16, 8)
    for r in range(4): a("v_readlane_b32 s%d, v16, %d" % (48 + 2 * r, 15 + 16 * r))
    for r in range(4):
        for q in range(4):
            e = 64 + 8 * r + 2 * q
            a("v_pk_add_f32 v[20:21], v[%d:%d], s[%d:%d] op_sel_hi:[1,0]" % (e, e + 1, 40 + 2 * r, 41 + 2 * r))
            if q == 0: a("v_pk_mul_f32 v[22:23], v[20:21], v[20:21]")
            else: a("v_pk_fma_f32 v[22:23], v[20:21], v[20:21], v[22:23]")
        a("v_add_f32 v%d, v22, v23" % (8 + r))
    reduce4(a, R)
    a("v_mul_f32 v8, %s, v8" % fl(1 / 512.)); bf16r(a, 8, 8)
    a("v_add_f32 v8, %s, v8" % fl(1e-5)); bf16r(a, 8, 8)
    a("v_sqrt_f32 v8, v8"); bf16r(a, 8, 8); a("v_rcp_f32 v8, v8")
    for r in range(4): a("v_readlane_b32 s%d, v8, %d" % (56 + 2 * r, 15 + 16 * r))
    for r in range(4):
        for q in range(4):
            e = 64 + 8 * r + 2 * q
            a("v_pk_add_f32 v[20:21], v[%d:%d], s[%d:%d] op_sel_hi:[1,0]" % (e, e + 1, 48 + 2 * r, 49 + 2 * r))
            a("v_cvt_pk_bf16_f32 v20, v20, v21")
            a("v_and_b32 v21, 0xffff0000, v20"); a("v_lshlrev_b32 v20, 16, v20")
            a("v_pk_mul_f32 v[20:21], v[20:21], s[%d:%d] op_sel_hi:[1,0]" % (56 + 2 * r, 57 + 2 * r))
            a("v_cvt_pk_bf16_f32 v%d, v20, v21" % (48 + 4 * r + q))
        a("ds_write_b128 v3, v[%d:%d] offset:%d" % (48 + 4 * r, 51 + 4 * r, 16 * XP + r * XP))
    stamp(a, 2)
    a("s_waitcnt lgkmcnt(0)"); a("s_barrier")
    for arr in range(2):
        for it in range(4):
            b = 64 + 16 * arr + 4 * it
            a("ds_read_b64_tr_b16 v[%d:%d], v26 offset:%d" % (b, b + 1, arr * 16 * XP + it * 64), tag=(arr, it))
            a("ds_read_b64_tr_b16 v[%d:%d], v26 offset:%d" % (b + 2, b + 3, arr * 16 * XP + it * 64 + 4 * XP), tag=(arr, it))
    for arr in (1, 0):
        for it in range(4):
            b = 64 + 16 * arr + 4 * it
            a("s_add_u32 s9, s7, %d" % ((WS_XNT if arr else WS_XT) + it * 16 * 8192))
            if arr == 1 and it == 0: a("s_waitcnt lgkmcnt(0)")
            a("buffer_store_dwordx4 v[%d:%d], v27, s[28:31], s9 offen%s" % (b, b + 3, SC))
    endp(a, 0)

def role_mod(a):
    a.reset_counts()
    for i, n in enumerate(("wmod", "c", "ws")): load_ptr(a, 24 + 4 * i, n)
    a("s_sub_u32 s3, s2, %d" % O_M)
    a("s_lshr_b32 s4, s3, 2"); a("s_and_b32 s5, s3, 3")
    a("v_lshrrev_b32 v2, 3, v1"); a("s_lshl_b32 s6, s5, 7"); a("s_lshl_b32 s7, s20, 5"); a("s_add_u32 s6, s6, s7")
    a("v_add_u32 v2, s6, v2")
    a("v_mul_u32_u24 v3, 6144, v2"); a("v_and_b32 v4, 7, v1"); a("v_lshl_add_u32 v3, v4, 4, v3")
    a("s_lshl_b32 s7, s4, 7")
    a("v_lshlrev_b32 v5, 1, v2")
    a("s_waitcnt lgkmcnt(0)")
    for i, n in enumerate(("wmod", "c", "ws")): make_srd(a, 24 + 4 * i, n)
    for it in range(4):
        a("buffer_load_dwordx4 v[%d:%d], v3, s[24:27], s7 offen" % (40 + 4 * it, 43 + 4 * it), tag=it)
        if it < 3: a("s_add_u32 s7, s7, %d" % (8 * 6144))
    for it in range(4): a("buffer_load_ushort v%d, v5, s[28:31], 0 offen offset:%d" % (30 + it, it * 16), tag="c")
    a("v_lshrrev_b32 v8, 4, v1"); a("s_lshl_b32 s8, s20, 2"); a("v_add_u32 v8, s8, v8"); a("v_lshlrev_b32 v8, 8, v8"); a("v_lshl_add_u32 v8, v4, 5, v8")
    a("v_lshlrev_b32 v9, 2, v1")
    a.wait_vm("c")
    for it in range(4):
        r = 30 + it
        a("v_lshlrev_b32 v%d, 16, v%d" % (r, r))
        a("v_mul_f32 v10, %s, v%d" % (fl(-LOG2E), r))
        a("v_exp_f32 v10, v10"); a("v_add_f32 v10, 1.0, v10"); a("v_rcp_f32 v10, v10")
        a("v_mul_f32 v%d, v%d, v10" % (r, r)); bf16r(a, r, r)
    for it in range(4):
        for q in range(4):
            w = 40 + 4 * it + q
            a("v_lshlrev_b32 v10, 16, v%d" % w); a("v_and_b32 v11, 0xffff0000, v%d" % w)
            op = "v_mul_f32" if it == 0 else "v_fmac_f32"
            a("%s v%d, v10, v%d" % (op, 80 + 2 * q, 30 + it)); a("%s v%d, v11, v%d" % (op, 81 + 2 * q, 30 + it))
    stamp(a, 2)
    for r in range(80, 88): a("v_add_f32_dpp v%d, v%d, v%d row_shr:8 row_mask:0xf bank_mask:0xf" % (r, r, r))
    a("s_mov_b32 exec_lo, 0xff00ff00"); a("s_mov_b32 exec_hi, 0xff00ff00")
    a("ds_write_b128 v8, v[80:83]"); a("ds_write_b128 v8, v[84:87] offset:16")
    a("s_mov_b64 exec, -1")
    a("s_waitcnt lgkmcnt(0)"); a("s_barrier")
    a("s_cmp_lg_u32 s20, 0"); a("s_cbranch_scc1 P_END")
    for i in range(16): a("ds_read_b32 v%d, v9 offset:%d" % (12 + i, i * 256))
    a("s_mul_i32 s9, s5, 12288"); a("s_lshl_b32 s10, s4, 8"); a("s_add_u32 s9, s9, s10"); a("s_add_u32 s9, s9, %d" % WS_MODP)
    a("s_waitcnt lgkmcnt(0)")
    for st in (8, 4, 2, 1):
        for i in range(st): a("v_add_f32 v%d, v%d, v%d" % (12 + i, 12 + i, 12 + i + st))
    a("buffer_store_dword v12, v9, s[32:35], s9 offen" + SC)
    endp(a, 0)

def pack_rows(a, src_srd, ws_srd, nit, pitch, s_src, s_dst, unit_stride, vsrc, lbl):
    for it in range(nit):
        a("buffer_load_dwordx4 v[%d:%d], v%d, s[%d:%d], s%d offen" % (32 + 4 * it, 35 + 4 * it, vsrc, src_srd, src_srd + 3, s_src), tag=it)
        if it < nit - 1: a("s_add_u32 s%d, s%d, %d" % (s_src, s_src, 64 * pitch))
    a("v_lshlrev_b32 v4, 4, v0")
    a("v_lshrrev_b32 v5, 4, v1"); a("v_bfe_u32 v6, v1, 2, 2"); a("v_and_b32 v7, 3, v1")
    a("v_lshl_add_u32 v8, v5, 3, v6"); a("v_lshlrev_b32 v8, 6, v8"); a("v_lshl_add_u32 v8, v7, 4, v8")
    a("s_lshr_b32 s6, s20, 1"); a("s_and_b32 s7, s20, 1")
    a("s_lshl_b32 s9, s6, 11"); a("s_lshl_b32 s10, s7, 3"); a("s_add_u32 s9, s9, s10"); a("v_add_u32 v8, s9, v8")
    a("v_lshlrev_b32 v9, 4, v1")
    a("s_lshl_b32 s9, s6, 10"); a("s_mul_i32 s10, s7, %d" % unit_stride); a("s_add_u32 s9, s9, s10"); a("s_add_u32 s%d, s%d, s9" % (s_dst, s_dst))
    for it in range(nit):
        a.wait_vm(it)
        a("ds_write_b128 v4, v[%d:%d] offset:%d" % (32 + 4 * it, 35 + 4 * it, it * 4096))
    a("s_waitcnt lgkmcnt(0)"); a("s_barrier")
    for it in range(nit):
        b = 32 + 4 * it
        a("ds_read_b64_tr_b16 v[%d:%d], v8 offset:%d" % (b, b + 1, it * 4096), tag=("t", it))
        a("ds_read_b64_tr_b16 v[%d:%d], v8 offset:%d" % (b + 2, b + 3, it * 4096 + 256), tag=("t", it))
    for it in range(nit):
        b = 32 + 4 * it
        if it and it % 2 == 0: a("s_add_u32 s%d, s%d, 4096" % (s_dst, s_dst))
        a.wait_lg(("t", it))
        a("buffer_store_dwordx4 v[%d:%d], v9, s[%d:%d], s%d offen offset:%d%s" % (b, b + 3, ws_srd, ws_srd + 3, s_dst, (it & 1) * 2048, SC))

def role_pack(a):
    a.reset_counts()
    load_ptr(a, 24, "win"); load_ptr(a, 28, "ws")
    a("s_sub_u32 s3, s2, %d" % O_P); a("s_and_b32 s11, s3, 3"); a("s_lshr_b32 s3, s3, 2")
    a("s_cmp_ge_u32 s3, 22"); a("s_cselect_b32 s4, 22, 0"); a("s_cselect_b32 s5, 1376, 0")
    a("s_sub_u32 s4, s3, s4")
    a("s_lshl_b32 s6, s4, 6"); a("s_add_u32 s5, s5, s6"); a("s_mul_i32 s6, s11, %d" % (128 * 2752)); a("s_add_u32 s5, s5, s6")
    a("v_lshrrev_b32 v2, 2, v1"); a("s_lshl_b32 s6, s20, 4"); a("v_add_u32 v2, s6, v2")
    a("v_mul_u32_u24 v3, 2752, v2"); a("v_and_b32 v4, 3, v1"); a("v_lshl_add_u32 v3, v4, 4, v3")
    a("s_cmp_eq_u32 s4, 21"); a("s_cselect_b32 s7, 2, 4")
    a("v_cmp_gt_u32 vcc, s7, v4"); a("v_mov_b32 v5, 0x7f000000"); a("v_cndmask_b32 v3, v5, v3, vcc")
    a("s_lshl_b32 s8, s3, 15"); a("s_lshl_b32 s6, s11, 12"); a("s_add_u32 s8, s8, s6"); a("s_add_u32 s8, s8, %d" % WS_WRAW)
    a("s_waitcnt lgkmcnt(0)")
    make_srd(a, 24, "win"); make_srd(a, 28, "ws")
    pack_rows(a, 24, 28, 2, 2752, 5, 8, 16384, 3, "P")
    endp(a, 0)

def gen_prep():
    a = Asm()
    stamp_init(a)
    a("v_and_b32 v1, 63, v0"); a("v_lshrrev_b32 v2, 6, v0"); a("v_readfirstlane_b32 s20, v2")
    a("s_cmp_ge_u32 s2, %d" % PREP_GRID); a("s_cbranch_scc1 P_END")
    a("s_cmp_ge_u32 s2, %d" % O_W); a("s_cbranch_scc1 P_WOUT")
    a("s_cmp_ge_u32 s2, %d" % O_P); a("s_cbranch_scc1 P_PACK")
    a("s_cmp_ge_u32 s2, %d" % O_M); a("s_cbranch_scc1 P_MOD")
    a("s_cmp_ge_u32 s2, %d" % O_X); a("s_cbranch_scc1 P_X")
    role_kgen(a)
    a.label("P_MOD"); role_mod(a)
    a.label("P_X"); role_x(a)
    a.label("P_PACK"); role_pack(a)
    a.label("P_WOUT"); role_wout(a)
    a.label("P_END"); endp(a, 0)
    return a

def role_wout(a):
    a.reset_counts()
    load_ptr(a, 24, "wout"); load_ptr(a, 28, "ws")
    a("s_sub_u32 s3, s2, %d" % O_W); a("s_and_b32 s4, s3, 15"); a("s_lshr_b32 s11, s3, 4")
    a("s_lshl_b32 s5, s4, 6"); a("s_lshl_b32 s6, s11, 18"); a("s_add_u32 s5, s5, s6")
    a("v_lshrrev_b32 v2, 2, v1"); a("s_lshl_b32 s6, s20, 4"); a("v_add_u32 v2, s6, v2")
    a("v_lshlrev_b32 v3, 10, v2"); a("v_and_b32 v4, 3, v1"); a("v_lshl_add_u32 v3, v4, 4, v3")
    a("s_mul_i32 s8, s4, %d" % (2 * 24 * 1024)); a("s_lshl_b32 s6, s11, 13"); a("s_add_u32 s8, s8, s6"); a("s_add_u32 s8, s8, %d" % WS_WOUT)
    a("s_waitcnt lgkmcnt(0)")
    make_srd(a, 24, "wout"); make_srd(a, 28, "ws")
    pack_rows(a, 24, 28, 4, 1024, 5, 8, 24 * 1024, 3, "W")
    endp(a, 0)
```

```python
from gen_common import *
import math
NC, NX, NM, NP, NW = 256, 128, 192, 88, 48
NARR = (NX + NM) // 2
XP = 1056
O_C, O_X, O_M, O_P, O_W = 0, NC, NC + NX, NC + NX + NM, NC + NX + NM + NP
PFM = int(os.environ.get('PFM', '1'))
PRIO = int(os.environ.get('PRIO', '1'))
GRID = O_W + NW
TP = 272; BUF = 17 * TP
CSZ = 4160
UB = 8 * CSZ; USZ = 7680
XR = UB + 2 * USZ
KC = XR; KCS = 1536
LDS = KC + 2 * KCS
SC = " sc1"
SS = " sc0 sc1"
WS_ST = WS_XT
PFT = (4, 5)
KI = 0

def rnd_pk(a, p):
    a("v_cvt_pk_bf16_f32 v%d, v%d, v%d" % (p, p, p + 1))
    a("v_and_b32 v%d, 0xffff0000, v%d" % (p + 1, p)); a("v_lshlrev_b32 v%d, 16, v%d" % (p, p))

def signal(a, dbg, lbl):
    a("s_waitcnt vmcnt(0)")
    a("s_and_b32 s70, s2, 1"); a("s_lshl_b32 s71, s70, 2"); a("s_lshl_b32 s70, s70, 6")
    a("v_mov_b32 v2, 1"); a("v_mov_b32 v3, 0"); a("s_mov_b64 exec, 1")
    a("buffer_atomic_add v2, v3, s[%d:%d], s70 offen sc0 sc1" % (dbg, dbg + 3))
    a("s_waitcnt vmcnt(0)")
    a("v_cmp_eq_u32 vcc, %d, v2" % (NARR - 1))
    a("s_cbranch_vccz %s" % lbl)
    a("v_mov_b32 v2, 1")
    a("buffer_store_dword v2, v3, s[%d:%d], s71 offen offset:128 sc0 sc1" % (dbg, dbg + 3))
    a.label(lbl)

def poll(a, dbg, lbl, va, vd):
    a("v_lshlrev_b32 v%d, 2, v1" % va); a("s_mov_b32 s71, 0"); a("s_mov_b64 exec, 3")
    a.label(lbl)
    a("buffer_load_dword v%d, v%d, s[%d:%d], 0 offen offset:128 sc1" % (vd, va, dbg, dbg + 3))
    a("s_add_u32 s71, s71, 1")
    a("s_waitcnt vmcnt(0)")
    a("v_cmp_ne_u32 vcc, 1, v%d" % vd)
    a("s_cmp_gt_u32 s71, 400000"); a("s_cbranch_scc1 %s_X" % lbl)
    a("s_cbranch_vccz %s_X" % lbl)
    a("s_sleep 2")
    a("s_branch %s" % lbl)
    a.label(lbl + "_X")
    a("s_mov_b64 exec, -1")

def role_conv(a):
    names = ("logA", "Aim", "Cr", "Ci", "logdt", "ws", "wsp", "u", "dbg", "Dsk")
    for i, n in enumerate(names): load_ptr(a, 24 + 4 * i, n)
    a("s_sub_u32 s68, s2, %d" % O_C)
    WS, WSP, U, DBG, DSK = 44, 48, 52, 56, 60
    a("s_lshr_b32 s21, s20, 1"); a("s_and_b32 s23, s20, 1")
    a("s_and_b32 s19, s68, 7"); a("s_lshl_b32 s19, s19, 5"); a("s_lshr_b32 s6, s68, 3"); a("s_add_u32 s19, s19, s6")
    a("s_lshl_b32 s22, s19, 1"); a("s_add_u32 s22, s22, s21")
    a("s_lshl_b32 s4, s22, 8"); a("s_lshl_b32 s5, s23, 7")
    a("v_lshlrev_b32 v2, 1, v1"); a("v_add_u32 v2, s5, v2"); a("v_xor_b32 v3, 128, v2")
    a("s_lshl_b32 s6, s22, 1"); a("v_mov_b32 v4, s6")
    a("s_waitcnt lgkmcnt(0)")
    for i, n in enumerate(names): make_srd(a, 24 + 4 * i, n)
    a("buffer_load_ushort v10, v4, s[40:43], 0 offen")
    a("buffer_load_ushort v11, v2, s[24:27], s4 offen"); a("buffer_load_ushort v12, v2, s[28:31], s4 offen")
    a("buffer_load_ushort v13, v2, s[32:35], s4 offen"); a("buffer_load_ushort v14, v2, s[36:39], s4 offen")
    a("buffer_load_ushort v15, v3, s[32:35], s4 offen"); a("buffer_load_ushort v16, v3, s[36:39], s4 offen")
    a("buffer_load_ushort v49, v4, s[%d:%d], 0 offen" % (DSK, DSK + 3))
    a("v_mov_b32 v56, -1"); a("v_mov_b32 v57, -1"); a("v_lshlrev_b32 v58, 3, v1")
    a("s_lshl_b32 s16, s68, 9"); a("s_add_u32 s16, s16, %d" % WS_ZST)
    a("buffer_store_dwordx2 v[56:57], v58, s[%d:%d], s16 offen%s" % (WS, WS + 3, SC))
    NAFTER = 1
    a("s_mul_i32 s7, s20, %d" % (2 * BUF))
    a("v_lshl_add_u32 v5, v1, 2, s7")
    a("v_and_b32 v6, 15, v1"); a("v_lshrrev_b32 v7, 4, v1")
    a("v_lshl_add_u32 v9, v7, 4, s7"); a("v_mul_u32_u24 v8, %d, v6" % TP); a("v_add_u32 v8, v8, v9")
    for i in range(16): a("v_mov_b32 v%d, 0" % (92 + i))
    a("s_mul_i32 s15, s21, %d" % KCS); a("s_add_u32 s15, s15, %d" % (KC + 16))
    a("v_mov_b32 v55, s15"); a("v_subrev_u32 v55, 8, v55"); a("ds_write_b64 v55, v[92:93]")
    a("v_lshlrev_b32 v22, 7, v7"); a("v_lshl_add_u32 v22, v6, 3, v22"); a("v_add_u32 v22, s15, v22")
    a("v_cmp_gt_u32 vcc, 2, v7")
    a("v_lshlrev_b32 v23, 1, v6"); a("v_lshlrev_b32 v24, 2, v6"); a("v_cndmask_b32 v23, v23, v24, vcc")
    a("v_lshl_add_u32 v23, v7, 7, v23"); a("v_add_u32 v23, s15, v23")
    a("v_mov_b32 v24, 32"); a("v_cndmask_b32 v24, v24, 2, vcc"); a("v_add_u32 v24, v24, v23")
    a("v_lshlrev_b32 v25, 6, v7"); a("v_add_u32 v25, v25, v6"); a("v_add_u32 v25, s15, v25")
    a("v_add_u32 v26, s15, v6")
    a("s_lshl_b32 s16, s23, 6"); a("v_add_u32 v29, s16, v1")
    a("v_lshlrev_b32 v60, 4, v29"); a("v_sub_u32 v60, 2047, v60"); a("v_cvt_f32_u32 v61, v60"); a("v_lshl_add_u32 v60, v60, 1, s15")
    a("s_add_u32 s16, s15, 256"); a("s_sub_u32 s17, s15, 0x8500")
    for k in range(0, 20, 2):
        a("v_subrev_f32 v62, %s, v61" % fl(float(k))); a("v_subrev_f32 v63, %s, v61" % fl(float(k + 1)))
        if k >= 16: a("v_max_f32 v62, 0, v62"); a("v_max_f32 v63, 0, v63")
        a("v_cvt_pk_bf16_f32 v62, v62, v63")
        a("v_lshrrev_b32 v63, 16, v62"); a("v_and_b32 v62, 0xffff, v62")
        a("v_lshl_add_u32 v62, v62, 1, s17"); a("v_subrev_u32 v64, %d, v60" % (2 * k)); a("v_med3_i32 v%d, v62, v64, s16" % (108 + k))
        if k < 18:
            a("v_lshl_add_u32 v63, v63, 1, s17"); a("v_subrev_u32 v64, %d, v60" % (2 * k + 2)); a("v_med3_i32 v%d, v63, v64, s16" % (109 + k))
    a("s_mul_i32 s14, s21, %d" % (4 * CSZ)); a("v_lshl_add_u32 v29, v29, 5, s14")
    a("v_lshlrev_b32 v18, 4, v1")
    a("v_add_u32 v27, s7, v18"); a("s_xor_b32 s18, s20, 1"); a("s_mul_i32 s18, s18, %d" % (2 * BUF)); a("v_add_u32 v28, s18, v18")
    a("s_waitcnt vmcnt(%d)" % (NAFTER + 5))
    stamp(a, 1)
    for r in (10, 11, 12): a("v_lshlrev_b32 v%d, 16, v%d" % (r, r))
    exp_acc(a, 10, 10, 20, 21); bf16r(a, 10, 10)
    exp_acc(a, 11, 11, 20, 21); bf16r(a, 11, 11)
    a("v_mul_f32 v11, v11, v10"); a("v_mul_f32 v12, v12, v10")
    a("v_mul_f32 v11, %s, v11" % fl(-LOG2E)); a("v_mul_f32 v12, %s, v12" % fl(1.0 / (2 * math.pi)))
    def direct(dst, p):
        t0, t1 = 20, 21
        if p == 1:
            a("v_exp_f32 v%d, v11" % t0); a("v_fract_f32 v%d, v12" % t1)
        else:
            a("v_mul_f32 v%d, %s, v11" % (t0, fl(float(p)))); a("v_mul_f32 v%d, %s, v12" % (t1, fl(float(p))))
            a("v_exp_f32 v%d, v%d" % (t0, t0)); a("v_fract_f32 v%d, v%d" % (t1, t1))
        a("v_cos_f32 v%d, v%d" % (dst, t1)); a("v_sin_f32 v%d, v%d" % (dst + 1, t1))
        a("v_mul_f32 v%d, v%d, v%d" % (dst, dst, t0)); a("v_mul_f32 v%d, v%d, v%d" % (dst + 1, dst + 1, t0))
    W1, W2, W3, W4, W64, W1K = 30, 32, 34, 36, 38, 40
    direct(W1, 1); direct(W4, 4); direct(W64, 64); direct(W1K, 1024)
    cmul(a, W2, W1, W1); cmul(a, W3, W2, W1)
    a("s_waitcnt vmcnt(%d)" % NAFTER)
    a("v_and_b32 v17, 0x7fff, v13"); a("v_and_b32 v19, 0x7fff, v14"); a("v_and_b32 v15, 0x7fff, v15"); a("v_and_b32 v16, 0x7fff, v16")
    a("v_max3_u32 v17, v17, v19, v15"); a("v_max_u32 v17, v17, v16")
    for sh in (1, 2, 4, 8): a("v_max_u32_dpp v17, v17, v17 row_shr:%d row_mask:0xf bank_mask:0xf" % sh)
    a("v_max_u32_dpp v17, v17, v17 row_bcast:15 row_mask:0xa bank_mask:0xf")
    a("v_max_u32_dpp v17, v17, v17 row_bcast:31 row_mask:0xc bank_mask:0xf")
    a("v_readlane_b32 s8, v17, 63")
    a("s_lshl_b32 s8, s8, 16"); a("s_and_b32 s8, s8, 0x7f800000"); a("s_min_u32 s8, s8, 0x7e800000"); a("s_sub_u32 s9, 0x7f000000, s8")
    P0, P1, T0 = 42, 44, 46
    a("v_lshlrev_b32 v13, 16, v13"); a("v_lshlrev_b32 v14, 16, v14")
    a("v_mul_f32 v%d, s9, v13" % P0); a("v_mul_f32 v%d, s9, v14" % (P0 + 1))
    a("v_mul_f32 v48, s8, v10"); a("v_add_f32 v48, v48, v48")
    tcnt = [0]
    def put(src, buf, row, neg=False):
        t = 50 + (tcnt[0] % 8); tcnt[0] += 1
        a("v_cvt_pk_f16_f32 v%d, v%d, %sv%d" % (t, src, "-" if neg else "", src + 1))
        a("ds_write_b32 v5, v%d offset:%d" % (t, buf * BUF + row * TP))
    def frags(dst, buf, addr=8, rowoff=0):
        for ks in range(4): a("ds_read_b128 v[%d:%d], v%d offset:%d" % (dst + 4 * ks, dst + 4 * ks + 3, addr, buf * BUF + rowoff * TP + ks * 64))
    def mm(tile, src):
        a("s_waitcnt lgkmcnt(0)")
        for ks in range(4):
            a("v_mfma_f32_16x16x32_f16 v[%d:%d], v[%d:%d], v[%d:%d], v[%d:%d]" % (92 + 4 * tile, 95 + 4 * tile, src + 4 * ks, src + 4 * ks + 3, 60 + 4 * ks, 63 + 4 * ks, 92 + 4 * tile, 95 + 4 * tile))
    cur, nxt = P0, P1
    for j in range(16):
        put(cur, 0, j, neg=True)
        if j < 15: cmul(a, nxt, cur, W4); cur, nxt = nxt, cur
    frags(60, 0)
    a("v_mov_b32 v%d, 1.0" % P0); a("v_mov_b32 v%d, 0" % (P0 + 1))
    cur = P0
    for i1 in range(4):
        put(cur, 1, 4 * i1)
        for r, W in enumerate((W1, W2, W3)):
            if i1 == 0: put(W, 1, 1 + r)
            else: cmul(a, T0, cur, W); put(T0, 1, 4 * i1 + 1 + r)
        if i1 == 0: cur = W64
        else:
            d = P0 if cur != P0 else P1
            cmul(a, d, cur, W64); cur = d
    frags(76, 1)
    for k in range(12):
        if k < 4:
            put(cur, 0, 2 * k); cmul(a, T0, cur, W2); put(T0, 0, 2 * k + 1)
        else: put(cur, 0, 8 + k - 4)
        if k == 1: mm(0, 76)
        if k < 11:
            d = P0 if cur != P0 else P1
            cmul(a, d, cur, W64); cur = d
    frags(76, 0)
    cur = W1K
    for k in range(17):
        put(cur, 1, k)
        if k == 2: mm(1, 76)
        if k < 16:
            d = P0 if cur != P0 else P1
            cmul(a, d, cur, W64); cur = d
    frags(76, 1); frags(30, 1, addr=9, rowoff=16)
    mm(2, 76); mm(3, 30)
    a("s_cmp_eq_u32 s23, 0"); a("s_cbranch_scc0 KG_H1")
    for hh in range(2):
        snd, keep = (100, 92) if hh == 0 else (92, 100)
        if hh: a.label("KG_H1")
        a("ds_write_b128 v27, v[%d:%d]" % (snd, snd + 3)); a("ds_write_b128 v27, v[%d:%d] offset:1024" % (snd + 4, snd + 7))
        a("s_waitcnt lgkmcnt(0)"); a("s_barrier")
        a("ds_read_b128 v[60:63], v28"); a("ds_read_b128 v[64:67], v28 offset:1024")
        a("s_waitcnt lgkmcnt(0)")
        for i in range(0, 8, 2): a("v_pk_add_f32 v[%d:%d], v[%d:%d], v[%d:%d]" % (60 + i, 61 + i, 60 + i, 61 + i, keep + i, keep + i + 1))
        for i in range(4): a("v_cvt_pk_f16_f32 v%d, v%d, v%d" % (68 + i, 60 + 2 * i, 61 + 2 * i))
        if hh == 0:
            a("ds_write_b64 v22, v[68:69]")
            a("ds_write_b16 v23, v70 offset:512"); a("ds_write_b16_d16_hi v24, v70 offset:512"); a("ds_write_b16 v23, v71 offset:576"); a("ds_write_b16_d16_hi v24, v71 offset:576")
            a("s_branch KG_G")
        else:
            a("s_mov_b32 exec_lo, 0x55555555"); a("s_mov_b32 exec_hi, 0x55555555")
            a("ds_write_b16 v25, v68 offset:1024"); a("ds_write_b16_d16_hi v25, v68 offset:1040"); a("ds_write_b16 v25, v69 offset:1056"); a("ds_write_b16_d16_hi v25, v69 offset:1072")
            a("ds_write_b16 v26, v70 offset:1280")
            a("s_mov_b64 exec, -1")
    a.label("KG_G")
    a("s_waitcnt lgkmcnt(0)"); a("s_barrier")
    for k in range(19): a("ds_read_u16 v%d, v%d" % (108 + k, 108 + k))
    for i in range(4): a("v_mov_b32 v%d, 0" % (32 + i))
    a("v_lshrrev_b32 v36, 7, v0"); a("v_mul_u32_u24 v36, %d, v36" % USZ)
    a("v_and_b32 v37, 127, v0"); a("v_add_u32 v38, 128, v37"); a("v_min_u32 v38, 154, v38")
    a("v_lshl_add_u32 v37, v37, 4, v36"); a("v_lshl_add_u32 v38, v38, 4, v36")
    a("v_bfe_u32 v36, v0, 2, 3"); a("v_mul_u32_u24 v36, %d, v36" % CSZ); a("v_and_b32 v39, 3, v0"); a("v_lshl_add_u32 v36, v39, 4, v36")
    a("s_waitcnt lgkmcnt(0)")
    a("ds_write_b128 v37, v[32:35] offset:%d" % UB); a("ds_write_b128 v38, v[32:35] offset:%d" % UB); a("ds_write_b128 v36, v[32:35] offset:4096")
    E, O = 60, 70
    for k in range(9): a("v_lshl_or_b32 v%d, v%d, 16, v%d" % (E + k, 109 + 2 * k, 108 + 2 * k))
    for k in range(9): a("v_lshl_or_b32 v%d, v%d, 16, v%d" % (O + k, 110 + 2 * k, 109 + 2 * k))
    for cp, R in ((0, E), (1, O)):
        a("ds_write_b128 v29, v[%d:%d] offset:%d" % (R, R + 3, cp * CSZ)); a("ds_write_b128 v29, v[%d:%d] offset:%d" % (R + 4, R + 7, cp * CSZ + 16))
    a("v_add_u32 v36, %d, v29" % (2 * CSZ)); a("v_add_u32 v37, %d, v29" % (3 * CSZ))
    for ad, R in ((36, E), (37, O)):
        for k in range(4): a("ds_write2_b32 v%d, v%d, v%d offset0:%d offset1:%d" % (ad, R + 1 + 2 * k, R + 2 + 2 * k, 2 * k, 2 * k + 1))
    a("v_lshlrev_b32 v2, 4, v1")
    a("v_and_b32 v4, 31, v1"); a("v_lshrrev_b32 v5, 5, v1")
    a("v_and_b32 v28, 3, v4"); a("v_sub_u32 v28, 3, v28"); a("v_mul_u32_u24 v28, %d, v28" % CSZ)
    a("v_lshrrev_b32 v29, 2, v4"); a("v_lshlrev_b32 v29, 3, v29"); a("v_sub_u32 v28, v28, v29"); a("v_lshl_add_u32 v28, v5, 4, v28")
    a("s_lshl_b32 s17, s23, 5"); a("s_add_u32 s16, s14, s17"); a("s_add_u32 s16, s16, 56"); a("v_add_u32 v28, s16, v28")
    a("v_mul_u32_u24 v29, 80, v4"); a("v_lshl_add_u32 v30, v5, 4, v29")
    a("s_mul_i32 s18, s21, %d" % USZ); a("s_add_u32 s16, s18, s17"); a("s_add_u32 s16, s16, %d" % UB); a("v_add_u32 v30, s16, v30")
    a("v_lshl_add_u32 v31, v5, 3, v29"); a("s_mul_i32 s16, s23, 2560"); a("s_add_u32 s16, s16, s18"); a("s_add_u32 s16, s16, %d" % (UB + 31 * 80)); a("v_add_u32 v31, s16, v31")
    a("v_lshlrev_b32 v88, 8, v4"); a("v_lshl_add_u32 v88, v5, 3, v88")
    a("v_lshrrev_b32 v32, 3, v0"); a("v_mul_u32_u24 v32, 80, v32"); a("v_bfe_u32 v33, v0, 1, 2"); a("v_lshl_add_u32 v32, v33, 4, v32")
    a("v_and_b32 v33, 1, v0"); a("v_mul_u32_u24 v34, %d, v33" % USZ); a("v_add_u32 v32, v32, v34")
    a("v_cmp_eq_u32 s[64:65], 1, v33")
    a("v_lshrrev_b32 v3, 1, v0"); a("v_lshlrev_b32 v3, 6, v3"); a("v_lshl_add_u32 v3, v33, 4, v3")
    a("s_lshr_b32 s10, s19, 1"); a("s_lshl_b32 s10, s10, 14"); a("s_and_b32 s11, s19, 1"); a("s_lshl_b32 s11, s11, 5"); a("s_add_u32 s10, s10, s11")
    a("s_add_u32 s11, s10, %d" % WS_XT); a("s_add_u32 s10, s10, %d" % WS_XNT)
    a("s_lshl_b32 s13, s23, 13"); a("s_add_u32 s11, s11, s13"); a("s_lshl_b32 s13, s21, 4"); a("s_add_u32 s11, s11, s13")
    a("v_lshrrev_b32 v36, 2, v1"); a("v_lshlrev_b32 v36, 11, v36"); a("v_and_b32 v37, 3, v1"); a("v_mul_u32_u24 v37, 12288, v37"); a("v_add_u32 v36, v36, v37")
    a("s_lshl_b32 s12, s19, 3"); a("s_add_u32 s12, s12, %d" % WS_MODP)
    a("s_and_b32 s66, s68, 7"); a("s_lshl_b32 s66, s66, 8"); a("s_lshr_b32 s67, s68, 3"); a("s_lshl_b32 s67, s67, 3"); a("s_add_u32 s66, s66, s67")
    a("s_lshl_b32 s67, s20, 1"); a("s_add_u32 s66, s66, s67"); a("s_lshl_b32 s66, s66, 12")
    a("v_lshlrev_b32 v92, 6, v1")
    for i in range(32): a("v_mov_b32 v%d, 0" % (96 + i))
    stamp(a, 2)
    npre = {0: 0, 1: 1, 2: 2}[PFM]
    a("s_cmp_eq_u32 s20, 0"); a("s_cbranch_scc1 CV_P0")
    for _ in range(npre): a("buffer_load_dword v93, v92, s[%d:%d], s66 offen" % (WSP, WSP + 3)); a("s_add_u32 s66, s66, 4096")
    a("s_branch CV_W")
    a.label("CV_P0")
    poll(a, DBG, "CV_POLL", 38, 39)
    for _ in range(npre): a("buffer_load_dword v93, v92, s[%d:%d], s66 offen" % (WSP, WSP + 3)); a("s_add_u32 s66, s66, 4096")
    a.label("CV_W")
    a("s_waitcnt lgkmcnt(0)"); a("s_barrier")
    stamp(a, 3)
    a("s_mov_b64 exec, 0xfff")
    a("buffer_load_dwordx2 v[38:39], v36, s[%d:%d], s12 offen%s" % (WS, WS + 3, SS))
    a("s_mov_b64 exec, -1")
    a("buffer_load_dwordx4 v[8:11], v3, s[%d:%d], s10 offen%s" % (WS, WS + 3, SS))
    a("s_add_u32 s10, s10, 8192")
    a("buffer_load_dwordx4 v[12:15], v3, s[%d:%d], s10 offen%s" % (WS, WS + 3, SS))
    a("s_waitcnt vmcnt(2)")
    for r in (38, 39):
        a("v_add_f32_dpp v%d, v%d, v%d quad_perm:[1,0,3,2] row_mask:0xf bank_mask:0xf" % (r, r, r))
        a("v_add_f32_dpp v%d, v%d, v%d quad_perm:[2,3,0,1] row_mask:0xf bank_mask:0xf" % (r, r, r))
    rnd_pk(a, 38)
    for sec in range(3):
        for c in range(2): a("v_readlane_b32 s%d, v%d, %d" % (72 + 2 * sec + c, 38 + c, 4 * sec))
    a("v_mov_b32 v40, s74"); a("v_mov_b32 v41, s75"); a("v_mov_b32 v42, s72"); a("v_mov_b32 v43, s73")
    a("v_pk_add_f32 v[40:41], v[40:41], 1.0 op_sel_hi:[1,0]"); rnd_pk(a, 40)
    for c in range(2):
        a("v_mul_f32 v%d, %s, v%d" % (44 + c, fl(23.0), 40 + c)); a("v_add_f32 v%d, abs(v%d), abs(v%d)" % (44 + c, 44 + c, 42 + c))
        a("v_and_b32 v%d, 0x7f800000, v%d" % (44 + c, 44 + c)); a("v_max_u32 v%d, 0x%x, v%d" % (44 + c, 14 << 23, 44 + c)); a("v_min_u32 v%d, 0x7f000000, v%d" % (44 + c, 44 + c))
        a("v_sub_u32 v%d, 0x%x, v%d" % (46 + c, 267 << 23, 44 + c)); a("v_subrev_u32 v%d, 0x%x, v%d" % (44 + c, 13 << 23, 44 + c))
    a("v_pk_mul_f32 v[40:41], v[40:41], v[46:47]"); a("v_pk_mul_f32 v[42:43], v[42:43], v[46:47]")
    a("s_cmp_eq_u32 s21, 0"); a("s_cselect_b64 vcc, -1, 0"); a("s_cselect_b32 s28, s76, s77")
    a("v_cndmask_b32 v44, v45, v44, vcc"); a("v_lshlrev_b32 v49, 16, v49")
    a("v_mul_f32 v48, v48, v44"); a("v_mul_f32 v49, v49, v44")
    a("v_readfirstlane_b32 s24, v48"); a("v_readfirstlane_b32 s26, v49")
    a("v_cndmask_b32 v40, v40, v41, s[64:65]"); a("v_cndmask_b32 v42, v42, v43, s[64:65]")
    for i in range(2):
        a("s_waitcnt vmcnt(%d)" % (1 - i))
        for q in range(4):
            w = 8 + 4 * i + q; p = 70 + 2 * (q & 1)
            a("v_lshlrev_b32 v%d, 16, v%d" % (p, w)); a("v_and_b32 v%d, 0xffff0000, v%d" % (p + 1, w))
            a("v_pk_mul_f32 v[%d:%d], v[%d:%d], v[40:41] op_sel_hi:[1,0]" % (p, p + 1, p, p + 1)); rnd_pk(a, p)
            a("v_pk_add_f32 v[%d:%d], v[%d:%d], v[42:43] op_sel_hi:[1,0]" % (p, p + 1, p, p + 1)); rnd_pk(a, p)
            a("v_cvt_pk_f16_f32 v%d, v%d, v%d" % (w, p, p + 1))
        a("ds_write_b128 v32, v[%d:%d] offset:%d" % (8 + 4 * i, 11 + 4 * i, UB + 31 * 80 + i * 2560))
    a("s_waitcnt lgkmcnt(0)"); a("s_barrier")
    stamp(a, 4)
    a.reset_counts()
    def loads(t):
        b = 40 + 16 * (t % 3); ops = []
        for j, m in enumerate((t, t + 32)):
            off = 4032 - 64 * m
            ops.append("ds_read_b64 v[%d:%d], v28 offset:%d" % (b + 4 * j, b + 4 * j + 1, off))
            ops.append("ds_read_b64 v[%d:%d], v28 offset:%d" % (b + 4 * j + 2, b + 4 * j + 3, off + 8))
        ops.append("ds_read_b128 v[%d:%d], v30 offset:%d" % (b + 8, b + 11, (31 - t) * 80))
        ops.append("ds_read_b128 v[%d:%d], v30 offset:%d" % (b + 12, b + 15, (63 - t) * 80))
        return ops
    for t in range(2):
        for o in loads(t): a(o, tag=("c", t))
    for t in range(32):
        nx = loads(t + 2) if t + 2 < 32 else []
        a.wait_lg(("c", t))
        b = 40 + 16 * (t % 3)
        ms = ["v_mfma_f32_32x32x16_f16 v[96:111], v[%d:%d], v[%d:%d], v[96:111]" % (b, b + 3, b + 8, b + 11),
              "v_mfma_f32_32x32x16_f16 v[112:127], v[%d:%d], v[%d:%d], v[112:127]" % (b, b + 3, b + 12, b + 15),
              "v_mfma_f32_32x32x16_f16 v[112:127], v[%d:%d], v[%d:%d], v[112:127]" % (b + 4, b + 7, b + 8, b + 11)]
        for i, m in enumerate(ms):
            a(m)
            for o in nx[2 * i: 2 * i + 2]: a(o, tag=("c", t + 2))
        if t < 4: a("buffer_load_dwordx2 v[%d:%d], v88, s[%d:%d], s11 offen offset:%d%s" % (16 + 2 * t, 17 + 2 * t, WS, WS + 3, t * 64, SS))
        if t in PFT[npre:]:
            a("buffer_load_dword v93, v92, s[%d:%d], s66 offen" % (WSP, WSP + 3)); a("s_add_u32 s66, s66, 4096")
        if t == 30:
            for q in range(4): a("ds_read_b64 v[%d:%d], v31 offset:%d" % (32 + 2 * q, 33 + 2 * q, 16 * q))
    stamp(a, 5)
    a("s_lshl_b32 s16, s20, 12"); a("v_add_u32 v24, s16, v2"); a("v_xor_b32 v25, 4096, v24")
    a("v_lshrrev_b32 v7, 3, v1"); a("v_lshlrev_b32 v7, 16, v7"); a("v_and_b32 v26, 7, v1"); a("v_lshl_add_u32 v7, v26, 4, v7")
    a("s_lshl_b32 s17, s20, 11"); a("s_add_u32 s17, s17, 16384"); a("v_lshlrev_b32 v26, 6, v4"); a("v_lshl_add_u32 v26, v5, 5, v26"); a("v_add_u32 v26, s17, v26"); a("v_add_u32 v27, s17, v2")
    a("s_lshl_b32 s15, s23, 20"); a("s_lshl_b32 s16, s22, 7"); a("s_add_u32 s15, s15, s16"); a("s_add_u32 s15, s15, %d" % WS_X1T)
    a("s_waitcnt lgkmcnt(0)"); a("s_barrier")
    a("s_cmp_eq_u32 s23, 0"); a("s_cbranch_scc0 CV_H1")
    for hh in range(2):
        snd, keep = (112, 96) if hh == 0 else (96, 112)
        if hh == 1: a.label("CV_H1")
        for q in range(4): a("ds_write_b128 v24, v[%d:%d] offset:%d" % (snd + 4 * q, snd + 4 * q + 3, q * 1024))
        for k in range(8):
            t = 60 + 2 * k; hreg = 32 + k
            a("v_cvt_f32_f16 v%d, v%d" % (t, hreg)); a("v_cvt_f32_f16_sdwa v%d, v%d dst_sel:DWORD dst_unused:UNUSED_PAD src0_sel:WORD_1" % (t + 1, hreg))
            a("v_pk_mul_f32 v[%d:%d], v[%d:%d], s[26:27] op_sel_hi:[1,0]" % (t, t + 1, t, t + 1)); rnd_pk(a, t)
        a("s_waitcnt lgkmcnt(0)"); a("s_barrier")
        for q in range(4): a("ds_read_b128 v[%d:%d], v25 offset:%d" % (40 + 4 * q, 43 + 4 * q, q * 1024))
        a("s_waitcnt vmcnt(%d)" % (2 - npre))
        for i in range(8): a("v_lshlrev_b32 v%d, 16, v%d" % (snd + 2 * i, 16 + i)); a("v_and_b32 v%d, 0xffff0000, v%d" % (snd + 2 * i + 1, 16 + i))
        for i in range(0, 16, 2): a("v_mov_b64 v[%d:%d], v[%d:%d]" % (8 + i, 9 + i, snd + i, snd + i + 1))
        a("s_waitcnt lgkmcnt(0)")
        for i in range(0, 16, 2): a("v_pk_add_f32 v[%d:%d], v[%d:%d], v[%d:%d]" % (40 + i, 41 + i, 40 + i, 41 + i, keep + i, keep + i + 1))
        if hh == 0: a("s_branch CV_EP")
    a.label("CV_EP")
    for k in range(8):
        y = 40 + 2 * k; t = 60 + 2 * k
        a("v_pk_mul_f32 v[%d:%d], v[%d:%d], s[24:25] op_sel_hi:[1,0]" % (y, y + 1, y, y + 1)); rnd_pk(a, y)
        a("v_pk_add_f32 v[%d:%d], v[%d:%d], v[%d:%d]" % (y, y + 1, y, y + 1, t, t + 1)); rnd_pk(a, y)
        a("v_pk_mul_f32 v[%d:%d], v[%d:%d], s[28:29] op_sel_hi:[1,0]" % (y, y + 1, y, y + 1)); rnd_pk(a, y)
        a("v_pk_add_f32 v[%d:%d], v[%d:%d], v[%d:%d]" % (y, y + 1, y, y + 1, 8 + 2 * k, 9 + 2 * k))
        a("v_cvt_pk_bf16_f32 v%d, v%d, v%d" % (80 + k, y, y + 1))
        if k == 3: a("ds_write_b128 v26, v[80:83]")
    a("ds_write_b128 v26, v[84:87] offset:16")
    a("ds_read_b128 v[80:83], v27"); a("ds_read_b128 v[84:87], v27 offset:1024")
    a("s_add_u32 s16, s15, %d" % (8 * 65536))
    a("s_waitcnt lgkmcnt(1)"); a("buffer_store_dwordx4 v[80:83], v7, s[%d:%d], s15 offen%s" % (WS, WS + 3, SC))
    a("s_waitcnt lgkmcnt(0)"); a("buffer_store_dwordx4 v[84:87], v7, s[%d:%d], s16 offen%s" % (WS, WS + 3, SC))
    endp(a, KI)

def reduce4(a, r):
    a("v_permlane32_swap_b32 v%d, v%d" % (r[0], r[2])); a("v_permlane32_swap_b32 v%d, v%d" % (r[1], r[3]))
    a("v_add_f32 v%d, v%d, v%d" % (r[0], r[0], r[2])); a("v_add_f32 v%d, v%d, v%d" % (r[1], r[1], r[3]))
    a("v_permlane16_swap_b32 v%d, v%d" % (r[0], r[1])); a("v_add_f32 v%d, v%d, v%d" % (r[0], r[0], r[1]))
    for sh in (1, 2, 4, 8): a("v_add_f32_dpp v%d, v%d, v%d row_shr:%d row_mask:0xf bank_mask:0xf" % (r[0], r[0], r[0], sh))

def role_x(a):
    a.reset_counts()
    if PRIO: a("s_setprio 3")
    for i, n in enumerate(("u", "ws", "dbg")): load_ptr(a, 24 + 4 * i, n)
    a("s_sub_u32 s3, s2, %d" % O_X)
    a("s_lshl_b32 s4, s3, 2"); a("s_add_u32 s4, s4, s20"); a("s_lshl_b32 s4, s4, 12")
    a("v_lshlrev_b32 v2, 4, v1")
    a("s_waitcnt lgkmcnt(0)")
    for i, n in enumerate(("u", "ws", "dbg")): make_srd(a, 24 + 4 * i, n)
    for r in range(4):
        a("buffer_load_dwordx4 v[%d:%d], v2, s[24:27], s4 offen offset:%d" % (32 + 4 * r, 35 + 4 * r, r * 1024), tag=r)
    a("s_mul_i32 s5, s20, %d" % (4 * XP)); a("v_add_u32 v3, s5, v2")
    a("v_mov_b32 v4, 0x3f803f80")
    a("v_lshrrev_b32 v5, 4, v1"); a("v_bfe_u32 v6, v1, 2, 2"); a("v_and_b32 v7, 3, v1")
    a("v_and_b32 v8, 1, v5"); a("v_lshl_add_u32 v8, v8, 3, v6"); a("v_mul_u32_u24 v8, %d, v8" % XP)
    a("v_lshl_add_u32 v8, v7, 3, v8"); a("v_lshrrev_b32 v9, 1, v5"); a("v_lshl_add_u32 v8, v9, 5, v8")
    a("s_lshl_b32 s6, s20, 8"); a("v_add_u32 v26, s6, v8")
    a("v_and_b32 v10, 15, v1"); a("v_lshl_add_u32 v10, v9, 4, v10")
    a("v_lshrrev_b32 v11, 2, v10"); a("v_lshlrev_b32 v11, 14, v11"); a("v_and_b32 v10, 3, v10"); a("v_lshl_add_u32 v11, v10, 4, v11")
    a("v_and_b32 v10, 1, v5"); a("v_lshl_add_u32 v27, v10, 6, v11")
    a("s_lshl_b32 s7, s20, 19"); a("s_lshl_b32 s8, s3, 7"); a("s_add_u32 s7, s7, s8")
    for r in range(4):
        a.wait_vm(r)
        a("ds_write_b128 v3, v[%d:%d] offset:%d" % (32 + 4 * r, 35 + 4 * r, r * XP))
        a("v_dot2_f32_bf16 v%d, v%d, v4, 0" % (8 + r, 32 + 4 * r))
        for q in range(1, 4): a("v_dot2_f32_bf16 v%d, v%d, v4, v%d" % (8 + r, 32 + 4 * r + q, 8 + r))
        for q in range(4):
            a("v_lshlrev_b32 v%d, 16, v%d" % (64 + 8 * r + 2 * q, 32 + 4 * r + q))
            a("v_and_b32 v%d, 0xffff0000, v%d" % (65 + 8 * r + 2 * q, 32 + 4 * r + q))
    stamp(a, 1)
    R = [8, 9, 10, 11]
    reduce4(a, R)
    a("v_mul_f32 v8, %s, v8" % fl(-1 / 512.))
    for r in range(4): a("v_readlane_b32 s%d, v8, %d" % (40 + 2 * r, 15 + 16 * r))
    bf16r(a, 16, 8)
    for r in range(4): a("v_readlane_b32 s%d, v16, %d" % (48 + 2 * r, 15 + 16 * r))
    for r in range(4):
        for q in range(4):
            e = 64 + 8 * r + 2 * q
            a("v_pk_add_f32 v[20:21], v[%d:%d], s[%d:%d] op_sel_hi:[1,0]" % (e, e + 1, 40 + 2 * r, 41 + 2 * r))
            if q == 0: a("v_pk_mul_f32 v[22:23], v[20:21], v[20:21]")
            else: a("v_pk_fma_f32 v[22:23], v[20:21], v[20:21], v[22:23]")
        a("v_add_f32 v%d, v22, v23" % (8 + r))
    reduce4(a, R)
    a("v_mul_f32 v8, %s, v8" % fl(1 / 512.)); bf16r(a, 8, 8)
    a("v_add_f32 v8, %s, v8" % fl(1e-5)); bf16r(a, 8, 8)
    a("v_sqrt_f32 v8, v8"); bf16r(a, 8, 8); a("v_rcp_f32 v8, v8")
    for r in range(4): a("v_readlane_b32 s%d, v8, %d" % (56 + 2 * r, 15 + 16 * r))
    for r in range(4):
        for q in range(4):
            e = 64 + 8 * r + 2 * q
            a("v_pk_add_f32 v[20:21], v[%d:%d], s[%d:%d] op_sel_hi:[1,0]" % (e, e + 1, 48 + 2 * r, 49 + 2 * r))
            a("v_cvt_pk_bf16_f32 v20, v20, v21")
            a("v_and_b32 v21, 0xffff0000, v20"); a("v_lshlrev_b32 v20, 16, v20")
            a("v_pk_mul_f32 v[20:21], v[20:21], s[%d:%d] op_sel_hi:[1,0]" % (56 + 2 * r, 57 + 2 * r))
            a("v_cvt_pk_bf16_f32 v%d, v20, v21" % (48 + 4 * r + q))
        a("ds_write_b128 v3, v[%d:%d] offset:%d" % (48 + 4 * r, 51 + 4 * r, 16 * XP + r * XP))
    stamp(a, 2)
    a("s_waitcnt lgkmcnt(0)"); a("s_barrier")
    for arr in range(2):
        for it in range(4):
            b = 64 + 16 * arr + 4 * it
            a("ds_read_b64_tr_b16 v[%d:%d], v26 offset:%d" % (b, b + 1, arr * 16 * XP + it * 64), tag=(arr, it))
            a("ds_read_b64_tr_b16 v[%d:%d], v26 offset:%d" % (b + 2, b + 3, arr * 16 * XP + it * 64 + 4 * XP), tag=(arr, it))
    for arr in (1, 0):
        for it in range(4):
            b = 64 + 16 * arr + 4 * it
            a("s_add_u32 s9, s7, %d" % ((WS_XNT if arr else WS_XT) + it * 16 * 8192))
            if arr == 1 and it == 0: a("s_waitcnt lgkmcnt(0)")
            a("buffer_store_dwordx4 v[%d:%d], v27, s[28:31], s9 offen%s" % (b, b + 3, SS))
    a("s_waitcnt vmcnt(0)"); a("s_barrier")
    a("s_cmp_lg_u32 s20, 0"); a("s_cbranch_scc1 F_END")
    signal(a, 32, "SG_X")
    endp(a, KI)

def role_mod(a):
    a.reset_counts()
    if PRIO: a("s_setprio 3")
    for i, n in enumerate(("wmod", "c", "ws", "dbg")): load_ptr(a, 24 + 4 * i, n)
    a("s_sub_u32 s3, s2, %d" % O_M)
    a("s_lshr_b32 s4, s3, 2"); a("s_and_b32 s5, s3, 3")
    a("v_lshrrev_b32 v2, 3, v1"); a("s_lshl_b32 s6, s5, 7"); a("s_lshl_b32 s7, s20, 5"); a("s_add_u32 s6, s6, s7")
    a("v_add_u32 v2, s6, v2")
    a("v_mul_u32_u24 v3, 6144, v2"); a("v_and_b32 v4, 7, v1"); a("v_lshl_add_u32 v3, v4, 4, v3")
    a("s_lshl_b32 s7, s4, 7"); a("v_lshlrev_b32 v5, 1, v2")
    a("s_waitcnt lgkmcnt(0)")
    for i, n in enumerate(("wmod", "c", "ws", "dbg")): make_srd(a, 24 + 4 * i, n)
    for it in range(4):
        a("buffer_load_dwordx4 v[%d:%d], v3, s[24:27], s7 offen" % (40 + 4 * it, 43 + 4 * it), tag=it)
        if it < 3: a("s_add_u32 s7, s7, %d" % (8 * 6144))
    for it in range(4): a("buffer_load_ushort v%d, v5, s[28:31], 0 offen offset:%d" % (30 + it, it * 16), tag="c")
    a("v_lshrrev_b32 v8, 4, v1"); a("s_lshl_b32 s8, s20, 2"); a("v_add_u32 v8, s8, v8"); a("v_lshlrev_b32 v8, 8, v8"); a("v_lshl_add_u32 v8, v4, 5, v8")
    a("v_lshlrev_b32 v9, 2, v1")
    a.wait_vm("c")
    for it in range(4):
        r = 30 + it
        a("v_lshlrev_b32 v%d, 16, v%d" % (r, r)); a("v_mul_f32 v10, %s, v%d" % (fl(-LOG2E), r))
        a("v_exp_f32 v10, v10"); a("v_add_f32 v10, 1.0, v10"); a("v_rcp_f32 v10, v10")
        a("v_mul_f32 v%d, v%d, v10" % (r, r)); bf16r(a, r, r)
    for it in range(4):
        for q in range(4):
            w = 40 + 4 * it + q
            a("v_lshlrev_b32 v10, 16, v%d" % w); a("v_and_b32 v11, 0xffff0000, v%d" % w)
            op = "v_mul_f32" if it == 0 else "v_fmac_f32"
            a("%s v%d, v10, v%d" % (op, 80 + 2 * q, 30 + it)); a("%s v%d, v11, v%d" % (op, 81 + 2 * q, 30 + it))
    stamp(a, 2)
    for r in range(80, 88): a("v_add_f32_dpp v%d, v%d, v%d row_shr:8 row_mask:0xf bank_mask:0xf" % (r, r, r))
    a("s_mov_b32 exec_lo, 0xff00ff00"); a("s_mov_b32 exec_hi, 0xff00ff00")
    a("ds_write_b128 v8, v[80:83]"); a("ds_write_b128 v8, v[84:87] offset:16")
    a("s_mov_b64 exec, -1")
    a("s_waitcnt lgkmcnt(0)"); a("s_barrier")
    a("s_cmp_lg_u32 s20, 0"); a("s_cbranch_scc1 F_END")
    for i in range(16): a("ds_read_b32 v%d, v9 offset:%d" % (12 + i, i * 256))
    a("s_mul_i32 s9, s5, 12288"); a("s_lshl_b32 s10, s4, 8"); a("s_add_u32 s9, s9, s10"); a("s_add_u32 s9, s9, %d" % WS_MODP)
    a("s_waitcnt lgkmcnt(0)")
    for st in (8, 4, 2, 1):
        for i in range(st): a("v_add_f32 v%d, v%d, v%d" % (12 + i, 12 + i, 12 + i + st))
    a("buffer_store_dword v12, v9, s[32:35], s9 offen" + SS)
    signal(a, 36, "SG_M")
    endp(a, KI)

def pack_addr(a, s_dst, unit_stride):
    a("v_lshlrev_b32 v4, 4, v0")
    a("v_lshrrev_b32 v5, 4, v1"); a("v_bfe_u32 v6, v1, 2, 2"); a("v_and_b32 v7, 3, v1")
    a("v_lshl_add_u32 v8, v5, 3, v6"); a("v_lshlrev_b32 v8, 6, v8"); a("v_lshl_add_u32 v8, v7, 4, v8")
    a("s_lshr_b32 s6, s20, 1"); a("s_and_b32 s7, s20, 1")
    a("s_lshl_b32 s9, s6, 11"); a("s_lshl_b32 s10, s7, 3"); a("s_add_u32 s9, s9, s10"); a("v_add_u32 v8, s9, v8")
    a("v_lshlrev_b32 v9, 4, v1")
    a("s_lshl_b32 s9, s6, 10"); a("s_mul_i32 s10, s7, %d" % unit_stride); a("s_add_u32 s9, s9, s10"); a("s_add_u32 s%d, s%d, s9" % (s_dst, s_dst))
def pack_out(a, ws_srd, nit, s_dst):
    for it in range(nit):
        b = 32 + 4 * it
        a("ds_read_b64_tr_b16 v[%d:%d], v8 offset:%d" % (b, b + 1, it * 4096), tag=("t", it))
        a("ds_read_b64_tr_b16 v[%d:%d], v8 offset:%d" % (b + 2, b + 3, it * 4096 + 256), tag=("t", it))
    for it in range(nit):
        b = 32 + 4 * it
        if it and it % 2 == 0: a("s_add_u32 s%d, s%d, 4096" % (s_dst, s_dst))
        a.wait_lg(("t", it))
        a("buffer_store_dwordx4 v[%d:%d], v9, s[%d:%d], s%d offen offset:%d%s" % (b, b + 3, ws_srd, ws_srd + 3, s_dst, (it & 1) * 2048, SC))

def role_pack(a):
    a.reset_counts()
    load_ptr(a, 24, "win"); load_ptr(a, 28, "ws"); load_ptr(a, 32, "dbg")
    a("s_sub_u32 s3, s2, %d" % O_P); a("s_and_b32 s11, s3, 1"); a("s_lshr_b32 s3, s3, 1")
    a("s_cmp_ge_u32 s3, 22"); a("s_cselect_b32 s4, 22, 0"); a("s_cselect_b32 s5, 1376, 0")
    a("s_sub_u32 s4, s3, s4")
    a("s_lshl_b32 s6, s4, 6"); a("s_add_u32 s5, s5, s6"); a("s_mul_i32 s6, s11, %d" % (256 * 2752)); a("s_add_u32 s5, s5, s6")
    a("v_lshrrev_b32 v2, 2, v1"); a("s_lshl_b32 s6, s20, 4"); a("v_add_u32 v2, s6, v2")
    a("v_mul_u32_u24 v3, 2752, v2"); a("v_and_b32 v4, 3, v1"); a("v_lshl_add_u32 v3, v4, 4, v3")
    a("s_cmp_eq_u32 s4, 21"); a("s_cselect_b32 s7, 2, 4")
    a("v_cmp_gt_u32 vcc, s7, v4"); a("v_mov_b32 v5, 0x7f000000"); a("v_cndmask_b32 v3, v5, v3, vcc")
    a("s_lshl_b32 s8, s3, 15"); a("s_lshl_b32 s6, s11, 13"); a("s_add_u32 s8, s8, s6"); a("s_add_u32 s8, s8, %d" % WS_WIN)
    a("s_waitcnt lgkmcnt(0)")
    make_srd(a, 24, "win"); make_srd(a, 28, "ws"); make_srd(a, 32, "dbg")
    pack_addr(a, 8, 16384)
    a("v_lshlrev_b32 v10, 2, v0"); a("v_lshlrev_b32 v11, 2, v2")
    a("s_cmp_lg_u32 s20, 0"); a("s_cbranch_scc1 PK_W")
    poll(a, 32, "PK_POLL", 12, 13)
    a.label("PK_W")
    a("s_barrier")
    for it in range(4):
        a("buffer_load_dwordx4 v[%d:%d], v3, s[24:27], s5 offen" % (32 + 4 * it, 35 + 4 * it))
        if it < 3: a("s_add_u32 s5, s5, %d" % (64 * 2752))
    a("s_lshl_b32 s12, s11, 10"); a("s_add_u32 s12, s12, %d" % (WS_MODP + 3 * 2048))
    for p in range(4):
        for sec in range(3):
            if sec == 2: a("s_add_u32 s13, s12, 4096")
            a("buffer_load_dword v%d, v10, s[28:31], s%d offen offset:%d%s" % (60 + 4 * sec + p, 13 if sec == 2 else 12, (sec & 1) * 2048, SS))
        if p < 3: a("s_add_u32 s12, s12, 12288")
    a("s_waitcnt vmcnt(0)")
    for sec in range(3):
        b = 60 + 4 * sec
        a("v_add_f32 v%d, v%d, v%d" % (b, b, b + 1)); a("v_add_f32 v%d, v%d, v%d" % (b + 2, b + 2, b + 3)); a("v_add_f32 v%d, v%d, v%d" % (b, b, b + 2)); bf16r(a, b, b)
    a("v_add_f32 v64, 1.0, v64"); bf16r(a, 64, 64)
    a("ds_write_b32 v10, v60 offset:16384"); a("ds_write_b32 v10, v64 offset:17408")
    a("s_cmp_lg_u32 s3, 0"); a("s_cbranch_scc1 PK_NG")
    a("s_lshl_b32 s12, s11, 10"); a("s_add_u32 s12, s12, %d" % (WS_MOD + 5 * 2048))
    a("buffer_store_dword v68, v10, s[28:31], s12 offen" + SC)
    a.label("PK_NG")
    a("s_waitcnt lgkmcnt(0)"); a("s_barrier")
    for it in range(4):
        a("ds_read_b32 v%d, v11 offset:%d" % (60 + it, 16384 + it * 256)); a("ds_read_b32 v%d, v11 offset:%d" % (64 + it, 17408 + it * 256))
    for i in range(16): a("v_mov_b32 v%d, 0" % (80 + i))
    a("s_waitcnt lgkmcnt(0)")
    for it in range(4):
        for q in range(4):
            w = 32 + 4 * it + q
            a("v_lshlrev_b32 v12, 16, v%d" % w); a("v_and_b32 v13, 0xffff0000, v%d" % w)
            a("v_fmac_f32 v%d, v12, v%d" % (88 + 2 * q, 60 + it)); a("v_fmac_f32 v%d, v13, v%d" % (89 + 2 * q, 60 + it))
            a("v_mul_f32 v12, v12, v%d" % (64 + it)); a("v_mul_f32 v13, v13, v%d" % (64 + it))
            a("v_cvt_pk_bf16_f32 v%d, v12, v13" % w)
            a("v_lshlrev_b32 v12, 16, v%d" % w); a("v_and_b32 v13, 0xffff0000, v%d" % w)
            a("v_add_f32 v%d, v%d, v12" % (80 + 2 * q, 80 + 2 * q)); a("v_add_f32 v%d, v%d, v13" % (81 + 2 * q, 81 + 2 * q))
        a("ds_write_b128 v4, v[%d:%d] offset:%d" % (32 + 4 * it, 35 + 4 * it, it * 4096))
    for sh in (4, 8):
        for r in range(80, 96): a("v_add_f32_dpp v%d, v%d, v%d row_shr:%d row_mask:0xf bank_mask:0xf" % (r, r, r, sh))
    a("s_lshl_b32 s13, s20, 2"); a("v_add_u32 v12, s13, v5"); a("v_lshlrev_b32 v12, 7, v12"); a("v_lshl_add_u32 v12, v7, 5, v12")
    a("s_mov_b32 exec_lo, 0xf000f000"); a("s_mov_b32 exec_hi, 0xf000f000")
    for q in range(2):
        a("ds_write_b128 v12, v[%d:%d] offset:%d" % (80 + 8 * q, 83 + 8 * q, 20480 + q * 2048)); a("ds_write_b128 v12, v[%d:%d] offset:%d" % (84 + 8 * q, 87 + 8 * q, 20480 + q * 2048 + 16))
    a("s_mov_b64 exec, -1")
    a("s_waitcnt lgkmcnt(0)"); a("s_barrier")
    a.reset_counts()
    pack_out(a, 28, 4, 8)
    a("s_cmp_lg_u32 s20, 0"); a("s_cbranch_scc1 F_END")
    a("v_and_b32 v12, 31, v1"); a("v_lshlrev_b32 v12, 2, v12"); a("v_lshrrev_b32 v13, 5, v1"); a("v_lshl_add_u32 v12, v13, 11, v12")
    for i in range(16): a("ds_read_b32 v%d, v12 offset:%d" % (60 + i, 20480 + i * 128))
    a("v_bfe_u32 v14, v1, 2, 1"); a("v_lshlrev_b32 v14, 6, v14"); a("v_bfe_u32 v15, v1, 3, 2"); a("v_lshl_add_u32 v14, v15, 4, v14")
    a("v_and_b32 v15, 3, v1"); a("v_lshl_add_u32 v14, v15, 2, v14"); a("v_mul_u32_u24 v13, %d, v13" % (WS_CS2 - WS_CS1)); a("v_add_u32 v14, v14, v13")
    a("s_lshl_b32 s12, s3, 7"); a("s_mul_i32 s13, s11, %d" % CS_PART); a("s_add_u32 s12, s12, s13"); a("s_add_u32 s12, s12, %d" % WS_CS1)
    a("s_waitcnt lgkmcnt(0)")
    for st in (8, 4, 2, 1):
        for i in range(st): a("v_add_f32 v%d, v%d, v%d" % (60 + i, 60 + i, 60 + i + st))
    a("buffer_store_dword v60, v14, s[28:31], s12 offen" + SC)
    endp(a, KI)

def role_wout(a):
    a.reset_counts()
    load_ptr(a, 24, "wout"); load_ptr(a, 28, "ws")
    a("s_sub_u32 s3, s2, %d" % O_W); a("s_and_b32 s4, s3, 15"); a("s_lshr_b32 s11, s3, 4")
    a("s_lshl_b32 s5, s4, 6"); a("s_lshl_b32 s6, s11, 18"); a("s_add_u32 s5, s5, s6")
    a("v_lshrrev_b32 v2, 2, v1"); a("s_lshl_b32 s6, s20, 4"); a("v_add_u32 v2, s6, v2")
    a("v_lshlrev_b32 v3, 10, v2"); a("v_and_b32 v4, 3, v1"); a("v_lshl_add_u32 v3, v4, 4, v3")
    a("s_mul_i32 s8, s4, %d" % (2 * 24 * 1024)); a("s_lshl_b32 s6, s11, 13"); a("s_add_u32 s8, s8, s6"); a("s_add_u32 s8, s8, %d" % WS_WOUT)
    a("s_waitcnt lgkmcnt(0)")
    make_srd(a, 24, "wout"); make_srd(a, 28, "ws")
    for it in range(4):
        a("buffer_load_dwordx4 v[%d:%d], v3, s[24:27], s5 offen" % (32 + 4 * it, 35 + 4 * it), tag=it)
        if it < 3: a("s_add_u32 s5, s5, 65536")
    pack_addr(a, 8, 24 * 1024)
    a("s_cmp_lg_u32 s3, 0"); a("s_cbranch_scc1 WO_NF")
    for i in range(4): a("v_mov_b32 v%d, 0" % (60 + i))
    a("s_mov_b32 s12, %d" % WS_FLG)
    vm0 = list(a.vm)
    a("buffer_store_dwordx4 v[60:63], v4, s[28:31], s12 offen" + SC)
    a("s_waitcnt vmcnt(0)")
    a.vm = vm0
    a.label("WO_NF")
    for it in range(4):
        a.wait_vm(it); a("ds_write_b128 v4, v[%d:%d] offset:%d" % (32 + 4 * it, 35 + 4 * it, it * 4096))
    a("s_waitcnt lgkmcnt(0)"); a("s_barrier")
    pack_out(a, 28, 4, 8)
    endp(a, KI)

def gen():
    a = Asm()
    stamp_init(a)
    a("v_and_b32 v1, 63, v0"); a("v_lshrrev_b32 v2, 6, v0"); a("v_readfirstlane_b32 s20, v2")
    a("s_cmp_ge_u32 s2, %d" % GRID); a("s_cbranch_scc1 F_END")
    a("s_cmp_ge_u32 s2, %d" % O_W); a("s_cbranch_scc1 F_WOUT")
    a("s_cmp_ge_u32 s2, %d" % O_P); a("s_cbranch_scc1 F_PACK")
    a("s_cmp_ge_u32 s2, %d" % O_M); a("s_cbranch_scc1 F_MOD")
    a("s_cmp_ge_u32 s2, %d" % O_X); a("s_cbranch_scc1 F_X")
    role_conv(a)
    a.label("F_MOD"); role_mod(a)
    a.label("F_X"); role_x(a)
    a.label("F_PACK"); role_pack(a)
    a.label("F_WOUT"); role_wout(a)
    a.label("F_END"); endp(a, KI)
    return a
```

```python
from gen_common import *
GRID = 256
A_OFF = 8192
CS_OFF = 4096
ST_OFF = 0
ZS_OFF = 512
ZF_OFF = 2560
TR_OFF = A_OFF + 65536
LDS = TR_OFF + 4 * 4096
Z2_NORMALIZED = True
K0 = -2 * 0.7978845608028654 * LOG2E
K1 = K0 * 0.044715
SC = " sc1"
NPRE = int(os.environ.get("NPRE", "24"))
VSL = (1, 4, 7, 9)

def gen():
    a = Asm()
    stamp_init(a)
    a("v_and_b32 v1, 63, v0"); a("v_lshrrev_b32 v2, 6, v0"); a("v_readfirstlane_b32 s20, v2")
    a("s_cmp_ge_u32 s2, %d" % GRID); a("s_cbranch_scc1 G1_END")
    load_ptr(a, 24, "ws")
    a("s_bfe_u32 s3, s2, 0x20001"); a("s_lshl_b32 s3, s3, 3"); a("s_bfe_u32 s4, s2, 0x30003"); a("s_add_u32 s3, s3, s4")
    a("s_and_b32 s4, s2, 1"); a("s_lshr_b32 s5, s2, 6")
    a("v_lshrrev_b32 v2, 3, v1")
    a("v_bfe_u32 v4, v1, 4, 1")
    a("v_lshlrev_b32 v4, 5, v4")
    a("v_and_b32 v5, 7, v1"); a("v_lshlrev_b32 v5, 4, v5"); a("v_xor_b32 v5, v5, v4")
    a("v_lshl_add_u32 v6, v2, 7, v5")
    a("v_xor_b32 v7, 64, v6")
    a("v_lshlrev_b32 v8, 4, v1")
    a("s_lshl_b32 s6, s20, 12"); a("s_lshl_b32 s7, s3, 16"); a("s_add_u32 s6, s6, s7"); a("s_add_u32 s6, s6, %d" % WS_X1T)
    a("s_lshl_b32 s7, s20, 12"); a("s_add_u32 s7, s7, %d" % A_OFF)
    a("s_mul_i32 s8, s5, 6"); a("s_mul_i32 s9, s5, 5"); a("s_add_u32 s10, s9, 24"); a("s_add_u32 s11, s8, 20")
    a("s_cmp_eq_u32 s4, 0"); a("s_cselect_b32 s8, s8, s10"); a("s_cselect_b32 s9, s9, s11"); a("s_cselect_b32 s10, 2, 1")
    a("s_add_u32 s8, s8, 44")
    a("s_add_u32 s30, s8, s20")
    a("s_add_u32 s11, s30, 4"); a("s_add_u32 s12, s9, s20"); a("s_sub_u32 s12, s12, s10")
    a("s_cmp_lt_u32 s20, s10"); a("s_cselect_b32 s31, s11, s12"); a("s_cselect_b32 s33, 1, 0")
    a("s_add_u32 s32, s12, 4")
    a("s_cmp_eq_u32 s20, 3"); a("s_cselect_b32 s13, 0x7f000000, 0")
    a("v_add_u32 v9, s13, v8")
    for uu in range(3):
        a("s_lshl_b32 s%d, s%d, 14" % (34 + uu, 30 + uu)); a("s_add_u32 s%d, s%d, %d" % (34 + uu, 34 + uu, WS_WIN))
    a("v_lshrrev_b32 v10, 4, v1")
    a("v_mov_b32 v11, s30"); a("v_mov_b32 v12, s31"); a("v_cmp_eq_u32 vcc, 1, v10"); a("v_cndmask_b32 v11, v11, v12, vcc")
    a("v_mov_b32 v12, s32"); a("v_cmp_eq_u32 vcc, 2, v10"); a("v_cndmask_b32 v11, v11, v12, vcc")
    a("v_and_b32 v17, 15, v1"); a("v_lshlrev_b32 v11, 6, v11"); a("v_lshl_add_u32 v11, v17, 2, v11")
    a("s_waitcnt lgkmcnt(0)")
    make_srd(a, 24, "ws")
    a("s_lshl_b32 s46, s20, 10")
    for i, off in enumerate((WS_CS1, WS_CS2, WS_CS1 + CS_PART, WS_CS2 + CS_PART)):
        a("s_add_u32 m0, s46, %d" % (CS_OFF + 256 * i)); a("s_mov_b32 s15, %d" % off)
        a("buffer_load_dword v11, s[24:27], s15 offen lds", tag="cs")
    a("v_lshlrev_b32 v11, 4, v10"); a("v_add_u32 v11, s46, v11")
    def aop(Q, i):
        pre = ["s_add_u32 m0, s7, %d" % (Q * 16384), "s_add_u32 s14, s6, %d" % (Q * 16384)] if i == 0 else []
        return (pre, "buffer_load_dwordx4 v%d, s[24:27], s14 offen offset:%d lds" % (6 + (i & 1), i * 1024), ("A", Q))
    def bop(uu, ks):
        pre = ["s_add_u32 s%d, s%d, %d" % (38 + uu, 34 + uu, ks * 1024)] if ks % 4 == 0 else []
        r = 64 * uu + 4 * ks
        return (pre, "buffer_load_dwordx4 a[%d:%d], v%d, s[24:27], s%d offen offset:%d" % (r, r + 3, 9 if uu == 2 else 8, 38 + uu, (ks % 4) * 1024), ("B", uu, ks))
    def emit(op):
        for p in op[0]: a(p)
        a(op[1], tag=op[2])
    bq = []
    for Q in range(4):
        bq += [aop(Q, i) for i in range(4)]
        for ks in range(4 * Q, 4 * Q + 4): bq += [bop(0, ks), bop(1, ks)]
    bq += [bop(2, ks) for ks in range(16)]
    for _ in range(NPRE): emit(bq.pop(0))
    a("v_bfe_u32 v13, v1, 2, 2"); a("v_lshl_add_u32 v14, v10, 3, v13"); a("v_lshlrev_b32 v14, 7, v14")
    a("v_and_b32 v15, 3, v1"); a("v_lshl_add_u32 v14, v15, 3, v14"); a("v_add_u32 v14, %d, v14" % A_OFF)
    a("v_bfe_u32 v15, v1, 3, 2")
    a("v_xor_b32 v15, s20, v15"); a("v_lshl_add_u32 v20, v15, 5, v14")
    for sp in range(1, 4): a("v_xor_b32 v%d, %d, v20" % (20 + sp, sp * 32))
    for i in range(48): a("v_mov_b32 v%d, 0" % (64 + i))
    a("v_mov_b32 v26, 0x3f803f80")
    for i in range(8): a("v_mov_b32 v%d, 0" % (156 + i))
    for i in range(4): a("v_mov_b32 v%d, 0x3f803f80" % (164 + i))
    a("v_lshlrev_b32 v18, 3, v17")
    a("v_mov_b32 v30, %s" % fl(K0)); a("v_mov_b32 v31, %s" % fl(K0)); a("s_mov_b32 s18, %s" % fl(K1))
    stamp(a, 1)
    def aload_ops(tag, ks):
        b = 32 + 16 * (ks & 1); ops = []
        for sp in range(4):
            ops.append(([], "ds_read_b64_tr_b16 v[%d:%d], v%d offset:%d" % (b + 4 * sp, b + 4 * sp + 1, 20 + sp, ks * 4096), (tag, ks)))
            ops.append(([], "ds_read_b64_tr_b16 v[%d:%d], v%d offset:%d" % (b + 4 * sp + 2, b + 4 * sp + 3, 20 + sp, ks * 4096 + 512), (tag, ks)))
        return ops
    def mfma_s(uu, sp, ks):
        b = 32 + 16 * (ks & 1); acc = 64 + 16 * uu + 4 * sp; r = 64 * uu + 4 * ks
        return "v_mfma_f32_16x16x32_bf16 v[%d:%d], a[%d:%d], v[%d:%d], v[%d:%d]" % (acc, acc + 3, r, r + 3, b + 4 * sp, b + 4 * sp + 3, acc, acc + 3)
    def need_issued(tag):
        while any(o[2] == tag for o in bq): emit(bq.pop(0))
    def qbar(Q):
        need_issued(("A", Q)); a.wait_vm(("A", Q)); a("s_barrier")
    qbar(0)
    stamp(a, 2)
    for o in aload_ops("a", 0): emit(o)
    for ks in range(16):
        if ks % 4 == 3 and ks + 1 < 16: qbar((ks + 1) // 4)
        ds = aload_ops("a", ks + 1) if ks + 1 < 16 else aload_ops("b", 0)
        need_issued(("B", 1, ks))
        a.wait_lg(("a", ks)); a.wait_vm(("B", 1, ks))
        b = 32 + 16 * (ks & 1)
        ms = [mfma_s(uu, sp, ks) for uu in range(2) for sp in range(4)]
        ms += ["v_mfma_f32_16x16x32_bf16 v[156:159], v[164:167], v[%d:%d], v[156:159]" % (b, b + 3),
               "v_mfma_f32_16x16x32_bf16 v[160:163], v[%d:%d], v[%d:%d], v[160:163]" % (b, b + 3, b, b + 3)]
        for n, m in enumerate(ms):
            a(m)
            if ds: emit(ds.pop(0))
            if n in VSL and bq: emit(bq.pop(0))
    for o in bq: emit(o)
    stamp(a, 3)
    a("v_and_b32 v27, 3, v1")
    a("v_cmp_eq_u32 vcc, 1, v27"); a("v_cndmask_b32 v25, v160, v161, vcc")
    a("v_cmp_eq_u32 vcc, 2, v27"); a("v_cndmask_b32 v25, v25, v162, vcc")
    a("v_cmp_eq_u32 vcc, 3, v27"); a("v_cndmask_b32 v25, v25, v163, vcc")
    a("v_mul_f32 v24, %s, v156" % fl(1 / 512.)); a("v_mul_f32 v25, %s, v25" % fl(1 / 512.))
    a("v_fma_f32 v25, -v24, v24, v25"); a("v_max_f32 v25, 0, v25"); bf16r(a, 25, 25)
    a("v_add_f32 v25, %s, v25" % fl(1e-5)); bf16r(a, 25, 25)
    a("v_sqrt_f32 v25, v25"); bf16r(a, 25, 25); a("v_rcp_f32 v28, v25")
    bf16r(a, 24, 24); a("v_mul_f32 v29, v24, v28")
    a("s_lshl_b32 s16, s20, 7"); a("v_add_u32 v19, s16, v18")
    a("v_cmp_eq_u32 vcc, v13, v10")
    a("s_and_saveexec_b64 s[44:45], vcc")
    a("ds_write_b64 v19, v[28:29] offset:%d" % ST_OFF)
    a("s_mov_b64 exec, s[44:45]")
    a("s_waitcnt lgkmcnt(0)"); a("s_barrier")
    for sp in range(4):
        if sp: a("v_xor_b32 v27, %d, v19" % (sp * 128))
        a("ds_read_b64 v[%d:%d], v%d offset:%d" % (136 + 2 * sp, 137 + 2 * sp, 27 if sp else 19, ST_OFF))
    a.wait_vm("cs")
    for uu in range(3):
        a("ds_read_b128 v[%d:%d], v11 offset:%d" % (112 + 8 * uu, 115 + 8 * uu, CS_OFF + uu * 64))
        a("ds_read_b128 v[%d:%d], v11 offset:%d" % (116 + 8 * uu, 119 + 8 * uu, CS_OFF + 256 + uu * 64))
        a("ds_read_b128 v[%d:%d], v11 offset:%d" % (168 + 8 * uu, 171 + 8 * uu, CS_OFF + 512 + uu * 64))
        a("ds_read_b128 v[%d:%d], v11 offset:%d" % (172 + 8 * uu, 175 + 8 * uu, CS_OFF + 768 + uu * 64))
    a("s_waitcnt lgkmcnt(0)")
    for i in range(0, 24, 2): a("v_pk_add_f32 v[%d:%d], v[%d:%d], v[%d:%d]" % (112 + i, 113 + i, 112 + i, 113 + i, 168 + i, 169 + i))
    def epi(uu):
        for sp in range(4):
            acc = 64 + 16 * uu + 4 * sp; rs = 136 + 2 * sp
            ops = [[], []]
            for p in range(2):
                z = acc + 2 * p; c1 = 112 + 8 * uu + 2 * p; c2 = 116 + 8 * uu + 2 * p; t = 144 + 2 * p
                ops[p] = [
                 "v_pk_fma_f32 v[%d:%d], v[%d:%d], v[%d:%d], v[%d:%d] op_sel:[0,1,0] op_sel_hi:[1,1,1] neg_lo:[0,1,0] neg_hi:[0,1,0]" % (t, t + 1, c1, c1 + 1, rs, rs + 1, c2, c2 + 1),
                 "v_pk_fma_f32 v[%d:%d], v[%d:%d], v[%d:%d], v[%d:%d] op_sel_hi:[1,0,1]" % (z, z + 1, z, z + 1, rs, rs + 1, t, t + 1),
                 "v_pk_mul_f32 v[%d:%d], v[%d:%d], v[%d:%d]" % (t, t + 1, z, z + 1, z, z + 1),
                 "v_pk_fma_f32 v[%d:%d], v[%d:%d], s[18:19], v[30:31] op_sel_hi:[1,0,1]" % (t, t + 1, t, t + 1),
                 "v_pk_mul_f32 v[%d:%d], v[%d:%d], v[%d:%d]" % (t, t + 1, t, t + 1, z, z + 1),
                 "v_exp_f32 v%d, v%d" % (t, t), "v_exp_f32 v%d, v%d" % (t + 1, t + 1),
                 "v_pk_add_f32 v[%d:%d], v[%d:%d], 1.0 op_sel_hi:[1,0]" % (t, t + 1, t, t + 1),
                 "v_rcp_f32 v%d, v%d" % (t, t), "v_rcp_f32 v%d, v%d" % (t + 1, t + 1),
                 "v_pk_mul_f32 v[%d:%d], v[%d:%d], v[%d:%d]" % (z, z + 1, z, z + 1, t, t + 1)]
            for o0, o1 in zip(*ops): a(o0); a(o1)
            a("v_cvt_pk_bf16_f32 v%d, v%d, v%d" % (acc, acc, acc + 1)); a("v_cvt_pk_bf16_f32 v%d, v%d, v%d" % (acc + 1, acc + 2, acc + 3))
    def zstat(uu, first):
        for sp in range(4):
            acc = 64 + 16 * uu + 4 * sp
            for p in range(2):
                z1_ = "0" if (first and p == 0) else "v%d" % (148 + sp); z2_ = "0" if (first and p == 0) else "v%d" % (152 + sp)
                a("v_dot2_f32_bf16 v%d, v%d, v26, %s" % (148 + sp, acc + p, z1_))
                a("v_dot2_f32_bf16 v%d, v%d, v%d, %s" % (152 + sp, acc + p, acc + p, z2_))
    def z1store(uu):
        for sp in range(4):
            acc = 64 + 16 * uu + 4 * sp
            a("s_xor_b32 s16, s20, %d" % sp); a("s_mul_i32 s16, s16, %d" % (44 * 512)); a("s_add_u32 s16, s16, s17")
            a("buffer_store_dwordx2 v[%d:%d], v29, s[24:27], s16 offen%s" % (acc, acc + 1, SC))
    epi(0); zstat(0, True)
    a("s_cmp_eq_u32 s33, 0"); a("s_cbranch_scc1 G1_NOZ2B")
    epi(1); zstat(1, False)
    a.label("G1_NOZ2B")
    for i in range(4): a("v_permlane32_swap_b32 v%d, v%d" % (148 + i, 152 + i))
    for i in range(4): a("v_add_f32 v%d, v%d, v%d" % (148 + i, 148 + i, 152 + i))
    for i in range(2): a("v_permlane16_swap_b32 v%d, v%d" % (148 + i, 150 + i))
    for i in range(2): a("v_add_f32 v%d, v%d, v%d" % (148 + i, 148 + i, 150 + i))
    a("v_and_b32 v27, 1, v10"); a("v_lshlrev_b32 v27, 1, v27"); a("v_xor_b32 v27, s20, v27")
    a("v_lshl_add_u32 v28, v27, 7, v18")
    a("v_lshrrev_b32 v29, 1, v10"); a("v_lshl_add_u32 v28, v29, 2, v28")
    a("s_lshl_b32 s16, s20, 9"); a("v_add_u32 v28, s16, v28"); a("v_xor_b32 v29, 128, v28")
    a("ds_write_b32 v28, v148 offset:%d" % ZS_OFF); a("ds_write_b32 v29, v149 offset:%d" % ZS_OFF)
    a("v_lshlrev_b32 v29, 3, v1")
    a("s_lshl_b32 s21, s3, 12"); a("s_add_u32 s21, s21, %d" % WS_ZST)
    a("s_lshl_b32 s22, s4, 2"); a("s_add_u32 s22, s22, s5"); a("s_lshl_b32 s22, s22, 9"); a("s_add_u32 s22, s22, s21")
    a("s_waitcnt lgkmcnt(0)"); a("s_barrier")
    a("s_cmp_lg_u32 s20, 3"); a("s_cbranch_scc1 G1_PB")
    vm_save = list(a.vm)
    for w in range(4): a("ds_read_b64 v[%d:%d], v29 offset:%d" % (148 + 2 * w, 149 + 2 * w, ZS_OFF + w * 512))
    a("s_waitcnt lgkmcnt(0)")
    a("v_pk_add_f32 v[148:149], v[148:149], v[150:151]"); a("v_pk_add_f32 v[152:153], v[152:153], v[154:155]"); a("v_pk_add_f32 v[148:149], v[148:149], v[152:153]")
    a("v_max_f32 v149, 0, v149")
    a("buffer_store_dwordx2 v[148:149], v29, s[24:27], s22 offen sc0 sc1")
    epi(1)
    a("s_mul_i32 s17, s3, %d" % (4 * 44)); a("s_add_u32 s17, s17, s31"); a("s_lshl_b32 s17, s17, 9"); a("s_add_u32 s17, s17, %d" % WS_Z1)
    z1store(1)
    a("s_mov_b32 s23, 0")
    a.label("G1_POLL")
    for c in range(8): a("buffer_load_dwordx2 v[%d:%d], v29, s[24:27], s21 offen offset:%d sc0 sc1" % (32 + 2 * c, 33 + 2 * c, c * 512))
    a("s_add_u32 s23, s23, 1")
    a("s_waitcnt vmcnt(0)")
    a("v_max3_u32 v48, v33, v35, v37"); a("v_max3_u32 v49, v39, v41, v43"); a("v_max3_u32 v48, v48, v45, v47"); a("v_max_u32 v48, v48, v49")
    a("v_cmp_eq_u32 vcc, -1, v48")
    a("s_cmp_gt_u32 s23, 100000"); a("s_cbranch_scc1 G1_GOT")
    a("s_cbranch_vccnz G1_POLL")
    a.label("G1_GOT")
    for st in (4, 2, 1):
        for c in range(st): a("v_pk_add_f32 v[%d:%d], v[%d:%d], v[%d:%d]" % (32 + 2 * c, 33 + 2 * c, 32 + 2 * c, 33 + 2 * c, 32 + 2 * (c + st), 33 + 2 * (c + st)))
    a("v_mul_f32 v32, %s, v32" % fl(1 / 688.)); a("v_mul_f32 v33, %s, v33" % fl(1 / 688.))
    a("v_fma_f32 v33, -v32, v32, v33"); a("v_max_f32 v33, 0, v33"); bf16r(a, 33, 33)
    a("v_add_f32 v33, %s, v33" % fl(1e-5)); bf16r(a, 33, 33)
    a("v_sqrt_f32 v33, v33"); bf16r(a, 33, 33); a("v_rcp_f32 v34, v33")
    bf16r(a, 32, 32); a("v_mul_f32 v35, -v32, v34")
    a("ds_write_b64 v29, v[34:35] offset:%d" % ZF_OFF)
    a("s_branch G1_FIN")
    a.label("G1_PB")
    a.lg = []; a.vm = vm_save
    for ks in range(16):
        ds = aload_ops("b", ks + 1) if ks + 1 < 16 else []
        if ks: a.wait_lg(("b", ks))
        a.wait_vm(("B", 2, ks))
        for sp in range(4):
            a(mfma_s(2, sp, ks))
            for o in ds[2 * sp: 2 * sp + 2]: emit(o)
    stamp(a, 4)
    a("s_cmp_lg_u32 s33, 0"); a("s_cbranch_scc1 G1_Z1B")
    epi(1)
    a("s_mul_i32 s17, s3, %d" % (4 * 44)); a("s_add_u32 s17, s17, s31"); a("s_lshl_b32 s17, s17, 9"); a("s_add_u32 s17, s17, %d" % WS_Z1)
    z1store(1)
    a.label("G1_Z1B")
    epi(2)
    a("s_mul_i32 s17, s3, %d" % (4 * 44)); a("s_add_u32 s17, s17, s32"); a("s_lshl_b32 s17, s17, 9"); a("s_add_u32 s17, s17, %d" % WS_Z1)
    z1store(2)
    a.label("G1_FIN")
    a("v_lshrrev_b32 v27, 2, v17"); a("v_lshlrev_b32 v27, 3, v27"); a("v_and_b32 v28, 3, v17"); a("v_add_u32 v27, v27, v28")
    a("v_lshlrev_b32 v27, 5, v27"); a("v_lshl_add_u32 v27, v10, 3, v27")
    a("s_lshl_b32 s17, s20, 12"); a("s_add_u32 s17, s17, %d" % TR_OFF)
    a("s_lshr_b32 s16, s20, 1"); a("s_lshl_b32 s16, s16, 10"); a("s_and_b32 s23, s20, 1"); a("s_lshl_b32 s23, s23, 7"); a("s_add_u32 s16, s16, s23")
    a("v_add_u32 v27, s16, v27")
    for sp in range(4):
        a("v_xor_b32 v%d, %d, v27" % (20 + sp, (sp >> 1) * 1024 + (sp & 1) * 128)); a("v_add_u32 v%d, s17, v%d" % (20 + sp, 20 + sp))
    a("v_lshl_add_u32 v27, v10, 3, v13"); a("v_lshlrev_b32 v27, 5, v27"); a("v_and_b32 v28, 3, v1"); a("v_lshl_add_u32 v27, v28, 3, v27"); a("v_add_u32 v27, s17, v27")
    a("s_waitcnt lgkmcnt(0)"); a("s_barrier")
    stamp(a, 5)
    for sp in range(4):
        if sp: a("v_xor_b32 v28, %d, v19" % (sp * 128))
        a("ds_read_b64 v[%d:%d], v%d offset:%d" % (136 + 2 * sp, 137 + 2 * sp, 28 if sp else 19, ZF_OFF))
    a("s_waitcnt lgkmcnt(0)")
    def znorm(uu):
        for sp in range(4):
            acc = 64 + 16 * uu + 4 * sp; rs = 136 + 2 * sp
            a("v_lshlrev_b32 v144, 16, v%d" % acc); a("v_and_b32 v145, 0xffff0000, v%d" % acc)
            a("v_lshlrev_b32 v146, 16, v%d" % (acc + 1)); a("v_and_b32 v147, 0xffff0000, v%d" % (acc + 1))
            a("v_pk_fma_f32 v[144:145], v[144:145], v[%d:%d], v[%d:%d] op_sel:[0,0,1] op_sel_hi:[1,0,1]" % (rs, rs + 1, rs, rs + 1))
            a("v_pk_fma_f32 v[146:147], v[146:147], v[%d:%d], v[%d:%d] op_sel:[0,0,1] op_sel_hi:[1,0,1]" % (rs, rs + 1, rs, rs + 1))
            a("v_cvt_pk_bf16_f32 v%d, v144, v145" % acc); a("v_cvt_pk_bf16_f32 v%d, v146, v147" % (acc + 1))
            a("ds_write_b64 v%d, v[%d:%d] offset:%d" % (20 + sp, acc, acc + 1, uu * 2048))
        a("s_waitcnt lgkmcnt(0)")
        for T in range(2):
            b = 32 + 8 * uu + 4 * T
            a("ds_read_b64_tr_b16 v[%d:%d], v27 offset:%d" % (b, b + 1, uu * 2048 + T * 1024))
            a("ds_read_b64_tr_b16 v[%d:%d], v27 offset:%d" % (b + 2, b + 3, uu * 2048 + T * 1024 + 128))
        a("s_mul_i32 s16, s3, 88"); a("s_add_u32 s16, s16, s%d" % (30 + uu)); a("s_lshl_b32 s16, s16, 10")
        a("s_add_u32 s16, s16, %d" % (WS_Z2 - 44 * 1024)); a("s_add_u32 s23, s16, %d" % (44 * 1024))
        a("s_waitcnt lgkmcnt(0)")
        for T in range(2):
            b = 32 + 8 * uu + 4 * T
            a("buffer_store_dwordx4 v[%d:%d], v8, s[24:27], s%d offen%s" % (b, b + 3, 23 if T else 16, SC))
    znorm(0)
    a("s_cmp_eq_u32 s33, 0"); a("s_cbranch_scc1 G1_END")
    znorm(1)
    a.label("G1_END")
    endp(a, 1)
    return a
```

```python
from gen_common import *
GRID = 256
RING_OFF = 0
NS = 4
LDS = RING_OFF + 4 * NS * 8192
D = 6
ACC = 128
OST = 96 * 1024
WO = 24 * D
SC = " sc1"

def gen():
    a = Asm()
    stamp_init(a)
    a("v_and_b32 v1, 63, v0"); a("v_lshrrev_b32 v2, 6, v0"); a("v_readfirstlane_b32 s20, v2")
    a("s_cmp_ge_u32 s2, %d" % GRID); a("s_cbranch_scc1 G2_END")
    load_ptr(a, 24, "ws"); load_ptr(a, 28, "wsp"); load_ptr(a, 32, "bsp"); load_ptr(a, 36, "out")
    a("s_bfe_u32 s3, s2, 0x20001"); a("s_lshl_b32 s3, s3, 3"); a("s_bfe_u32 s4, s2, 0x30003"); a("s_add_u32 s3, s3, s4")
    a("s_lshr_b32 s4, s2, 6")
    a("s_and_b32 s5, s2, 1"); a("s_mul_i32 s5, s5, 11"); a("s_mul_i32 s9, s4, 3"); a("s_add_u32 s5, s5, s9")
    a("s_movk_i32 s9, 4096"); a("s_cmp_ge_u32 s4, 3"); a("s_cselect_b32 s9, 0x7f000000, s9")
    a("v_lshlrev_b32 v8, 4, v1"); a("v_add_u32 v9, s9, v8")
    a("s_mul_i32 s7, s20, %d" % (16 * 44)); a("s_lshl_b32 s8, s5, 1"); a("s_add_u32 s7, s7, s8"); a("s_lshl_b32 s7, s7, 10"); a("s_add_u32 s7, s7, %d" % WS_Z2)
    a("v_lshrrev_b32 v2, 3, v1"); a("v_lshrrev_b32 v3, 2, v2"); a("v_lshlrev_b32 v3, 3, v3"); a("v_and_b32 v4, 3, v2"); a("v_add_u32 v3, v3, v4")
    a("v_lshlrev_b32 v3, 12, v3")
    a("v_and_b32 v4, 7, v1"); a("v_lshrrev_b32 v5, 1, v2"); a("v_xor_b32 v4, v4, v5")
    a("v_lshl_add_u32 v6, v4, 4, v3")
    a("v_xor_b32 v7, 64, v6"); a("v_add_u32 v7, 0x10000, v7")
    for i in range(8):
        tt = i >> 1
        a("v_add_u32 v%d, %d, v%d" % (64 + i, (32 * (tt >> 1) + 4 * (tt & 1)) * 4096 - (i & 3) * 1024 + 4096, 6 + (i & 1)))
    a("s_lshl_b32 s6, s3, 18"); a("s_lshl_b32 s8, s20, 10"); a("s_add_u32 s6, s6, s8")
    a("s_mul_i32 s19, s20, %d" % (NS * 8192))
    a("s_waitcnt lgkmcnt(0)")
    make_srd(a, 24, "ws"); make_srd(a, 28, "wsp"); make_srd(a, 32, "bsp"); make_srd(a, 36, "out")
    a("s_sub_u32 s28, s28, 4096"); a("s_subb_u32 s29, s29, 0"); a("s_add_u32 s30, s30, 4096")
    def wdma_ops(c):
        ops = []
        for i in range(8):
            pre = []
            if i == 0: pre.append("s_add_u32 s13, s6, %d" % (c * 128))
            if i % 4 == 0: pre.append("s_add_u32 m0, s19, %d" % ((c % NS) * 8192 + i * 1024))
            ops.append((pre, "buffer_load_dwordx4 v%d, s[28:31], s13 offen offset:%d lds" % (64 + i, (i & 3) * 1024), ("w", c)))
        return ops
    def zload_ops(ks):
        st = ks % D; ops = []
        for uu in range(6):
            pre = ["s_add_u32 s12, s7, %d" % (ks * 44 * 1024)] if uu == 0 else []
            ops.append((pre, "buffer_load_dwordx4 a[%d:%d], v%d, s[24:27], s12 offen offset:%d" % (24 * st + 4 * uu, 24 * st + 4 * uu + 3, 9 if uu >= 4 else 8, (uu & 3) * 1024), ("z", ks)))
        return ops
    def emit(op):
        for p in op[0]: a(p)
        a(op[1], tag=op[2])
    for o in zload_ops(0) + wdma_ops(0) + zload_ops(1) + zload_ops(2) + wdma_ops(1): emit(o)
    a("v_and_b32 v17, 15, v1"); a("v_lshrrev_b32 v10, 4, v1")
    a("v_lshrrev_b32 v2, 1, v17"); a("v_xor_b32 v2, v2, v10"); a("v_lshlrev_b32 v2, 4, v2"); a("v_lshl_add_u32 v2, v17, 7, v2")
    a("s_lshl_b32 s16, s20, 11"); a("v_add_u32 v2, s16, v2")
    for tp in range(4):
        a("v_xor_b32 v%d, %d, v2" % (20 + tp, tp * 2048)); a("v_add_u32 v%d, s19, v%d" % (20 + tp, 20 + tp)); a("v_xor_b32 v%d, 64, v%d" % (24 + tp, 20 + tp))
    a("v_lshrrev_b32 v2, 2, v17"); a("v_lshlrev_b32 v2, 3, v2"); a("v_and_b32 v3, 3, v17"); a("v_add_u32 v2, v2, v3")
    a("s_lshr_b32 s17, s20, 1"); a("s_lshl_b32 s17, s17, 5"); a("s_and_b32 s16, s20, 1"); a("s_lshl_b32 s16, s16, 2"); a("s_add_u32 s16, s16, s17")
    a("v_add_u32 v3, s16, v2"); a("v_lshlrev_b32 v11, 1, v3")
    for i in range(96): a("v_mov_b32 v%d, 0" % (ACC + i))
    def tload(ks):
        b = ks & 1; c = ks >> 1
        assert not any(o[1][2] == ("w", c) for o in q), ("w", c)
        a.wait_vm(("w", c))
        for tp in range(4):
            a("ds_read_b128 v[%d:%d], v%d offset:%d" % (32 + 16 * b + 4 * tp, 35 + 16 * b + 4 * tp, (24 if ks & 1 else 20) + tp, (c % NS) * 8192), tag=ks)
    q = []
    for ks in range(3, 16):
        q += [(max(0, ks - D + 1), o) for o in zload_ops(ks)]
        if ks % 2 == 1 and (ks + 1) // 2 < 8:
            c = (ks + 1) // 2
            q += [(max(0, 2 * (c - NS) + 2), o) for o in wdma_ops(c)]
    a("s_and_b32 s40, s2, 1"); a("s_lshl_b32 s40, s40, 2"); a("s_add_u32 s40, s40, s4")
    a("s_lshl_b32 s41, s40, 2"); a("s_add_u32 s41, s41, s20"); a("s_mul_i32 s41, s41, %d" % (24 * 1024)); a("s_add_u32 s41, s41, %d" % WS_WOUT)
    a("v_lshlrev_b32 v13, 10, v10"); a("v_lshl_add_u32 v13, v17, 1, v13")
    a("s_lshr_b32 s43, s20, 1"); a("s_lshl_b32 s43, s43, 5"); a("s_and_b32 s44, s20, 1"); a("s_lshl_b32 s44, s44, 2"); a("s_add_u32 s43, s43, s44")
    a("s_lshl_b32 s44, s40, 6"); a("s_add_u32 s44, s44, s43")
    a("s_lshl_b32 s45, s44, 7"); a("s_lshl_b32 s46, s3, 16"); a("s_add_u32 s45, s45, s46"); a("s_add_u32 s45, s45, %d" % WS_X1T)
    a("s_lshl_b32 s46, s3, 7"); a("s_add_u32 s46, s46, %d" % WS_FLG); a("s_lshl_b32 s47, s40, 2"); a("s_add_u32 s47, s47, s46")
    a("s_lshl_b32 s16, s3, 2"); a("s_add_u32 s16, s16, s20")
    a("s_mul_i32 s17, s16, 44"); a("s_lshl_b32 s18, s5, 1"); a("s_add_u32 s17, s17, s18"); a("s_lshl_b32 s17, s17, 9"); a("s_add_u32 s17, s17, %d" % WS_Z1)
    a("v_lshlrev_b32 v14, 3, v1"); a("s_lshl_b32 s18, s3, 7")
    a("v_lshlrev_b32 v12, 5, v10"); a("s_lshl_b32 s48, s44, 2"); a("s_add_u32 s48, s48, %d" % (WS_MOD + 5 * 2048))
    for uu in range(6):
        q.append((0, ([], "buffer_load_dwordx2 v[%d:%d], v14, s[24:27], s17 offen offset:%d" % (112 + 2 * uu, 113 + 2 * uu, uu * 512), "z1")))
    q.append((0, ([], "buffer_load_ushort v16, v11, s[32:35], s18 offen", "z1")))
    for ks in range(22):
        pre = ["s_add_u32 s42, s41, %d" % (ks * 1024)] if ks % 4 == 0 else []
        q.append((0, (pre, "buffer_load_dwordx4 a[%d:%d], v8, s[24:27], s42 offen offset:%d" % (WO + 4 * ks, WO + 4 * ks + 3, (ks % 4) * 1024), "wo")))
    for tt in range(4):
        for r in range(4):
            q.append((0, ([], "buffer_load_ushort v%d, v13, s[24:27], s45 offen offset:%d" % (224 + 4 * tt + r, r * 128 + tt * 32), "x1")))
    q.append((0, ([], "buffer_load_dwordx4 v[240:243], v12, s[24:27], s48 offen", "x1")))
    stamp(a, 1)
    tload(0)
    stamp(a, 3)
    for ks in range(16):
        st = ks % D; b = ks & 1
        if ks + 1 < 16: tload(ks + 1)
        a.wait_lg(ks)
        assert not any(o[1][2] == ("z", ks) for o in q), ("z", ks)
        a.wait_vm(("z", ks))
        nm = 0
        for tp in range(4):
            w = 32 + 16 * b + 4 * tp
            for uu in range(6):
                acc = ACC + 24 * tp + 4 * uu
                a("v_mfma_f32_16x16x32_bf16 v[%d:%d], a[%d:%d], v[%d:%d], v[%d:%d]" % (acc, acc + 3, 24 * st + 4 * uu, 24 * st + 4 * uu + 3, w, w + 3, acc, acc + 3))
                nm += 1
                if q and q[0][0] <= ks and nm % 2 == 0: emit(q.pop(0)[1])
    for o in q: emit(o[1])
    stamp(a, 4)
    a("v_add_u32 v14, s19, v8")
    for tp in range(1, 4):
        for uu in range(6):
            acc = ACC + 24 * tp + 4 * uu
            a("ds_write_b128 v14, v[%d:%d] offset:%d" % (acc, acc + 3, (tp - 1) * 6144 + uu * 1024))
    for tp in range(1, 4):
        a("s_xor_b32 s21, s20, %d" % tp); a("s_mul_i32 s22, s21, %d" % (NS * 8192)); a("s_add_u32 s22, s22, %d" % (RING_OFF + (tp - 1) * 6144))
        a("v_add_u32 v%d, s22, v8" % (19 + tp))
    a.wait_vm("z1")
    a("v_lshlrev_b32 v16, 16, v16")
    for i in range(0, 24, 2): a("v_pk_add_f32 v[%d:%d], v[%d:%d], v[16:17] op_sel_hi:[1,0]" % (ACC + i, ACC + i + 1, ACC + i, ACC + i + 1))
    a("s_waitcnt lgkmcnt(0)"); a("s_barrier")
    for sidx in range(3):
        for uu in range(6):
            r = 32 + 24 * sidx + 4 * uu
            a("ds_read_b128 v[%d:%d], v%d offset:%d" % (r, r + 3, 20 + sidx, uu * 1024), tag=("r", sidx))
    for i in range(12):
        a("v_lshlrev_b32 v%d, 16, v%d" % (ACC + 24 + 2 * i, 112 + i)); a("v_and_b32 v%d, 0xffff0000, v%d" % (ACC + 25 + 2 * i, 112 + i))
    for sidx in range(3):
        a.wait_lg(("r", sidx))
        for i in range(0, 24, 2):
            r = 32 + 24 * sidx + i
            a("v_pk_add_f32 v[%d:%d], v[%d:%d], v[%d:%d]" % (ACC + i, ACC + i + 1, ACC + i, ACC + i + 1, r, r + 1))
    for i in range(12):
        g = ACC + 2 * i
        a("v_pk_mul_f32 v[%d:%d], v[%d:%d], v[%d:%d]" % (g, g + 1, g, g + 1, g + 24, g + 25))
        a("v_cvt_pk_bf16_f32 v%d, v%d, v%d" % (32 + i, g, g + 1))
    a("s_mul_i32 s17, s16, 22"); a("s_add_u32 s17, s17, s5"); a("s_lshl_b32 s17, s17, 10"); a("s_add_u32 s17, s17, %d" % WS_V)
    a("v_add_u32 v15, -2048, v9")
    for G in range(3):
        a("buffer_store_dwordx4 v[%d:%d], v%d, s[24:27], s17 offen offset:%d sc0 sc1" % (32 + 4 * G, 35 + 4 * G, 15 if G == 2 else 8, (G & 1) * 1024))
    a("s_waitcnt vmcnt(0)"); a("s_barrier")
    stamp(a, 5)
    a("s_cmp_lg_u32 s20, 0"); a("s_cbranch_scc1 G2_NS")
    a("v_mov_b32 v2, 1"); a("v_mov_b32 v3, 0"); a("s_mov_b64 exec, 1")
    a("buffer_store_dword v2, v3, s[24:27], s47 offen sc0 sc1")
    a("s_mov_b64 exec, -1")
    a.label("G2_NS")
    for i in range(16): a("v_mov_b32 v%d, 0" % (ACC + i))
    a("v_lshrrev_b32 v2, 2, v17"); a("v_lshlrev_b32 v2, 3, v2"); a("v_and_b32 v3, 3, v17"); a("v_add_u32 v2, v2, v3")
    a("v_mul_u32_u24 v2, 144, v2"); a("v_lshl_add_u32 v2, v10, 4, v2"); a("s_lshl_b32 s49, s43, 1"); a("s_add_u32 s49, s49, %d" % OST); a("v_add_u32 v18, s49, v2")
    a("v_lshrrev_b32 v2, 3, v0"); a("v_and_b32 v3, 7, v0"); a("v_mul_u32_u24 v19, 144, v2"); a("v_lshl_add_u32 v19, v3, 4, v19"); a("v_add_u32 v19, %d, v19" % OST)
    a("v_lshlrev_b32 v13, 10, v2"); a("v_lshl_add_u32 v13, v3, 4, v13")
    a("s_lshl_b32 s49, s3, 16"); a("s_lshl_b32 s50, s40, 7"); a("s_add_u32 s49, s49, s50"); a("s_add_u32 s50, s49, 32768")
    a("s_mul_i32 s51, s16, %d" % (22 * 1024)); a("s_add_u32 s51, s51, %d" % WS_V); a("s_mul_i32 s52, s20, %d" % (22 * 1024))
    a("v_add_u32 v9, %d, v8" % (44 * 1024))
    a("v_lshlrev_b32 v2, 2, v1"); a("s_mov_b32 s53, 0"); a("s_mov_b64 exec, 0xff")
    a.label("G2_POLL")
    a("buffer_load_dword v3, v2, s[24:27], s46 offen sc1")
    a("s_add_u32 s53, s53, 1")
    a("s_waitcnt vmcnt(0)")
    a("v_cmp_ne_u32 vcc, 1, v3")
    a("s_cmp_gt_u32 s53, 400000"); a("s_cbranch_scc1 G2_GO")
    a("s_cbranch_vccnz G2_POLL")
    a.label("G2_GO")
    a("s_mov_b64 exec, -1")
    stamp(a, 2)
    a.reset_counts()
    CH = ((0, 6), (6, 14), (14, 22))
    for ks in range(22):
        if ks % 4 == 0: a("s_add_u32 m0, s52, %d" % (ks * 1024)); a("s_add_u32 s54, s51, %d" % (ks * 1024))
        a("buffer_load_dwordx4 v8, s[24:27], s54 offen offset:%d sc0 sc1 lds" % ((ks % 4) * 1024), tag=("v", [i for i, (lo, hi) in enumerate(CH) if lo <= ks < hi][0]))
    def vread(ks):
        b = 32 + 16 * (ks % 3)
        return ["ds_read_b128 v[%d:%d], v%d offset:%d" % (b + 4 * tt, b + 4 * tt + 3, 9 if tt >= 2 else 8, (tt & 1) * 22 * 1024 + ks * 1024) for tt in range(4)]
    for ci, (lo, hi) in enumerate(CH):
        a.wait_vm(("v", ci)); a("s_barrier")
        for k2 in (lo, lo + 1):
            for o in vread(k2): a(o, tag=("r3", k2))
        for ks in range(lo, hi):
            nx = vread(ks + 2) if ks + 2 < hi else []
            a.wait_lg(("r3", ks))
            b = 32 + 16 * (ks % 3)
            for tt in range(4):
                acc = ACC + 4 * tt
                a("v_mfma_f32_16x16x32_bf16 v[%d:%d], a[%d:%d], v[%d:%d], v[%d:%d]" % (acc, acc + 3, WO + 4 * ks, WO + 4 * ks + 3, b + 4 * tt, b + 4 * tt + 3, acc, acc + 3))
                if nx: a(nx[tt], tag=("r3", ks + 2))
    from gen_f1 import rnd_pk
    for tt in range(4):
        for p in range(2):
            o = ACC + 4 * tt + 2 * p; xr = 224 + 4 * tt + 2 * p
            rnd_pk(a, o)
            a("v_pk_mul_f32 v[%d:%d], v[%d:%d], v[%d:%d]" % (o, o + 1, o, o + 1, 240 + 2 * p, 241 + 2 * p)); rnd_pk(a, o)
            a("v_lshlrev_b32 v%d, 16, v%d" % (xr, xr)); a("v_lshlrev_b32 v%d, 16, v%d" % (xr + 1, xr + 1))
            a("v_pk_add_f32 v[%d:%d], v[%d:%d], v[%d:%d]" % (o, o + 1, o, o + 1, xr, xr + 1))
            a("v_cvt_pk_bf16_f32 v%d, v%d, v%d" % (80 + 2 * tt + p, o, o + 1))
        a("ds_write_b64 v18, v[%d:%d] offset:%d" % (80 + 2 * tt, 81 + 2 * tt, (32 * (tt >> 1) + 4 * (tt & 1)) * 144))
    a("s_waitcnt lgkmcnt(0)"); a("s_barrier")
    a("ds_read_b128 v[32:35], v19"); a("ds_read_b128 v[36:39], v19 offset:%d" % (32 * 144))
    a("s_waitcnt lgkmcnt(1)"); a("buffer_store_dwordx4 v[32:35], v13, s[36:39], s49 offen" + SC)
    a("s_waitcnt lgkmcnt(0)"); a("buffer_store_dwordx4 v[36:39], v13, s[36:39], s50 offen" + SC)
    a.label("G2_END")
    endp(a, 2)
    return a
```

```python
import sys
sys.path.insert(0, "work")
from gen_common import *
HEAD = open("adaLN_cond__ssm_conv_s4d__mixer_gmlp__prompt.s.ref").read().split("; Override")[0]
def build():
    ks = []
    import gen_f1, gen_g1, gen_g2, gen_g3
    ks.append(("f1_kernel", gen_f1.gen(), gen_f1.GRID, 256, gen_f1.LDS))
    ks.append(("g1_kernel", gen_g1.gen(), gen_g1.GRID, 256, gen_g1.LDS))
    ks.append(("g2_kernel", gen_g2.gen(), gen_g2.GRID, 256, gen_g2.LDS))
    s = HEAD
    for n, a, g, b, l in ks: s += "; @launch kernel=%s grid=(%d,1,1) block=(%d,1,1) lds=%d\n" % (n, g, b, l)
    s += '.amdgcn_target "amdgcn-amd-amdhsa--gfx950"\n'
    descs = ""
    for n, a, g, b, l in ks:
        body, desc = kernel_text(n, a); s += body; descs += desc
    return s + descs
if __name__ == "__main__":
    out = sys.argv[1] if len(sys.argv) > 1 else "adaLN_cond__ssm_conv_s4d__mixer_gmlp__prompt.s"
    open(out, "w").write(build())
```

```python
from gen_common import *
import math
NC, NX, NM, NP, NW = 256, 128, 192, 88, 48
NARR = (NX + NM) // 2
XP = 1056
O_C, O_X, O_M, O_P, O_W = 0, NC, NC + NX, NC + NX + NM, NC + NX + NM + NP
PFM = int(os.environ.get('PFM', '1'))
PRIO = int(os.environ.get('PRIO', '1'))
GRID = O_W + NW
TP = 272; BUF = 17 * TP
CSZ = 4160
UB = 8 * CSZ; USZ = 7680
XR = UB + 2 * USZ
KC = XR; KCS = 1536
LDS = KC + 2 * KCS
SC = " sc1"
SS = " sc0 sc1"
WS_ST = WS_XT
PFT = (4, 5)
KI = 0

def rnd_pk(a, p):
    a("v_cvt_pk_bf16_f32 v%d, v%d, v%d" % (p, p, p + 1))
    a("v_and_b32 v%d, 0xffff0000, v%d" % (p + 1, p)); a("v_lshlrev_b32 v%d, 16, v%d" % (p, p))

def signal(a, dbg, lbl):
    a("s_waitcnt vmcnt(0)")
    a("s_and_b32 s70, s2, 1"); a("s_lshl_b32 s71, s70, 2"); a("s_lshl_b32 s70, s70, 6")
    a("v_mov_b32 v2, 1"); a("v_mov_b32 v3, 0"); a("s_mov_b64 exec, 1")
    a("buffer_atomic_add v2, v3, s[%d:%d], s70 offen sc0 sc1" % (dbg, dbg + 3))
    a("s_waitcnt vmcnt(0)")
    a("v_cmp_eq_u32 vcc, %d, v2" % (NARR - 1))
    a("s_cbranch_vccz %s" % lbl)
    a("v_mov_b32 v2, 1")
    a("buffer_store_dword v2, v3, s[%d:%d], s71 offen offset:128 sc0 sc1" % (dbg, dbg + 3))
    a.label(lbl)

def poll(a, dbg, lbl, va, vd):
    a("v_lshlrev_b32 v%d, 2, v1" % va); a("s_mov_b32 s71, 0"); a("s_mov_b64 exec, 3")
    a.label(lbl)
    a("buffer_load_dword v%d, v%d, s[%d:%d], 0 offen offset:128 sc1" % (vd, va, dbg, dbg + 3))
    a("s_add_u32 s71, s71, 1")
    a("s_waitcnt vmcnt(0)")
    a("v_cmp_ne_u32 vcc, 1, v%d" % vd)
    a("s_cmp_gt_u32 s71, 400000"); a("s_cbranch_scc1 %s_X" % lbl)
    a("s_cbranch_vccz %s_X" % lbl)
    a("s_sleep 2")
    a("s_branch %s" % lbl)
    a.label(lbl + "_X")
    a("s_mov_b64 exec, -1")

def role_conv(a):
    names = ("logA", "Aim", "Cr", "Ci", "logdt", "ws", "wsp", "u", "dbg", "Dsk")
    for i, n in enumerate(names): load_ptr(a, 24 + 4 * i, n)
    a("s_sub_u32 s68, s2, %d" % O_C)
    WS, WSP, U, DBG, DSK = 44, 48, 52, 56, 60
    a("s_lshr_b32 s21, s20, 1"); a("s_and_b32 s23, s20, 1")
    a("s_and_b32 s19, s68, 7"); a("s_lshl_b32 s19, s19, 5"); a("s_lshr_b32 s6, s68, 3"); a("s_add_u32 s19, s19, s6")
    a("s_lshl_b32 s22, s19, 1"); a("s_add_u32 s22, s22, s21")
    a("s_lshl_b32 s4, s22, 8"); a("s_lshl_b32 s5, s23, 7")
    a("v_lshlrev_b32 v2, 1, v1"); a("v_add_u32 v2, s5, v2"); a("v_xor_b32 v3, 128, v2")
    a("s_lshl_b32 s6, s22, 1"); a("v_mov_b32 v4, s6")
    a("s_waitcnt lgkmcnt(0)")
    for i, n in enumerate(names): make_srd(a, 24 + 4 * i, n)
    a("buffer_load_ushort v10, v4, s[40:43], 0 offen")
    a("buffer_load_ushort v11, v2, s[24:27], s4 offen"); a("buffer_load_ushort v12, v2, s[28:31], s4 offen")
    a("buffer_load_ushort v13, v2, s[32:35], s4 offen"); a("buffer_load_ushort v14, v2, s[36:39], s4 offen")
    a("buffer_load_ushort v15, v3, s[32:35], s4 offen"); a("buffer_load_ushort v16, v3, s[36:39], s4 offen")
    a("buffer_load_ushort v49, v4, s[%d:%d], 0 offen" % (DSK, DSK + 3))
    a("v_mov_b32 v56, -1"); a("v_mov_b32 v57, -1"); a("v_lshlrev_b32 v58, 3, v1")
    a("s_lshl_b32 s16, s68, 9"); a("s_add_u32 s16, s16, %d" % WS_ZST)
    a("buffer_store_dwordx2 v[56:57], v58, s[%d:%d], s16 offen%s" % (WS, WS + 3, SC))
    NAFTER = 1
    a("s_mul_i32 s7, s20, %d" % (2 * BUF))
    a("v_lshl_add_u32 v5, v1, 2, s7")
    a("v_and_b32 v6, 15, v1"); a("v_lshrrev_b32 v7, 4, v1")
    a("v_lshl_add_u32 v9, v7, 4, s7"); a("v_mul_u32_u24 v8, %d, v6" % TP); a("v_add_u32 v8, v8, v9")
    for i in range(16): a("v_mov_b32 v%d, 0" % (92 + i))
    a("s_mul_i32 s15, s21, %d" % KCS); a("s_add_u32 s15, s15, %d" % (KC + 16))
    a("v_mov_b32 v55, s15"); a("v_subrev_u32 v55, 8, v55"); a("ds_write_b64 v55, v[92:93]")
    a("v_lshlrev_b32 v22, 7, v7"); a("v_lshl_add_u32 v22, v6, 3, v22"); a("v_add_u32 v22, s15, v22")
    a("v_cmp_gt_u32 vcc, 2, v7")
    a("v_lshlrev_b32 v23, 1, v6"); a("v_lshlrev_b32 v24, 2, v6"); a("v_cndmask_b32 v23, v23, v24, vcc")
    a("v_lshl_add_u32 v23, v7, 7, v23"); a("v_add_u32 v23, s15, v23")
    a("v_mov_b32 v24, 32"); a("v_cndmask_b32 v24, v24, 2, vcc"); a("v_add_u32 v24, v24, v23")
    a("v_lshlrev_b32 v25, 6, v7"); a("v_add_u32 v25, v25, v6"); a("v_add_u32 v25, s15, v25")
    a("v_add_u32 v26, s15, v6")
    a("s_lshl_b32 s16, s23, 6"); a("v_add_u32 v29, s16, v1")
    a("v_lshlrev_b32 v60, 4, v29"); a("v_sub_u32 v60, 2047, v60"); a("v_cvt_f32_u32 v61, v60"); a("v_lshl_add_u32 v60, v60, 1, s15")
    a("s_add_u32 s16, s15, 256"); a("s_sub_u32 s17, s15, 0x8500")
    for k in range(0, 20, 2):
        a("v_subrev_f32 v62, %s, v61" % fl(float(k))); a("v_subrev_f32 v63, %s, v61" % fl(float(k + 1)))
        if k >= 16: a("v_max_f32 v62, 0, v62"); a("v_max_f32 v63, 0, v63")
        a("v_cvt_pk_bf16_f32 v62, v62, v63")
        a("v_lshrrev_b32 v63, 16, v62"); a("v_and_b32 v62, 0xffff, v62")
        a("v_lshl_add_u32 v62, v62, 1, s17"); a("v_subrev_u32 v64, %d, v60" % (2 * k)); a("v_med3_i32 v%d, v62, v64, s16" % (108 + k))
        if k < 18:
            a("v_lshl_add_u32 v63, v63, 1, s17"); a("v_subrev_u32 v64, %d, v60" % (2 * k + 2)); a("v_med3_i32 v%d, v63, v64, s16" % (109 + k))
    a("s_mul_i32 s14, s21, %d" % (4 * CSZ)); a("v_lshl_add_u32 v29, v29, 5, s14")
    a("v_lshlrev_b32 v18, 4, v1")
    a("v_add_u32 v27, s7, v18"); a("s_xor_b32 s18, s20, 1"); a("s_mul_i32 s18, s18, %d" % (2 * BUF)); a("v_add_u32 v28, s18, v18")
    a("s_waitcnt vmcnt(%d)" % (NAFTER + 5))
    stamp(a, 1)
    for r in (10, 11, 12): a("v_lshlrev_b32 v%d, 16, v%d" % (r, r))
    exp_acc(a, 10, 10, 20, 21); bf16r(a, 10, 10)
    exp_acc(a, 11, 11, 20, 21); bf16r(a, 11, 11)
    a("v_mul_f32 v11, v11, v10"); a("v_mul_f32 v12, v12, v10")
    a("v_mul_f32 v11, %s, v11" % fl(-LOG2E)); a("v_mul_f32 v12, %s, v12" % fl(1.0 / (2 * math.pi)))
    def direct(dst, p):
        t0, t1 = 20, 21
        if p == 1:
            a("v_exp_f32 v%d, v11" % t0); a("v_fract_f32 v%d, v12" % t1)
        else:
            a("v_mul_f32 v%d, %s, v11" % (t0, fl(float(p)))); a("v_mul_f32 v%d, %s, v12" % (t1, fl(float(p))))
            a("v_exp_f32 v%d, v%d" % (t0, t0)); a("v_fract_f32 v%d, v%d" % (t1, t1))
        a("v_cos_f32 v%d, v%d" % (dst, t1)); a("v_sin_f32 v%d, v%d" % (dst + 1, t1))
        a("v_mul_f32 v%d, v%d, v%d" % (dst, dst, t0)); a("v_mul_f32 v%d, v%d, v%d" % (dst + 1, dst + 1, t0))
    W1, W2, W3, W4, W64, W1K = 30, 32, 34, 36, 38, 40
    direct(W1, 1); direct(W4, 4); direct(W64, 64); direct(W1K, 1024)
    cmul(a, W2, W1, W1); cmul(a, W3, W2, W1)
    a("s_waitcnt vmcnt(%d)" % NAFTER)
    a("v_and_b32 v17, 0x7fff, v13"); a("v_and_b32 v19, 0x7fff, v14"); a("v_and_b32 v15, 0x7fff, v15"); a("v_and_b32 v16, 0x7fff, v16")
    a("v_max3_u32 v17, v17, v19, v15"); a("v_max_u32 v17, v17, v16")
    for sh in (1, 2, 4, 8): a("v_max_u32_dpp v17, v17, v17 row_shr:%d row_mask:0xf bank_mask:0xf" % sh)
    a("v_max_u32_dpp v17, v17, v17 row_bcast:15 row_mask:0xa bank_mask:0xf")
    a("v_max_u32_dpp v17, v17, v17 row_bcast:31 row_mask:0xc bank_mask:0xf")
    a("v_readlane_b32 s8, v17, 63")
    a("s_lshl_b32 s8, s8, 16"); a("s_and_b32 s8, s8, 0x7f800000"); a("s_min_u32 s8, s8, 0x7e800000"); a("s_sub_u32 s9, 0x7f000000, s8")
    P0, P1, T0 = 42, 44, 46
    a("v_lshlrev_b32 v13, 16, v13"); a("v_lshlrev_b32 v14, 16, v14")
    a("v_mul_f32 v%d, s9, v13" % P0); a("v_mul_f32 v%d, s9, v14" % (P0 + 1))
    a("v_mul_f32 v48, s8, v10"); a("v_add_f32 v48, v48, v48")
    tcnt = [0]
    def put(src, buf, row, neg=False):
        t = 50 + (tcnt[0] % 8); tcnt[0] += 1
        a("v_cvt_pk_f16_f32 v%d, v%d, %sv%d" % (t, src, "-" if neg else "", src + 1))
        a("ds_write_b32 v5, v%d offset:%d" % (t, buf * BUF + row * TP))
    def frags(dst, buf, addr=8, rowoff=0):
        for ks in range(4): a("ds_read_b128 v[%d:%d], v%d offset:%d" % (dst + 4 * ks, dst + 4 * ks + 3, addr, buf * BUF + rowoff * TP + ks * 64))
    def mm(tile, src):
        a("s_waitcnt lgkmcnt(0)")
        for ks in range(4):
            a("v_mfma_f32_16x16x32_f16 v[%d:%d], v[%d:%d], v[%d:%d], v[%d:%d]" % (92 + 4 * tile, 95 + 4 * tile, src + 4 * ks, src + 4 * ks + 3, 60 + 4 * ks, 63 + 4 * ks, 92 + 4 * tile, 95 + 4 * tile))
    cur, nxt = P0, P1
    for j in range(16):
        put(cur, 0, j, neg=True)
        if j < 15: cmul(a, nxt, cur, W4); cur, nxt = nxt, cur
    frags(60, 0)
    a("v_mov_b32 v%d, 1.0" % P0); a("v_mov_b32 v%d, 0" % (P0 + 1))
    cur = P0
    for i1 in range(4):
        put(cur, 1, 4 * i1)
        for r, W in enumerate((W1, W2, W3)):
            if i1 == 0: put(W, 1, 1 + r)
            else: cmul(a, T0, cur, W); put(T0, 1, 4 * i1 + 1 + r)
        if i1 == 0: cur = W64
        else:
            d = P0 if cur != P0 else P1
            cmul(a, d, cur, W64); cur = d
    frags(76, 1)
    for k in range(12):
        if k < 4:
            put(cur, 0, 2 * k); cmul(a, T0, cur, W2); put(T0, 0, 2 * k + 1)
        else: put(cur, 0, 8 + k - 4)
        if k == 1: mm(0, 76)
        if k < 11:
            d = P0 if cur != P0 else P1
            cmul(a, d, cur, W64); cur = d
    frags(76, 0)
    cur = W1K
    for k in range(17):
        put(cur, 1, k)
        if k == 2: mm(1, 76)
        if k < 16:
            d = P0 if cur != P0 else P1
            cmul(a, d, cur, W64); cur = d
    frags(76, 1); frags(30, 1, addr=9, rowoff=16)
    mm(2, 76); mm(3, 30)
    a("s_cmp_eq_u32 s23, 0"); a("s_cbranch_scc0 KG_H1")
    for hh in range(2):
        snd, keep = (100, 92) if hh == 0 else (92, 100)
        if hh: a.label("KG_H1")
        a("ds_write_b128 v27, v[%d:%d]" % (snd, snd + 3)); a("ds_write_b128 v27, v[%d:%d] offset:1024" % (snd + 4, snd + 7))
        a("s_waitcnt lgkmcnt(0)"); a("s_barrier")
        a("ds_read_b128 v[60:63], v28"); a("ds_read_b128 v[64:67], v28 offset:1024")
        a("s_waitcnt lgkmcnt(0)")
        for i in range(0, 8, 2): a("v_pk_add_f32 v[%d:%d], v[%d:%d], v[%d:%d]" % (60 + i, 61 + i, 60 + i, 61 + i, keep + i, keep + i + 1))
        for i in range(4): a("v_cvt_pk_f16_f32 v%d, v%d, v%d" % (68 + i, 60 + 2 * i, 61 + 2 * i))
        if hh == 0:
            a("ds_write_b64 v22, v[68:69]")
            a("ds_write_b16 v23, v70 offset:512"); a("ds_write_b16_d16_hi v24, v70 offset:512"); a("ds_write_b16 v23, v71 offset:576"); a("ds_write_b16_d16_hi v24, v71 offset:576")
            a("s_branch KG_G")
        else:
            a("s_mov_b32 exec_lo, 0x55555555"); a("s_mov_b32 exec_hi, 0x55555555")
            a("ds_write_b16 v25, v68 offset:1024"); a("ds_write_b16_d16_hi v25, v68 offset:1040"); a("ds_write_b16 v25, v69 offset:1056"); a("ds_write_b16_d16_hi v25, v69 offset:1072")
            a("ds_write_b16 v26, v70 offset:1280")
            a("s_mov_b64 exec, -1")
    a.label("KG_G")
    a("s_waitcnt lgkmcnt(0)"); a("s_barrier")
    for k in range(19): a("ds_read_u16 v%d, v%d" % (108 + k, 108 + k))
    for i in range(4): a("v_mov_b32 v%d, 0" % (32 + i))
    a("v_lshrrev_b32 v36, 7, v0"); a("v_mul_u32_u24 v36, %d, v36" % USZ)
    a("v_and_b32 v37, 127, v0"); a("v_add_u32 v38, 128, v37"); a("v_min_u32 v38, 154, v38")
    a("v_lshl_add_u32 v37, v37, 4, v36"); a("v_lshl_add_u32 v38, v38, 4, v36")
    a("v_bfe_u32 v36, v0, 2, 3"); a("v_mul_u32_u24 v36, %d, v36" % CSZ); a("v_and_b32 v39, 3, v0"); a("v_lshl_add_u32 v36, v39, 4, v36")
    a("s_waitcnt lgkmcnt(0)")
    a("ds_write_b128 v37, v[32:35] offset:%d" % UB); a("ds_write_b128 v38, v[32:35] offset:%d" % UB); a("ds_write_b128 v36, v[32:35] offset:4096")
    E, O = 60, 70
    for k in range(9): a("v_lshl_or_b32 v%d, v%d, 16, v%d" % (E + k, 109 + 2 * k, 108 + 2 * k))
    for k in range(9): a("v_lshl_or_b32 v%d, v%d, 16, v%d" % (O + k, 110 + 2 * k, 109 + 2 * k))
    for cp, R in ((0, E), (1, O)):
        a("ds_write_b128 v29, v[%d:%d] offset:%d" % (R, R + 3, cp * CSZ)); a("ds_write_b128 v29, v[%d:%d] offset:%d" % (R + 4, R + 7, cp * CSZ + 16))
    a("v_add_u32 v36, %d, v29" % (2 * CSZ)); a("v_add_u32 v37, %d, v29" % (3 * CSZ))
    for ad, R in ((36, E), (37, O)):
        for k in range(4): a("ds_write2_b32 v%d, v%d, v%d offset0:%d offset1:%d" % (ad, R + 1 + 2 * k, R + 2 + 2 * k, 2 * k, 2 * k + 1))
    a("v_lshlrev_b32 v2, 4, v1")
    a("v_and_b32 v4, 31, v1"); a("v_lshrrev_b32 v5, 5, v1")
    a("v_and_b32 v28, 3, v4"); a("v_sub_u32 v28, 3, v28"); a("v_mul_u32_u24 v28, %d, v28" % CSZ)
    a("v_lshrrev_b32 v29, 2, v4"); a("v_lshlrev_b32 v29, 3, v29"); a("v_sub_u32 v28, v28, v29"); a("v_lshl_add_u32 v28, v5, 4, v28")
    a("s_lshl_b32 s17, s23, 5"); a("s_add_u32 s16, s14, s17"); a("s_add_u32 s16, s16, 56"); a("v_add_u32 v28, s16, v28")
    a("v_mul_u32_u24 v29, 80, v4"); a("v_lshl_add_u32 v30, v5, 4, v29")
    a("s_mul_i32 s18, s21, %d" % USZ); a("s_add_u32 s16, s18, s17"); a("s_add_u32 s16, s16, %d" % UB); a("v_add_u32 v30, s16, v30")
    a("v_lshl_add_u32 v31, v5, 3, v29"); a("s_mul_i32 s16, s23, 2560"); a("s_add_u32 s16, s16, s18"); a("s_add_u32 s16, s16, %d" % (UB + 31 * 80)); a("v_add_u32 v31, s16, v31")
    a("v_lshlrev_b32 v88, 8, v4"); a("v_lshl_add_u32 v88, v5, 3, v88")
    a("v_lshrrev_b32 v32, 3, v0"); a("v_mul_u32_u24 v32, 80, v32"); a("v_bfe_u32 v33, v0, 1, 2"); a("v_lshl_add_u32 v32, v33, 4, v32")
    a("v_and_b32 v33, 1, v0"); a("v_mul_u32_u24 v34, %d, v33" % USZ); a("v_add_u32 v32, v32, v34")
    a("v_cmp_eq_u32 s[64:65], 1, v33")
    a("v_lshrrev_b32 v3, 1, v0"); a("v_lshlrev_b32 v3, 6, v3"); a("v_lshl_add_u32 v3, v33, 4, v3")
    a("s_lshr_b32 s10, s19, 1"); a("s_lshl_b32 s10, s10, 14"); a("s_and_b32 s11, s19, 1"); a("s_lshl_b32 s11, s11, 5"); a("s_add_u32 s10, s10, s11")
    a("s_add_u32 s11, s10, %d" % WS_XT); a("s_add_u32 s10, s10, %d" % WS_XNT)
    a("s_lshl_b32 s13, s23, 13"); a("s_add_u32 s11, s11, s13"); a("s_lshl_b32 s13, s21, 4"); a("s_add_u32 s11, s11, s13")
    a("v_lshrrev_b32 v36, 2, v1"); a("v_lshlrev_b32 v36, 11, v36"); a("v_and_b32 v37, 3, v1"); a("v_mul_u32_u24 v37, 12288, v37"); a("v_add_u32 v36, v36, v37")
    a("s_lshl_b32 s12, s19, 3"); a("s_add_u32 s12, s12, %d" % WS_MODP)
    a("s_and_b32 s66, s68, 7"); a("s_lshl_b32 s66, s66, 8"); a("s_lshr_b32 s67, s68, 3"); a("s_lshl_b32 s67, s67, 3"); a("s_add_u32 s66, s66, s67")
    a("s_lshl_b32 s67, s20, 1"); a("s_add_u32 s66, s66, s67"); a("s_lshl_b32 s66, s66, 12")
    a("v_lshlrev_b32 v92, 6, v1")
    for i in range(32): a("v_mov_b32 v%d, 0" % (96 + i))
    stamp(a, 2)
    npre = {0: 0, 1: 1, 2: 2, 3: 0}[PFM]
    a("s_cmp_eq_u32 s20, 0"); a("s_cbranch_scc1 CV_P0")
    for _ in range(npre): a("buffer_load_dword v93, v92, s[%d:%d], s66 offen" % (WSP, WSP + 3)); a("s_add_u32 s66, s66, 4096")
    a("s_branch CV_W")
    a.label("CV_P0")
    poll(a, DBG, "CV_POLL", 38, 39)
    for _ in range(npre): a("buffer_load_dword v93, v92, s[%d:%d], s66 offen" % (WSP, WSP + 3)); a("s_add_u32 s66, s66, 4096")
    a.label("CV_W")
    a("s_waitcnt lgkmcnt(0)"); a("s_barrier")
    stamp(a, 3)
    a("s_mov_b64 exec, 0xfff")
    a("buffer_load_dwordx2 v[38:39], v36, s[%d:%d], s12 offen%s" % (WS, WS + 3, SS))
    a("s_mov_b64 exec, -1")
    a("buffer_load_dwordx4 v[8:11], v3, s[%d:%d], s10 offen%s" % (WS, WS + 3, SS))
    a("s_add_u32 s10, s10, 8192")
    a("buffer_load_dwordx4 v[12:15], v3, s[%d:%d], s10 offen%s" % (WS, WS + 3, SS))
    a("s_waitcnt vmcnt(2)")
    for r in (38, 39):
        a("v_add_f32_dpp v%d, v%d, v%d quad_perm:[1,0,3,2] row_mask:0xf bank_mask:0xf" % (r, r, r))
        a("v_add_f32_dpp v%d, v%d, v%d quad_perm:[2,3,0,1] row_mask:0xf bank_mask:0xf" % (r, r, r))
    rnd_pk(a, 38)
    for sec in range(3):
        for c in range(2): a("v_readlane_b32 s%d, v%d, %d" % (72 + 2 * sec + c, 38 + c, 4 * sec))
    a("v_mov_b32 v40, s74"); a("v_mov_b32 v41, s75"); a("v_mov_b32 v42, s72"); a("v_mov_b32 v43, s73")
    a("v_pk_add_f32 v[40:41], v[40:41], 1.0 op_sel_hi:[1,0]"); rnd_pk(a, 40)
    for c in range(2):
        a("v_mul_f32 v%d, %s, v%d" % (44 + c, fl(23.0), 40 + c)); a("v_add_f32 v%d, abs(v%d), abs(v%d)" % (44 + c, 44 + c, 42 + c))
        a("v_and_b32 v%d, 0x7f800000, v%d" % (44 + c, 44 + c)); a("v_max_u32 v%d, 0x%x, v%d" % (44 + c, 14 << 23, 44 + c)); a("v_min_u32 v%d, 0x7f000000, v%d" % (44 + c, 44 + c))
        a("v_sub_u32 v%d, 0x%x, v%d" % (46 + c, 267 << 23, 44 + c)); a("v_subrev_u32 v%d, 0x%x, v%d" % (44 + c, 13 << 23, 44 + c))
    a("v_pk_mul_f32 v[40:41], v[40:41], v[46:47]"); a("v_pk_mul_f32 v[42:43], v[42:43], v[46:47]")
    a("s_cmp_eq_u32 s21, 0"); a("s_cselect_b64 vcc, -1, 0"); a("s_cselect_b32 s28, s76, s77")
    a("v_cndmask_b32 v44, v45, v44, vcc"); a("v_lshlrev_b32 v49, 16, v49")
    a("v_mul_f32 v48, v48, v44"); a("v_mul_f32 v49, v49, v44")
    a("v_readfirstlane_b32 s24, v48"); a("v_readfirstlane_b32 s26, v49")
    a("v_cndmask_b32 v40, v40, v41, s[64:65]"); a("v_cndmask_b32 v42, v42, v43, s[64:65]")
    for i in range(2):
        a("s_waitcnt vmcnt(%d)" % (1 - i))
        for q in range(4):
            w = 8 + 4 * i + q; p = 70 + 2 * (q & 1)
            a("v_lshlrev_b32 v%d, 16, v%d" % (p, w)); a("v_and_b32 v%d, 0xffff0000, v%d" % (p + 1, w))
            a("v_pk_mul_f32 v[%d:%d], v[%d:%d], v[40:41] op_sel_hi:[1,0]" % (p, p + 1, p, p + 1)); rnd_pk(a, p)
            a("v_pk_add_f32 v[%d:%d], v[%d:%d], v[42:43] op_sel_hi:[1,0]" % (p, p + 1, p, p + 1)); rnd_pk(a, p)
            a("v_cvt_pk_f16_f32 v%d, v%d, v%d" % (w, p, p + 1))
        a("ds_write_b128 v32, v[%d:%d] offset:%d" % (8 + 4 * i, 11 + 4 * i, UB + 31 * 80 + i * 2560))
    a("s_waitcnt lgkmcnt(0)"); a("s_barrier")
    stamp(a, 4)
    a.reset_counts()
    def loads(t):
        b = 40 + 16 * (t % 3); ops = []
        for j, m in enumerate((t, t + 32)):
            off = 4032 - 64 * m
            ops.append("ds_read_b64 v[%d:%d], v28 offset:%d" % (b + 4 * j, b + 4 * j + 1, off))
            ops.append("ds_read_b64 v[%d:%d], v28 offset:%d" % (b + 4 * j + 2, b + 4 * j + 3, off + 8))
        ops.append("ds_read_b128 v[%d:%d], v30 offset:%d" % (b + 8, b + 11, (31 - t) * 80))
        ops.append("ds_read_b128 v[%d:%d], v30 offset:%d" % (b + 12, b + 15, (63 - t) * 80))
        return ops
    for t in range(2):
        for o in loads(t): a(o, tag=("c", t))
    for t in range(32):
        nx = loads(t + 2) if t + 2 < 32 else []
        a.wait_lg(("c", t))
        b = 40 + 16 * (t % 3)
        ms = ["v_mfma_f32_32x32x16_f16 v[96:111], v[%d:%d], v[%d:%d], v[96:111]" % (b, b + 3, b + 8, b + 11),
              "v_mfma_f32_32x32x16_f16 v[112:127], v[%d:%d], v[%d:%d], v[112:127]" % (b, b + 3, b + 12, b + 15),
              "v_mfma_f32_32x32x16_f16 v[112:127], v[%d:%d], v[%d:%d], v[112:127]" % (b + 4, b + 7, b + 8, b + 11)]
        for i, m in enumerate(ms):
            a(m)
            for o in nx[2 * i: 2 * i + 2]: a(o, tag=("c", t + 2))
        if t < 4: a("buffer_load_dwordx2 v[%d:%d], v88, s[%d:%d], s11 offen offset:%d%s" % (16 + 2 * t, 17 + 2 * t, WS, WS + 3, t * 64, SS))
        if t in PFT[npre:] and PFM != 3:
            a("buffer_load_dword v93, v92, s[%d:%d], s66 offen" % (WSP, WSP + 3)); a("s_add_u32 s66, s66, 4096")
        if t == 30:
            for q in range(4): a("ds_read_b64 v[%d:%d], v31 offset:%d" % (32 + 2 * q, 33 + 2 * q, 16 * q))
    stamp(a, 5)
    a("s_lshl_b32 s16, s20, 12"); a("v_add_u32 v24, s16, v2"); a("v_xor_b32 v25, 4096, v24")
    a("v_lshrrev_b32 v7, 3, v1"); a("v_lshlrev_b32 v7, 16, v7"); a("v_and_b32 v26, 7, v1"); a("v_lshl_add_u32 v7, v26, 4, v7")
    a("s_lshl_b32 s17, s20, 11"); a("s_add_u32 s17, s17, 16384"); a("v_lshlrev_b32 v26, 6, v4"); a("v_lshl_add_u32 v26, v5, 5, v26"); a("v_add_u32 v26, s17, v26"); a("v_add_u32 v27, s17, v2")
    a("s_lshl_b32 s15, s23, 20"); a("s_lshl_b32 s16, s22, 7"); a("s_add_u32 s15, s15, s16"); a("s_add_u32 s15, s15, %d" % WS_X1T)
    a("s_waitcnt lgkmcnt(0)"); a("s_barrier")
    a("s_cmp_eq_u32 s23, 0"); a("s_cbranch_scc0 CV_H1")
    for hh in range(2):
        snd, keep = (112, 96) if hh == 0 else (96, 112)
        if hh == 1: a.label("CV_H1")
        for q in range(4): a("ds_write_b128 v24, v[%d:%d] offset:%d" % (snd + 4 * q, snd + 4 * q + 3, q * 1024))
        for k in range(8):
            t = 60 + 2 * k; hreg = 32 + k
            a("v_cvt_f32_f16 v%d, v%d" % (t, hreg)); a("v_cvt_f32_f16_sdwa v%d, v%d dst_sel:DWORD dst_unused:UNUSED_PAD src0_sel:WORD_1" % (t + 1, hreg))
            a("v_pk_mul_f32 v[%d:%d], v[%d:%d], s[26:27] op_sel_hi:[1,0]" % (t, t + 1, t, t + 1)); rnd_pk(a, t)
        a("s_waitcnt lgkmcnt(0)"); a("s_barrier")
        for q in range(4): a("ds_read_b128 v[%d:%d], v25 offset:%d" % (40 + 4 * q, 43 + 4 * q, q * 1024))
        a("s_waitcnt vmcnt(%d)" % (0 if PFM == 3 else 2 - npre))
        for i in range(8): a("v_lshlrev_b32 v%d, 16, v%d" % (snd + 2 * i, 16 + i)); a("v_and_b32 v%d, 0xffff0000, v%d" % (snd + 2 * i + 1, 16 + i))
        for i in range(0, 16, 2): a("v_mov_b64 v[%d:%d], v[%d:%d]" % (8 + i, 9 + i, snd + i, snd + i + 1))
        a("s_waitcnt lgkmcnt(0)")
        for i in range(0, 16, 2): a("v_pk_add_f32 v[%d:%d], v[%d:%d], v[%d:%d]" % (40 + i, 41 + i, 40 + i, 41 + i, keep + i, keep + i + 1))
        if hh == 0: a("s_branch CV_EP")
    a.label("CV_EP")
    for k in range(8):
        y = 40 + 2 * k; t = 60 + 2 * k
        a("v_pk_mul_f32 v[%d:%d], v[%d:%d], s[24:25] op_sel_hi:[1,0]" % (y, y + 1, y, y + 1)); rnd_pk(a, y)
        a("v_pk_add_f32 v[%d:%d], v[%d:%d], v[%d:%d]" % (y, y + 1, y, y + 1, t, t + 1)); rnd_pk(a, y)
        a("v_pk_mul_f32 v[%d:%d], v[%d:%d], s[28:29] op_sel_hi:[1,0]" % (y, y + 1, y, y + 1)); rnd_pk(a, y)
        a("v_pk_add_f32 v[%d:%d], v[%d:%d], v[%d:%d]" % (y, y + 1, y, y + 1, 8 + 2 * k, 9 + 2 * k))
        a("v_cvt_pk_bf16_f32 v%d, v%d, v%d" % (80 + k, y, y + 1))
        if k == 3: a("ds_write_b128 v26, v[80:83]")
    a("ds_write_b128 v26, v[84:87] offset:16")
    a("ds_read_b128 v[80:83], v27"); a("ds_read_b128 v[84:87], v27 offset:1024")
    a("s_add_u32 s16, s15, %d" % (8 * 65536))
    a("s_waitcnt lgkmcnt(1)"); a("buffer_store_dwordx4 v[80:83], v7, s[%d:%d], s15 offen%s" % (WS, WS + 3, SC))
    a("s_waitcnt lgkmcnt(0)"); a("buffer_store_dwordx4 v[84:87], v7, s[%d:%d], s16 offen%s" % (WS, WS + 3, SC))
    endp(a, KI)

def reduce4(a, r):
    a("v_permlane32_swap_b32 v%d, v%d" % (r[0], r[2])); a("v_permlane32_swap_b32 v%d, v%d" % (r[1], r[3]))
    a("v_add_f32 v%d, v%d, v%d" % (r[0], r[0], r[2])); a("v_add_f32 v%d, v%d, v%d" % (r[1], r[1], r[3]))
    a("v_permlane16_swap_b32 v%d, v%d" % (r[0], r[1])); a("v_add_f32 v%d, v%d, v%d" % (r[0], r[0], r[1]))
    for sh in (1, 2, 4, 8): a("v_add_f32_dpp v%d, v%d, v%d row_shr:%d row_mask:0xf bank_mask:0xf" % (r[0], r[0], r[0], sh))

def role_x(a):
    a.reset_counts()
    if PRIO: a("s_setprio 3")
    for i, n in enumerate(("u", "ws", "dbg")): load_ptr(a, 24 + 4 * i, n)
    a("s_sub_u32 s3, s2, %d" % O_X)
    a("s_lshl_b32 s4, s3, 2"); a("s_add_u32 s4, s4, s20"); a("s_lshl_b32 s4, s4, 12")
    a("v_lshlrev_b32 v2, 4, v1")
    a("s_waitcnt lgkmcnt(0)")
    for i, n in enumerate(("u", "ws", "dbg")): make_srd(a, 24 + 4 * i, n)
    for r in range(4):
        a("buffer_load_dwordx4 v[%d:%d], v2, s[24:27], s4 offen offset:%d" % (32 + 4 * r, 35 + 4 * r, r * 1024), tag=r)
    a("s_mul_i32 s5, s20, %d" % (4 * XP)); a("v_add_u32 v3, s5, v2")
    a("v_mov_b32 v4, 0x3f803f80")
    a("v_lshrrev_b32 v5, 4, v1"); a("v_bfe_u32 v6, v1, 2, 2"); a("v_and_b32 v7, 3, v1")
    a("v_and_b32 v8, 1, v5"); a("v_lshl_add_u32 v8, v8, 3, v6"); a("v_mul_u32_u24 v8, %d, v8" % XP)
    a("v_lshl_add_u32 v8, v7, 3, v8"); a("v_lshrrev_b32 v9, 1, v5"); a("v_lshl_add_u32 v8, v9, 5, v8")
    a("s_lshl_b32 s6, s20, 8"); a("v_add_u32 v26, s6, v8")
    a("v_and_b32 v10, 15, v1"); a("v_lshl_add_u32 v10, v9, 4, v10")
    a("v_lshrrev_b32 v11, 2, v10"); a("v_lshlrev_b32 v11, 14, v11"); a("v_and_b32 v10, 3, v10"); a("v_lshl_add_u32 v11, v10, 4, v11")
    a("v_and_b32 v10, 1, v5"); a("v_lshl_add_u32 v27, v10, 6, v11")
    a("s_lshl_b32 s7, s20, 19"); a("s_lshl_b32 s8, s3, 7"); a("s_add_u32 s7, s7, s8")
    for r in range(4):
        a.wait_vm(r)
        a("ds_write_b128 v3, v[%d:%d] offset:%d" % (32 + 4 * r, 35 + 4 * r, r * XP))
        a("v_dot2_f32_bf16 v%d, v%d, v4, 0" % (8 + r, 32 + 4 * r))
        for q in range(1, 4): a("v_dot2_f32_bf16 v%d, v%d, v4, v%d" % (8 + r, 32 + 4 * r + q, 8 + r))
        for q in range(4):
            a("v_lshlrev_b32 v%d, 16, v%d" % (64 + 8 * r + 2 * q, 32 + 4 * r + q))
            a("v_and_b32 v%d, 0xffff0000, v%d" % (65 + 8 * r + 2 * q, 32 + 4 * r + q))
    stamp(a, 1)
    R = [8, 9, 10, 11]
    reduce4(a, R)
    a("v_mul_f32 v8, %s, v8" % fl(-1 / 512.))
    for r in range(4): a("v_readlane_b32 s%d, v8, %d" % (40 + 2 * r, 15 + 16 * r))
    bf16r(a, 16, 8)
    for r in range(4): a("v_readlane_b32 s%d, v16, %d" % (48 + 2 * r, 15 + 16 * r))
    for r in range(4):
        for q in range(4):
            e = 64 + 8 * r + 2 * q
            a("v_pk_add_f32 v[20:21], v[%d:%d], s[%d:%d] op_sel_hi:[1,0]" % (e, e + 1, 40 + 2 * r, 41 + 2 * r))
            if q == 0: a("v_pk_mul_f32 v[22:23], v[20:21], v[20:21]")
            else: a("v_pk_fma_f32 v[22:23], v[20:21], v[20:21], v[22:23]")
        a("v_add_f32 v%d, v22, v23" % (8 + r))
    reduce4(a, R)
    a("v_mul_f32 v8, %s, v8" % fl(1 / 512.)); bf16r(a, 8, 8)
    a("v_add_f32 v8, %s, v8" % fl(1e-5)); bf16r(a, 8, 8)
    a("v_sqrt_f32 v8, v8"); bf16r(a, 8, 8); a("v_rcp_f32 v8, v8")
    for r in range(4): a("v_readlane_b32 s%d, v8, %d" % (56 + 2 * r, 15 + 16 * r))
    for r in range(4):
        for q in range(4):
            e = 64 + 8 * r + 2 * q
            a("v_pk_add_f32 v[20:21], v[%d:%d], s[%d:%d] op_sel_hi:[1,0]" % (e, e + 1, 48 + 2 * r, 49 + 2 * r))
            a("v_cvt_pk_bf16_f32 v20, v20, v21")
            a("v_and_b32 v21, 0xffff0000, v20"); a("v_lshlrev_b32 v20, 16, v20")
            a("v_pk_mul_f32 v[20:21], v[20:21], s[%d:%d] op_sel_hi:[1,0]" % (56 + 2 * r, 57 + 2 * r))
            a("v_cvt_pk_bf16_f32 v%d, v20, v21" % (48 + 4 * r + q))
        a("ds_write_b128 v3, v[%d:%d] offset:%d" % (48 + 4 * r, 51 + 4 * r, 16 * XP + r * XP))
    stamp(a, 2)
    a("s_waitcnt lgkmcnt(0)"); a("s_barrier")
    for arr in range(2):
        for it in range(4):
            b = 64 + 16 * arr + 4 * it
            a("ds_read_b64_tr_b16 v[%d:%d], v26 offset:%d" % (b, b + 1, arr * 16 * XP + it * 64), tag=(arr, it))
            a("ds_read_b64_tr_b16 v[%d:%d], v26 offset:%d" % (b + 2, b + 3, arr * 16 * XP + it * 64 + 4 * XP), tag=(arr, it))
    for arr in (1, 0):
        for it in range(4):
            b = 64 + 16 * arr + 4 * it
            a("s_add_u32 s9, s7, %d" % ((WS_XNT if arr else WS_XT) + it * 16 * 8192))
            if arr == 1 and it == 0: a("s_waitcnt lgkmcnt(0)")
            a("buffer_store_dwordx4 v[%d:%d], v27, s[28:31], s9 offen%s" % (b, b + 3, SS))
    a("s_waitcnt vmcnt(0)"); a("s_barrier")
    a("s_cmp_lg_u32 s20, 0"); a("s_cbranch_scc1 F_END")
    signal(a, 32, "SG_X")
    endp(a, KI)

def role_mod(a):
    a.reset_counts()
    if PRIO: a("s_setprio 3")
    for i, n in enumerate(("wmod", "c", "ws", "dbg")): load_ptr(a, 24 + 4 * i, n)
    a("s_sub_u32 s3, s2, %d" % O_M)
    a("s_lshr_b32 s4, s3, 2"); a("s_and_b32 s5, s3, 3")
    a("v_lshrrev_b32 v2, 3, v1"); a("s_lshl_b32 s6, s5, 7"); a("s_lshl_b32 s7, s20, 5"); a("s_add_u32 s6, s6, s7")
    a("v_add_u32 v2, s6, v2")
    a("v_mul_u32_u24 v3, 6144, v2"); a("v_and_b32 v4, 7, v1"); a("v_lshl_add_u32 v3, v4, 4, v3")
    a("s_lshl_b32 s7, s4, 7"); a("v_lshlrev_b32 v5, 1, v2")
    a("s_waitcnt lgkmcnt(0)")
    for i, n in enumerate(("wmod", "c", "ws", "dbg")): make_srd(a, 24 + 4 * i, n)
    for it in range(4):
        a("buffer_load_dwordx4 v[%d:%d], v3, s[24:27], s7 offen" % (40 + 4 * it, 43 + 4 * it), tag=it)
        if it < 3: a("s_add_u32 s7, s7, %d" % (8 * 6144))
    for it in range(4): a("buffer_load_ushort v%d, v5, s[28:31], 0 offen offset:%d" % (30 + it, it * 16), tag="c")
    a("v_lshrrev_b32 v8, 4, v1"); a("s_lshl_b32 s8, s20, 2"); a("v_add_u32 v8, s8, v8"); a("v_lshlrev_b32 v8, 8, v8"); a("v_lshl_add_u32 v8, v4, 5, v8")
    a("v_lshlrev_b32 v9, 2, v1")
    a.wait_vm("c")
    for it in range(4):
        r = 30 + it
        a("v_lshlrev_b32 v%d, 16, v%d" % (r, r)); a("v_mul_f32 v10, %s, v%d" % (fl(-LOG2E), r))
        a("v_exp_f32 v10, v10"); a("v_add_f32 v10, 1.0, v10"); a("v_rcp_f32 v10, v10")
        a("v_mul_f32 v%d, v%d, v10" % (r, r)); bf16r(a, r, r)
    for it in range(4):
        for q in range(4):
            w = 40 + 4 * it + q
            a("v_lshlrev_b32 v10, 16, v%d" % w); a("v_and_b32 v11, 0xffff0000, v%d" % w)
            op = "v_mul_f32" if it == 0 else "v_fmac_f32"
            a("%s v%d, v10, v%d" % (op, 80 + 2 * q, 30 + it)); a("%s v%d, v11, v%d" % (op, 81 + 2 * q, 30 + it))
    stamp(a, 2)
    for r in range(80, 88): a("v_add_f32_dpp v%d, v%d, v%d row_shr:8 row_mask:0xf bank_mask:0xf" % (r, r, r))
    a("s_mov_b32 exec_lo, 0xff00ff00"); a("s_mov_b32 exec_hi, 0xff00ff00")
    a("ds_write_b128 v8, v[80:83]"); a("ds_write_b128 v8, v[84:87] offset:16")
    a("s_mov_b64 exec, -1")
    a("s_waitcnt lgkmcnt(0)"); a("s_barrier")
    a("s_cmp_lg_u32 s20, 0"); a("s_cbranch_scc1 F_END")
    for i in range(16): a("ds_read_b32 v%d, v9 offset:%d" % (12 + i, i * 256))
    a("s_mul_i32 s9, s5, 12288"); a("s_lshl_b32 s10, s4, 8"); a("s_add_u32 s9, s9, s10"); a("s_add_u32 s9, s9, %d" % WS_MODP)
    a("s_waitcnt lgkmcnt(0)")
    for st in (8, 4, 2, 1):
        for i in range(st): a("v_add_f32 v%d, v%d, v%d" % (12 + i, 12 + i, 12 + i + st))
    a("buffer_store_dword v12, v9, s[32:35], s9 offen" + SS)
    signal(a, 36, "SG_M")
    endp(a, KI)

def pack_addr(a, s_dst, unit_stride):
    a("v_lshlrev_b32 v4, 4, v0")
    a("v_lshrrev_b32 v5, 4, v1"); a("v_bfe_u32 v6, v1, 2, 2"); a("v_and_b32 v7, 3, v1")
    a("v_lshl_add_u32 v8, v5, 3, v6"); a("v_lshlrev_b32 v8, 6, v8"); a("v_lshl_add_u32 v8, v7, 4, v8")
    a("s_lshr_b32 s6, s20, 1"); a("s_and_b32 s7, s20, 1")
    a("s_lshl_b32 s9, s6, 11"); a("s_lshl_b32 s10, s7, 3"); a("s_add_u32 s9, s9, s10"); a("v_add_u32 v8, s9, v8")
    a("v_lshlrev_b32 v9, 4, v1")
    a("s_lshl_b32 s9, s6, 10"); a("s_mul_i32 s10, s7, %d" % unit_stride); a("s_add_u32 s9, s9, s10"); a("s_add_u32 s%d, s%d, s9" % (s_dst, s_dst))
def pack_out(a, ws_srd, nit, s_dst):
    for it in range(nit):
        b = 32 + 4 * it
        a("ds_read_b64_tr_b16 v[%d:%d], v8 offset:%d" % (b, b + 1, it * 4096), tag=("t", it))
        a("ds_read_b64_tr_b16 v[%d:%d], v8 offset:%d" % (b + 2, b + 3, it * 4096 + 256), tag=("t", it))
    for it in range(nit):
        b = 32 + 4 * it
        if it and it % 2 == 0: a("s_add_u32 s%d, s%d, 4096" % (s_dst, s_dst))
        a.wait_lg(("t", it))
        a("buffer_store_dwordx4 v[%d:%d], v9, s[%d:%d], s%d offen offset:%d%s" % (b, b + 3, ws_srd, ws_srd + 3, s_dst, (it & 1) * 2048, SC))

def role_pack(a):
    a.reset_counts()
    load_ptr(a, 24, "win"); load_ptr(a, 28, "ws"); load_ptr(a, 32, "dbg")
    a("s_sub_u32 s3, s2, %d" % O_P); a("s_and_b32 s11, s3, 1"); a("s_lshr_b32 s3, s3, 1")
    a("s_cmp_ge_u32 s3, 22"); a("s_cselect_b32 s4, 22, 0"); a("s_cselect_b32 s5, 1376, 0")
    a("s_sub_u32 s4, s3, s4")
    a("s_lshl_b32 s6, s4, 6"); a("s_add_u32 s5, s5, s6"); a("s_mul_i32 s6, s11, %d" % (256 * 2752)); a("s_add_u32 s5, s5, s6")
    a("v_lshrrev_b32 v2, 2, v1"); a("s_lshl_b32 s6, s20, 4"); a("v_add_u32 v2, s6, v2")
    a("v_mul_u32_u24 v3, 2752, v2"); a("v_and_b32 v4, 3, v1"); a("v_lshl_add_u32 v3, v4, 4, v3")
    a("s_cmp_eq_u32 s4, 21"); a("s_cselect_b32 s7, 2, 4")
    a("v_cmp_gt_u32 vcc, s7, v4"); a("v_mov_b32 v5, 0x7f000000"); a("v_cndmask_b32 v3, v5, v3, vcc")
    a("s_lshl_b32 s8, s3, 15"); a("s_lshl_b32 s6, s11, 13"); a("s_add_u32 s8, s8, s6"); a("s_add_u32 s8, s8, %d" % WS_WIN)
    a("s_waitcnt lgkmcnt(0)")
    make_srd(a, 24, "win"); make_srd(a, 28, "ws"); make_srd(a, 32, "dbg")
    pack_addr(a, 8, 16384)
    a("v_lshlrev_b32 v10, 2, v0"); a("v_lshlrev_b32 v11, 2, v2")
    a("s_cmp_lg_u32 s20, 0"); a("s_cbranch_scc1 PK_W")
    poll(a, 32, "PK_POLL", 12, 13)
    a.label("PK_W")
    a("s_barrier")
    for it in range(4):
        a("buffer_load_dwordx4 v[%d:%d], v3, s[24:27], s5 offen" % (32 + 4 * it, 35 + 4 * it))
        if it < 3: a("s_add_u32 s5, s5, %d" % (64 * 2752))
    a("s_lshl_b32 s12, s11, 10"); a("s_add_u32 s12, s12, %d" % (WS_MODP + 3 * 2048))
    for p in range(4):
        for sec in range(3):
            if sec == 2: a("s_add_u32 s13, s12, 4096")
            a("buffer_load_dword v%d, v10, s[28:31], s%d offen offset:%d%s" % (60 + 4 * sec + p, 13 if sec == 2 else 12, (sec & 1) * 2048, SS))
        if p < 3: a("s_add_u32 s12, s12, 12288")
    a("s_waitcnt vmcnt(0)")
    for sec in range(3):
        b = 60 + 4 * sec
        a("v_add_f32 v%d, v%d, v%d" % (b, b, b + 1)); a("v_add_f32 v%d, v%d, v%d" % (b + 2, b + 2, b + 3)); a("v_add_f32 v%d, v%d, v%d" % (b, b, b + 2)); bf16r(a, b, b)
    a("v_add_f32 v64, 1.0, v64"); bf16r(a, 64, 64)
    a("ds_write_b32 v10, v60 offset:16384"); a("ds_write_b32 v10, v64 offset:17408")
    a("s_cmp_lg_u32 s3, 0"); a("s_cbranch_scc1 PK_NG")
    a("s_lshl_b32 s12, s11, 10"); a("s_add_u32 s12, s12, %d" % (WS_MOD + 5 * 2048))
    a("buffer_store_dword v68, v10, s[28:31], s12 offen" + SC)
    a.label("PK_NG")
    a("s_waitcnt lgkmcnt(0)"); a("s_barrier")
    for it in range(4):
        a("ds_read_b32 v%d, v11 offset:%d" % (60 + it, 16384 + it * 256)); a("ds_read_b32 v%d, v11 offset:%d" % (64 + it, 17408 + it * 256))
    for i in range(16): a("v_mov_b32 v%d, 0" % (80 + i))
    a("s_waitcnt lgkmcnt(0)")
    for it in range(4):
        for q in range(4):
            w = 32 + 4 * it + q
            a("v_lshlrev_b32 v12, 16, v%d" % w); a("v_and_b32 v13, 0xffff0000, v%d" % w)
            a("v_fmac_f32 v%d, v12, v%d" % (88 + 2 * q, 60 + it)); a("v_fmac_f32 v%d, v13, v%d" % (89 + 2 * q, 60 + it))
            a("v_mul_f32 v12, v12, v%d" % (64 + it)); a("v_mul_f32 v13, v13, v%d" % (64 + it))
            a("v_cvt_pk_bf16_f32 v%d, v12, v13" % w)
            a("v_lshlrev_b32 v12, 16, v%d" % w); a("v_and_b32 v13, 0xffff0000, v%d" % w)
            a("v_add_f32 v%d, v%d, v12" % (80 + 2 * q, 80 + 2 * q)); a("v_add_f32 v%d, v%d, v13" % (81 + 2 * q, 81 + 2 * q))
        a("ds_write_b128 v4, v[%d:%d] offset:%d" % (32 + 4 * it, 35 + 4 * it, it * 4096))
    for sh in (4, 8):
        for r in range(80, 96): a("v_add_f32_dpp v%d, v%d, v%d row_shr:%d row_mask:0xf bank_mask:0xf" % (r, r, r, sh))
    a("s_lshl_b32 s13, s20, 2"); a("v_add_u32 v12, s13, v5"); a("v_lshlrev_b32 v12, 7, v12"); a("v_lshl_add_u32 v12, v7, 5, v12")
    a("s_mov_b32 exec_lo, 0xf000f000"); a("s_mov_b32 exec_hi, 0xf000f000")
    for q in range(2):
        a("ds_write_b128 v12, v[%d:%d] offset:%d" % (80 + 8 * q, 83 + 8 * q, 20480 + q * 2048)); a("ds_write_b128 v12, v[%d:%d] offset:%d" % (84 + 8 * q, 87 + 8 * q, 20480 + q * 2048 + 16))
    a("s_mov_b64 exec, -1")
    a("s_waitcnt lgkmcnt(0)"); a("s_barrier")
    a.reset_counts()
    pack_out(a, 28, 4, 8)
    a("s_cmp_lg_u32 s20, 0"); a("s_cbranch_scc1 F_END")
    a("v_and_b32 v12, 31, v1"); a("v_lshlrev_b32 v12, 2, v12"); a("v_lshrrev_b32 v13, 5, v1"); a("v_lshl_add_u32 v12, v13, 11, v12")
    for i in range(16): a("ds_read_b32 v%d, v12 offset:%d" % (60 + i, 20480 + i * 128))
    a("v_bfe_u32 v14, v1, 2, 1"); a("v_lshlrev_b32 v14, 6, v14"); a("v_bfe_u32 v15, v1, 3, 2"); a("v_lshl_add_u32 v14, v15, 4, v14")
    a("v_and_b32 v15, 3, v1"); a("v_lshl_add_u32 v14, v15, 2, v14"); a("v_mul_u32_u24 v13, %d, v13" % (WS_CS2 - WS_CS1)); a("v_add_u32 v14, v14, v13")
    a("s_lshl_b32 s12, s3, 7"); a("s_mul_i32 s13, s11, %d" % CS_PART); a("s_add_u32 s12, s12, s13"); a("s_add_u32 s12, s12, %d" % WS_CS1)
    a("s_waitcnt lgkmcnt(0)")
    for st in (8, 4, 2, 1):
        for i in range(st): a("v_add_f32 v%d, v%d, v%d" % (60 + i, 60 + i, 60 + i + st))
    a("buffer_store_dword v60, v14, s[28:31], s12 offen" + SC)
    endp(a, KI)

def role_wout(a):
    a.reset_counts()
    load_ptr(a, 24, "wout"); load_ptr(a, 28, "ws")
    a("s_sub_u32 s3, s2, %d" % O_W); a("s_and_b32 s4, s3, 15"); a("s_lshr_b32 s11, s3, 4")
    a("s_lshl_b32 s5, s4, 6"); a("s_lshl_b32 s6, s11, 18"); a("s_add_u32 s5, s5, s6")
    a("v_lshrrev_b32 v2, 2, v1"); a("s_lshl_b32 s6, s20, 4"); a("v_add_u32 v2, s6, v2")
    a("v_lshlrev_b32 v3, 10, v2"); a("v_and_b32 v4, 3, v1"); a("v_lshl_add_u32 v3, v4, 4, v3")
    a("s_mul_i32 s8, s4, %d" % (2 * 24 * 1024)); a("s_lshl_b32 s6, s11, 13"); a("s_add_u32 s8, s8, s6"); a("s_add_u32 s8, s8, %d" % WS_WOUT)
    a("s_waitcnt lgkmcnt(0)")
    make_srd(a, 24, "wout"); make_srd(a, 28, "ws")
    for it in range(4):
        a("buffer_load_dwordx4 v[%d:%d], v3, s[24:27], s5 offen" % (32 + 4 * it, 35 + 4 * it), tag=it)
        if it < 3: a("s_add_u32 s5, s5, 65536")
    pack_addr(a, 8, 24 * 1024)
    a("s_cmp_lg_u32 s3, 0"); a("s_cbranch_scc1 WO_NF")
    for i in range(4): a("v_mov_b32 v%d, 0" % (60 + i))
    a("s_mov_b32 s12, %d" % WS_FLG)
    vm0 = list(a.vm)
    a("buffer_store_dwordx4 v[60:63], v4, s[28:31], s12 offen" + SC)
    a("s_add_u32 s12, s12, 4096")
    a("buffer_store_dwordx4 v[60:63], v4, s[28:31], s12 offen" + SC)
    a("s_waitcnt vmcnt(0)")
    a.vm = vm0
    a.label("WO_NF")
    for it in range(4):
        a.wait_vm(it); a("ds_write_b128 v4, v[%d:%d] offset:%d" % (32 + 4 * it, 35 + 4 * it, it * 4096))
    a("s_waitcnt lgkmcnt(0)"); a("s_barrier")
    pack_out(a, 28, 4, 8)
    endp(a, KI)

def gen():
    a = Asm()
    stamp_init(a)
    a("v_and_b32 v1, 63, v0"); a("v_lshrrev_b32 v2, 6, v0"); a("v_readfirstlane_b32 s20, v2")
    a("s_cmp_ge_u32 s2, %d" % GRID); a("s_cbranch_scc1 F_END")
    a("s_cmp_ge_u32 s2, %d" % O_W); a("s_cbranch_scc1 F_WOUT")
    a("s_cmp_ge_u32 s2, %d" % O_P); a("s_cbranch_scc1 F_PACK")
    a("s_cmp_ge_u32 s2, %d" % O_M); a("s_cbranch_scc1 F_MOD")
    a("s_cmp_ge_u32 s2, %d" % O_X); a("s_cbranch_scc1 F_X")
    role_conv(a)
    a.label("F_MOD"); role_mod(a)
    a.label("F_X"); role_x(a)
    a.label("F_PACK"); role_pack(a)
    a.label("F_WOUT"); role_wout(a)
    a.label("F_END"); endp(a, KI)
    return a
```

```python
from gen_common import *
from gen_f1 import rnd_pk
GRID = 256
A_OFF = 0
SG_OFF = 65536
SM = 131072
ST_OFF = 0; ZS_OFF = 512; ZF_OFF = 2560; CS_OFF = 4096; Z1_OFF = 8192; TR_OFF = 20480
LDS = SM + TR_OFF + 8192
OST = 96 * 1024
Z2_NORMALIZED = True
K0 = -2 * 0.7978845608028654 * LOG2E
K1 = K0 * 0.044715
SC = " sc1"; SS = " sc0 sc1"
NPRE = int(os.environ.get("NPRE", "24"))
VSL = (1, 4, 7, 9)
D = 5
ACC = 64
WO = 160
WS_FL1 = WS_FLG + 4096
KI = 1

def gen():
    a = Asm()
    stamp_init(a)
    a("v_and_b32 v1, 63, v0"); a("v_lshrrev_b32 v2, 6, v0"); a("v_readfirstlane_b32 s20, v2")
    a("s_cmp_ge_u32 s2, %d" % GRID); a("s_cbranch_scc1 G_END")
    load_ptr(a, 24, "ws"); load_ptr(a, 56, "wsp"); load_ptr(a, 60, "bsp"); load_ptr(a, 64, "out")
    a("s_bfe_u32 s3, s2, 0x20001"); a("s_lshl_b32 s3, s3, 3"); a("s_bfe_u32 s4, s2, 0x30003"); a("s_add_u32 s3, s3, s4")
    a("s_and_b32 s4, s2, 1"); a("s_lshr_b32 s5, s2, 6")
    a("v_lshrrev_b32 v2, 3, v1"); a("v_bfe_u32 v4, v1, 4, 1"); a("v_lshlrev_b32 v4, 5, v4")
    a("v_and_b32 v5, 7, v1"); a("v_lshlrev_b32 v5, 4, v5"); a("v_xor_b32 v5, v5, v4")
    a("v_lshl_add_u32 v6, v2, 7, v5"); a("v_xor_b32 v7, 64, v6"); a("v_lshlrev_b32 v8, 4, v1")
    a("s_lshl_b32 s7, s20, 12"); a("s_lshl_b32 s6, s3, 16"); a("s_add_u32 s6, s6, s7"); a("s_add_u32 s6, s6, %d" % WS_X1T)
    a("s_mul_i32 s11, s4, 22"); a("s_mul_i32 s8, s5, 5"); a("s_add_u32 s8, s8, s11"); a("s_add_u32 s8, s8, 44")
    a("s_mul_i32 s9, s5, 6"); a("s_add_u32 s9, s9, s11")
    a("s_cmp_eq_u32 s5, 3"); a("s_cselect_b32 s10, 3, 1")
    a("s_add_u32 s30, s8, s20")
    a("s_add_u32 s11, s30, 4"); a("s_sub_u32 s47, s20, s10"); a("s_add_u32 s12, s9, s47")
    a("s_cmp_lt_u32 s20, s10"); a("s_cselect_b32 s31, s11, s12"); a("s_cselect_b32 s33, 1, 0")
    a("s_add_u32 s32, s12, 4")
    a("s_cmp_eq_u32 s20, 3"); a("s_cselect_b32 s13, 0x7f000000, 0")
    a("v_add_u32 v9, s13, v8")
    for uu in range(3):
        a("s_lshl_b32 s%d, s%d, 14" % (34 + uu, 30 + uu)); a("s_add_u32 s%d, s%d, %d" % (34 + uu, 34 + uu, WS_WIN))
    a("v_lshrrev_b32 v10, 4, v1")
    a("v_mov_b32 v11, s30"); a("v_mov_b32 v12, s31"); a("v_cmp_eq_u32 vcc, 1, v10"); a("v_cndmask_b32 v11, v11, v12, vcc")
    a("v_mov_b32 v12, s32"); a("v_cmp_eq_u32 vcc, 2, v10"); a("v_cndmask_b32 v11, v11, v12, vcc")
    a("v_and_b32 v17, 15, v1"); a("v_lshlrev_b32 v11, 6, v11"); a("v_lshl_add_u32 v11, v17, 2, v11")
    a("s_lshl_b32 s46, s20, 10"); a("s_add_u32 s46, s46, %d" % SM)
    a("s_waitcnt lgkmcnt(0)")
    make_srd(a, 24, "ws"); make_srd(a, 56, "wsp"); make_srd(a, 60, "bsp"); make_srd(a, 64, "out")
    def aop(Q, i):
        pre = ["s_add_u32 m0, s7, %d" % (A_OFF + Q * 16384), "s_add_u32 s14, s6, %d" % (Q * 16384)] if i == 0 else []
        return (pre, "buffer_load_dwordx4 v%d, s[24:27], s14 offen offset:%d lds" % (6 + (i & 1), i * 1024), ("A", Q))
    def breg(uu, ks): return ("a", 64 * uu + 4 * ks) if uu < 2 else ("v", 192 + 4 * ks)
    def bop(uu, ks):
        pre = ["s_add_u32 s%d, s%d, %d" % (38 + uu, 34 + uu, ks * 1024)] if ks % 4 == 0 else []
        t, r = breg(uu, ks)
        return (pre, "buffer_load_dwordx4 %s[%d:%d], v%d, s[24:27], s%d offen offset:%d" % (t, r, r + 3, 9 if uu == 2 else 8, 38 + uu, (ks % 4) * 1024), ("B", uu, ks))
    def emit(op):
        for p in op[0]: a(p)
        a(op[1], tag=op[2])
    bq = []
    for Q in range(4):
        bq += [aop(Q, i) for i in range(4)]
        for ks in range(4 * Q, 4 * Q + 4): bq += [bop(0, ks), bop(1, ks)]
    for i, off in enumerate((WS_CS1, WS_CS2, WS_CS1 + CS_PART, WS_CS2 + CS_PART)):
        bq.append((["s_add_u32 m0, s46, %d" % (CS_OFF + 256 * i), "s_mov_b32 s15, %d" % off], "buffer_load_dword v11, s[24:27], s15 offen lds", "cs"))
    bq += [bop(2, ks) for ks in range(16)]
    for _ in range(NPRE): emit(bq.pop(0))
    a("s_sub_u32 s56, s56, 4096"); a("s_subb_u32 s57, s57, 0"); a("s_add_u32 s58, s58, 4096")
    a("v_bfe_u32 v13, v1, 2, 2"); a("v_lshl_add_u32 v14, v10, 3, v13"); a("v_lshlrev_b32 v14, 7, v14")
    a("v_and_b32 v15, 3, v1"); a("v_lshl_add_u32 v14, v15, 3, v14")
    a("v_bfe_u32 v15, v1, 3, 2"); a("v_lshl_add_u32 v16, v15, 5, v14")
    a("v_xor_b32 v15, s20, v15"); a("v_lshl_add_u32 v20, v15, 5, v14")
    for sp in range(1, 4): a("v_xor_b32 v%d, %d, v20" % (20 + sp, sp * 32))
    for i in range(48): a("v_mov_b32 v%d, 0" % (64 + i))
    a("v_mov_b32 v26, 0x3f803f80")
    for i in range(8): a("v_mov_b32 v%d, 0" % (156 + i))
    for i in range(4): a("v_mov_b32 v%d, 0x3f803f80" % (164 + i))
    a("v_lshlrev_b32 v18, 3, v17")
    a("v_mov_b32 v30, %s" % fl(K0)); a("v_mov_b32 v31, %s" % fl(K0)); a("s_mov_b32 s18, %s" % fl(K1))
    def aload_ops(tag, ks):
        b = 32 + 16 * (ks & 1); ops = []
        for sp in range(4):
            ops.append(([], "ds_read_b64_tr_b16 v[%d:%d], v%d offset:%d" % (b + 4 * sp, b + 4 * sp + 1, 20 + sp, ks * 4096), (tag, ks)))
            ops.append(([], "ds_read_b64_tr_b16 v[%d:%d], v%d offset:%d" % (b + 4 * sp + 2, b + 4 * sp + 3, 20 + sp, ks * 4096 + 512), (tag, ks)))
        return ops
    def mfma_s(uu, sp, ks):
        b = 32 + 16 * (ks & 1); acc = 64 + 16 * uu + 4 * sp; t, r = breg(uu, ks)
        return "v_mfma_f32_16x16x32_bf16 v[%d:%d], %s[%d:%d], v[%d:%d], v[%d:%d]" % (acc, acc + 3, t, r, r + 3, b + 4 * sp, b + 4 * sp + 3, acc, acc + 3)
    def need_issued(tag):
        while any(o[2] == tag for o in bq): emit(bq.pop(0))
    def qbar(Q):
        need_issued(("A", Q)); a.wait_vm(("A", Q)); a("s_barrier")
    qbar(0)
    for o in aload_ops("a", 0): emit(o)
    for ks in range(16):
        if ks % 4 == 3 and ks + 1 < 16: qbar((ks + 1) // 4)
        ds = aload_ops("a", ks + 1) if ks + 1 < 16 else aload_ops("b", 0)
        need_issued(("B", 1, ks))
        a.wait_lg(("a", ks)); a.wait_vm(("B", 1, ks))
        b = 32 + 16 * (ks & 1)
        ms = [mfma_s(uu, sp, ks) for uu in range(2) for sp in range(4)]
        ms += ["v_mfma_f32_16x16x32_bf16 v[156:159], v[164:167], v[%d:%d], v[156:159]" % (b, b + 3),
               "v_mfma_f32_16x16x32_bf16 v[160:163], v[%d:%d], v[%d:%d], v[160:163]" % (b, b + 3, b, b + 3)]
        for n, m in enumerate(ms):
            a(m)
            if ds: emit(ds.pop(0))
            if n in VSL and bq: emit(bq.pop(0))
    for o in bq: emit(o)
    stamp(a, 1)
    a("v_and_b32 v27, 3, v1")
    a("v_cmp_eq_u32 vcc, 1, v27"); a("v_cndmask_b32 v25, v160, v161, vcc")
    a("v_cmp_eq_u32 vcc, 2, v27"); a("v_cndmask_b32 v25, v25, v162, vcc")
    a("v_cmp_eq_u32 vcc, 3, v27"); a("v_cndmask_b32 v25, v25, v163, vcc")
    a("v_mul_f32 v24, %s, v156" % fl(1 / 512.)); a("v_mul_f32 v25, %s, v25" % fl(1 / 512.))
    a("v_fma_f32 v25, -v24, v24, v25"); a("v_max_f32 v25, 0, v25"); bf16r(a, 25, 25)
    a("v_add_f32 v25, %s, v25" % fl(1e-5)); bf16r(a, 25, 25)
    a("v_sqrt_f32 v25, v25"); bf16r(a, 25, 25); a("v_rcp_f32 v28, v25")
    bf16r(a, 24, 24); a("v_mul_f32 v29, v24, v28")
    a("s_lshl_b32 s16, s20, 7"); a("s_add_u32 s16, s16, %d" % SM); a("v_add_u32 v19, s16, v18")
    a("v_cmp_eq_u32 vcc, v13, v10"); a("s_and_saveexec_b64 s[44:45], vcc")
    a("ds_write_b64 v19, v[28:29] offset:%d" % ST_OFF)
    a("s_mov_b64 exec, s[44:45]")
    a("v_lshlrev_b32 v11, 4, v10"); a("v_add_u32 v11, s46, v11")
    a.wait_vm("cs")
    for uu in range(3):
        for i in range(4):
            r = (112 if i < 2 else 168) + 8 * uu + 4 * (i & 1)
            a("ds_read_b128 v[%d:%d], v11 offset:%d" % (r, r + 3, CS_OFF + 256 * i + uu * 64))
    a("s_waitcnt lgkmcnt(0)"); a("s_barrier")
    for sp in range(4):
        if sp: a("v_xor_b32 v27, %d, v19" % (sp * 128))
        a("ds_read_b64 v[%d:%d], v%d offset:%d" % (136 + 2 * sp, 137 + 2 * sp, 27 if sp else 19, ST_OFF))
    for i in range(0, 24, 2): a("v_pk_add_f32 v[%d:%d], v[%d:%d], v[%d:%d]" % (112 + i, 113 + i, 112 + i, 113 + i, 168 + i, 169 + i))
    a("v_lshrrev_b32 v2, 3, v1"); a("v_lshrrev_b32 v3, 2, v2"); a("v_lshlrev_b32 v3, 3, v3"); a("v_and_b32 v4, 3, v2"); a("v_add_u32 v3, v3, v4"); a("v_lshlrev_b32 v3, 12, v3")
    a("v_and_b32 v4, 7, v1"); a("v_lshrrev_b32 v5, 1, v2"); a("v_xor_b32 v4, v4, v5")
    a("v_lshl_add_u32 v6, v4, 4, v3"); a("v_xor_b32 v7, 64, v6"); a("v_add_u32 v7, 0x10000, v7")
    for i in range(8):
        tt = i >> 1
        a("v_add_u32 v%d, %d, v%d" % (168 + i, (32 * (tt >> 1) + 4 * (tt & 1)) * 4096 - (i & 3) * 1024 + 4096, 6 + (i & 1)))
    a("s_lshl_b32 s6, s3, 18"); a("s_lshl_b32 s7, s20, 10"); a("s_add_u32 s6, s6, s7")
    a("s_lshl_b32 s19, s20, 14")
    def cbase(c): return (SG_OFF + (c & 1) * 8192) if c < 6 else (A_OFF + (c & 1) * 8192)
    def wdma_ops(c):
        ops = []
        for i in range(8):
            pre = []
            if i == 0: pre.append("s_add_u32 s13, s6, %d" % (c * 128))
            if i % 4 == 0: pre.append("s_add_u32 m0, s19, %d" % (cbase(c) + i * 1024))
            ops.append((pre, "buffer_load_dwordx4 v%d, s[56:59], s13 offen offset:%d lds" % (168 + i, (i & 3) * 1024), ("w", c)))
        return ops
    wv = wdma_ops(0) + wdma_ops(1)
    a("v_lshrrev_b32 v2, 1, v17"); a("v_xor_b32 v2, v2, v10"); a("v_lshlrev_b32 v2, 4, v2"); a("v_lshl_add_u32 v2, v17, 7, v2")
    a("s_lshl_b32 s16, s20, 11"); a("v_add_u32 v2, s16, v2"); a("s_add_u32 s16, s19, %d" % SG_OFF)
    for tp in range(4):
        a("v_xor_b32 v%d, %d, v2" % (176 + tp, tp * 2048)); a("v_add_u32 v%d, s16, v%d" % (176 + tp, 176 + tp)); a("v_xor_b32 v%d, 64, v%d" % (180 + tp, 176 + tp))
    def wread_ops(c):
        return [([], "ds_read_b128 a[%d:%d], v%d offset:%d" % (128 + 32 * c + 16 * h + 4 * tp, 131 + 32 * c + 16 * h + 4 * tp, (180 if h else 176) + tp, (c & 1) * 8192), ("wr", c)) for h in range(2) for tp in range(4)]
    a("v_lshlrev_b32 v29, 3, v1"); a("v_add_u32 v28, %d, v29" % SM)
    for sp in range(4):
        a("s_xor_b32 s16, s20, %d" % sp); a("s_mul_i32 s16, s16, 6"); a("s_add_u32 s16, s16, s47"); a("s_lshl_b32 s16, s16, 9"); a("v_add_u32 v%d, s16, v28" % (184 + sp))
    a("s_waitcnt lgkmcnt(0)")
    def epi(uu):
        for sp in range(4):
            acc = 64 + 16 * uu + 4 * sp; rs = 136 + 2 * sp
            ops = [[], []]
            for p in range(2):
                z = acc + 2 * p; c1 = 112 + 8 * uu + 2 * p; c2 = 116 + 8 * uu + 2 * p; t = 144 + 2 * p
                ops[p] = [
                 "v_pk_fma_f32 v[%d:%d], v[%d:%d], v[%d:%d], v[%d:%d] op_sel:[0,1,0] op_sel_hi:[1,1,1] neg_lo:[0,1,0] neg_hi:[0,1,0]" % (t, t + 1, c1, c1 + 1, rs, rs + 1, c2, c2 + 1),
                 "v_pk_fma_f32 v[%d:%d], v[%d:%d], v[%d:%d], v[%d:%d] op_sel_hi:[1,0,1]" % (z, z + 1, z, z + 1, rs, rs + 1, t, t + 1),
                 "v_pk_mul_f32 v[%d:%d], v[%d:%d], v[%d:%d]" % (t, t + 1, z, z + 1, z, z + 1),
                 "v_pk_fma_f32 v[%d:%d], v[%d:%d], s[18:19], v[30:31] op_sel_hi:[1,0,1]" % (t, t + 1, t, t + 1),
                 "v_pk_mul_f32 v[%d:%d], v[%d:%d], v[%d:%d]" % (t, t + 1, t, t + 1, z, z + 1),
                 "v_exp_f32 v%d, v%d" % (t, t), "v_exp_f32 v%d, v%d" % (t + 1, t + 1),
                 "v_pk_add_f32 v[%d:%d], v[%d:%d], 1.0 op_sel_hi:[1,0]" % (t, t + 1, t, t + 1),
                 "v_rcp_f32 v%d, v%d" % (t, t), "v_rcp_f32 v%d, v%d" % (t + 1, t + 1),
                 "v_pk_mul_f32 v[%d:%d], v[%d:%d], v[%d:%d]" % (z, z + 1, z, z + 1, t, t + 1)]
            for n_, (o0, o1) in enumerate(zip(*ops)):
                a(o0); a(o1)
                if wv and n_ in (2, 8): emit(wv.pop(0))
            a("v_cvt_pk_bf16_f32 v%d, v%d, v%d" % (acc, acc, acc + 1)); a("v_cvt_pk_bf16_f32 v%d, v%d, v%d" % (acc + 1, acc + 2, acc + 3))
    def zstat(uu, first):
        for sp in range(4):
            acc = 64 + 16 * uu + 4 * sp
            for p in range(2):
                z1_ = "0" if (first and p == 0) else "v%d" % (148 + sp); z2_ = "0" if (first and p == 0) else "v%d" % (152 + sp)
                a("v_dot2_f32_bf16 v%d, v%d, v26, %s" % (148 + sp, acc + p, z1_))
                a("v_dot2_f32_bf16 v%d, v%d, v%d, %s" % (152 + sp, acc + p, acc + p, z2_))
    def z1put(uu):
        for sp in range(4):
            acc = 64 + 16 * uu + 4 * sp
            a("ds_write_b64 v%d, v[%d:%d] offset:%d" % (184 + sp, acc, acc + 1, Z1_OFF + (2048 if uu == 2 else 0)))
    epi(0); zstat(0, True); epi(1)
    assert not wv
    a("s_cmp_eq_u32 s33, 0"); a("s_cbranch_scc1 G1_NOZ2B")
    zstat(1, False)
    a("s_branch G1_J1")
    a.label("G1_NOZ2B")
    z1put(1)
    a.label("G1_J1")
    for i in range(4): a("v_permlane32_swap_b32 v%d, v%d" % (148 + i, 152 + i))
    for i in range(4): a("v_add_f32 v%d, v%d, v%d" % (148 + i, 148 + i, 152 + i))
    for i in range(2): a("v_permlane16_swap_b32 v%d, v%d" % (148 + i, 150 + i))
    for i in range(2): a("v_add_f32 v%d, v%d, v%d" % (148 + i, 148 + i, 150 + i))
    a("v_and_b32 v27, 1, v10"); a("v_lshlrev_b32 v27, 1, v27"); a("v_xor_b32 v27, s20, v27")
    a("v_lshl_add_u32 v27, v27, 7, v18"); a("v_lshrrev_b32 v24, 1, v10"); a("v_lshl_add_u32 v27, v24, 2, v27")
    a("s_lshl_b32 s16, s20, 9"); a("s_add_u32 s16, s16, %d" % SM); a("v_add_u32 v27, s16, v27"); a("v_xor_b32 v24, 128, v27")
    a("ds_write_b32 v27, v148 offset:%d" % ZS_OFF); a("ds_write_b32 v24, v149 offset:%d" % ZS_OFF)
    a("s_lshl_b32 s21, s3, 12"); a("s_add_u32 s21, s21, %d" % WS_ZST)
    a("s_lshl_b32 s40, s4, 2"); a("s_add_u32 s40, s40, s5")
    a("s_lshl_b32 s22, s40, 9"); a("s_add_u32 s22, s22, s21")
    a("s_waitcnt lgkmcnt(0)"); a("s_barrier")
    stamp(a, 2)
    a("s_cmp_lg_u32 s20, 3"); a("s_cbranch_scc1 G1_PB")
    vm_save = list(a.vm)
    for w in range(4): a("ds_read_b64 v[%d:%d], v28 offset:%d" % (148 + 2 * w, 149 + 2 * w, ZS_OFF + w * 512))
    a("s_waitcnt lgkmcnt(0)")
    a("v_pk_add_f32 v[148:149], v[148:149], v[150:151]"); a("v_pk_add_f32 v[152:153], v[152:153], v[154:155]"); a("v_pk_add_f32 v[148:149], v[148:149], v[152:153]")
    a("v_max_f32 v149, 0, v149")
    a("buffer_store_dwordx2 v[148:149], v29, s[24:27], s22 offen" + SS)
    for c in range(2):
        a.wait_vm(("w", c))
        for o in wread_ops(c): emit(o)
        a("s_waitcnt lgkmcnt(0)")
        for o in wdma_ops(c + 2): emit(o)
    a("s_mov_b32 s23, 0")
    a.label("G1_POLL")
    for c in range(8): a("buffer_load_dwordx2 v[%d:%d], v29, s[24:27], s21 offen offset:%d%s" % (32 + 2 * c, 33 + 2 * c, c * 512, SS))
    a("s_add_u32 s23, s23, 1")
    a("s_waitcnt vmcnt(0)")
    a("v_max3_u32 v48, v33, v35, v37"); a("v_max3_u32 v49, v39, v41, v43"); a("v_max3_u32 v48, v48, v45, v47"); a("v_max_u32 v48, v48, v49")
    a("v_cmp_eq_u32 vcc, -1, v48")
    a("s_cmp_gt_u32 s23, 100000"); a("s_cbranch_scc1 G1_GOT")
    a("s_cbranch_vccnz G1_POLL")
    a.label("G1_GOT")
    for st in (4, 2, 1):
        for c in range(st): a("v_pk_add_f32 v[%d:%d], v[%d:%d], v[%d:%d]" % (32 + 2 * c, 33 + 2 * c, 32 + 2 * c, 33 + 2 * c, 32 + 2 * (c + st), 33 + 2 * (c + st)))
    a("v_mul_f32 v32, %s, v32" % fl(1 / 688.)); a("v_mul_f32 v33, %s, v33" % fl(1 / 688.))
    a("v_fma_f32 v33, -v32, v32, v33"); a("v_max_f32 v33, 0, v33"); bf16r(a, 33, 33)
    a("v_add_f32 v33, %s, v33" % fl(1e-5)); bf16r(a, 33, 33)
    a("v_sqrt_f32 v33, v33"); bf16r(a, 33, 33); a("v_rcp_f32 v34, v33")
    bf16r(a, 32, 32); a("v_mul_f32 v35, -v32, v34")
    a("ds_write_b64 v28, v[34:35] offset:%d" % ZF_OFF)
    a("s_branch G1_FIN")
    a.label("G1_PB")
    a.lg = []; a.vm = vm_save
    dq = []
    for ks in range(16):
        ds = aload_ops("b", ks + 1) if ks + 1 < 16 else []
        if ks: a.wait_lg(("b", ks))
        a.wait_vm(("B", 2, ks))
        if ks in (0, 6):
            c = ks // 6
            a.wait_vm(("w", c))
            for o in wread_ops(c): emit(o)
        if ks in (1, 7): dq = wdma_ops(ks // 6 + 2)
        for sp in range(4):
            a(mfma_s(2, sp, ks))
            for o in ds[2 * sp: 2 * sp + 2]: emit(o)
            if dq and sp & 1: emit(dq.pop(0))
    assert not dq
    epi(2); z1put(2)
    a("s_waitcnt vmcnt(0)")
    a.label("G1_FIN")
    a.reset_counts()
    for c in (2, 3):
        for o in wread_ops(c): emit(o)
    a("s_lshr_b32 s43, s20, 1"); a("s_lshl_b32 s43, s43, 5"); a("s_and_b32 s44, s20, 1"); a("s_lshl_b32 s44, s44, 2"); a("s_add_u32 s43, s43, s44")
    a("s_lshl_b32 s44, s40, 6"); a("s_add_u32 s44, s44, s43"); a("s_lshl_b32 s45, s44, 7")
    a("v_add_u32 v16, s45, v16")
    for tt in range(4):
        if tt: a("v_xor_b32 v27, %d, v16" % (tt * 32))
        a("ds_read_b64_tr_b16 v[%d:%d], v%d" % (248 + 2 * tt, 249 + 2 * tt, 27 if tt else 16))
    a("v_lshrrev_b32 v27, 2, v17"); a("v_lshlrev_b32 v27, 3, v27"); a("v_and_b32 v24, 3, v17"); a("v_add_u32 v12, v27, v24")
    a("v_lshlrev_b32 v27, 5, v12"); a("v_lshl_add_u32 v27, v10, 3, v27")
    a("s_lshl_b32 s17, s20, 11"); a("s_add_u32 s17, s17, %d" % (SM + TR_OFF))
    a("s_lshl_b32 s16, s43, 5"); a("v_add_u32 v27, s16, v27")
    for sp in range(4):
        a("v_xor_b32 v%d, %d, v27" % (20 + sp, (sp >> 1) * 1024 + (sp & 1) * 128)); a("v_add_u32 v%d, s17, v%d" % (20 + sp, 20 + sp))
    a("v_lshl_add_u32 v27, v10, 3, v13"); a("v_lshlrev_b32 v27, 5, v27"); a("v_and_b32 v24, 3, v1"); a("v_lshl_add_u32 v27, v24, 3, v27"); a("v_add_u32 v27, s17, v27")
    a("s_waitcnt lgkmcnt(0)"); a("s_barrier")
    stamp(a, 3)
    for sp in range(4):
        if sp: a("v_xor_b32 v24, %d, v19" % (sp * 128))
        a("ds_read_b64 v[%d:%d], v%d offset:%d" % (136 + 2 * sp, 137 + 2 * sp, 24 if sp else 19, ZF_OFF))
    a("s_waitcnt lgkmcnt(0)")
    def znorm(uu):
        for sp in range(4):
            acc = 64 + 16 * uu + 4 * sp; rs = 136 + 2 * sp
            a("v_lshlrev_b32 v144, 16, v%d" % acc); a("v_and_b32 v145, 0xffff0000, v%d" % acc)
            a("v_lshlrev_b32 v146, 16, v%d" % (acc + 1)); a("v_and_b32 v147, 0xffff0000, v%d" % (acc + 1))
            a("v_pk_fma_f32 v[144:145], v[144:145], v[%d:%d], v[%d:%d] op_sel:[0,0,1] op_sel_hi:[1,0,1]" % (rs, rs + 1, rs, rs + 1))
            a("v_pk_fma_f32 v[146:147], v[146:147], v[%d:%d], v[%d:%d] op_sel:[0,0,1] op_sel_hi:[1,0,1]" % (rs, rs + 1, rs, rs + 1))
            a("v_cvt_pk_bf16_f32 v%d, v144, v145" % acc); a("v_cvt_pk_bf16_f32 v%d, v146, v147" % (acc + 1))
            a("ds_write_b64 v%d, v[%d:%d]" % (20 + sp, acc, acc + 1))
        for T in range(2):
            b = 32 + 8 * uu + 4 * T
            a("ds_read_b64_tr_b16 v[%d:%d], v27 offset:%d" % (b, b + 1, T * 1024)); a("ds_read_b64_tr_b16 v[%d:%d], v27 offset:%d" % (b + 2, b + 3, T * 1024 + 128))
        a("s_mul_i32 s16, s3, 88"); a("s_add_u32 s16, s16, s%d" % (30 + uu)); a("s_lshl_b32 s16, s16, 10")
        a("s_add_u32 s16, s16, %d" % (WS_Z2 - 44 * 1024)); a("s_add_u32 s23, s16, %d" % (44 * 1024))
        a("s_waitcnt lgkmcnt(0)")
        for T in range(2):
            b = 32 + 8 * uu + 4 * T
            a("buffer_store_dwordx4 v[%d:%d], v8, s[24:27], s%d offen%s" % (b, b + 3, 23 if T else 16, SS))
    znorm(0)
    a("s_cmp_eq_u32 s33, 0"); a("s_cbranch_scc1 G1_ZD")
    znorm(1)
    a.label("G1_ZD")
    a.reset_counts()
    a("s_lshl_b32 s46, s3, 7"); a("s_lshl_b32 s47, s40, 2"); a("s_add_u32 s47, s47, s46"); a("s_add_u32 s47, s47, %d" % WS_FLG); a("s_add_u32 s46, s46, %d" % WS_FLG)
    a("s_lshr_b32 s48, s3, 3"); a("s_lshl_b32 s48, s48, 1"); a("s_add_u32 s48, s48, s4"); a("s_lshl_b32 s48, s48, 8"); a("s_add_u32 s48, s48, %d" % WS_FL1)
    a("v_mov_b32 v2, 1"); a("v_mov_b32 v3, 0")
    a("s_cmp_eq_u32 s20, 3"); a("s_cbranch_scc1 G1_S3")
    for o in wdma_ops(4) + wdma_ops(5): emit(o)
    a("s_waitcnt vmcnt(16)"); a("s_barrier")
    a("s_branch G1_NS")
    a.label("G1_S3")
    a("s_waitcnt vmcnt(0)"); a("s_barrier")
    a("s_mov_b64 exec, 1")
    a("buffer_atomic_add v2, v3, s[24:27], s48 offen sc0 sc1")
    a("s_waitcnt vmcnt(0)")
    a("v_cmp_eq_u32 vcc, 31, v2"); a("s_cbranch_vccz G1_S4")
    a("v_mov_b32 v2, 1")
    a("buffer_store_dword v2, v3, s[24:27], s48 offen offset:128" + SS)
    a.label("G1_S4")
    a("s_mov_b64 exec, -1")
    for o in wdma_ops(4) + wdma_ops(5): emit(o)
    a.label("G1_NS")
    a("s_movk_i32 s9, 4096"); a("s_cmp_ge_u32 s5, 3"); a("s_cselect_b32 s9, 0x7f000000, s9"); a("v_add_u32 v9, s9, v8")
    a("s_mul_i32 s8, s4, 22"); a("s_mul_i32 s10, s5, 6"); a("s_add_u32 s8, s8, s10")
    a("s_mul_i32 s7, s20, %d" % (16 * 44)); a("s_add_u32 s7, s7, s8"); a("s_lshl_b32 s7, s7, 10"); a("s_add_u32 s7, s7, %d" % WS_Z2)
    for i in range(96): a("v_mov_b32 v%d, 0" % (ACC + i))
    for i in range(8): a("v_mov_b32 v%d, v%d" % (20 + i, 176 + i))
    a("v_add_u32 v11, s43, v12"); a("v_lshlrev_b32 v11, 1, v11")
    a("s_lshl_b32 s41, s40, 2"); a("s_add_u32 s41, s41, s20"); a("s_mul_i32 s41, s41, %d" % (24 * 1024)); a("s_add_u32 s41, s41, %d" % WS_WOUT)
    a("s_lshl_b32 s18, s3, 7"); a("v_lshlrev_b32 v13, 5, v10"); a("s_lshl_b32 s49, s44, 2"); a("s_add_u32 s49, s49, %d" % (WS_MOD + 5 * 2048))
    a("v_mov_b32 v2, 0")
    a("s_lshl_b32 s50, s20, 9"); a("s_lshl_b32 s51, s4, 8"); a("s_add_u32 s50, s50, s51"); a("s_add_u32 s50, s50, %d" % (WS_FL1 + 128))
    a("s_mov_b32 s53, 0"); a("s_mov_b64 exec, 1")
    a.label("G2_P1")
    a("buffer_load_dword v3, v2, s[24:27], s50 offen sc1")
    a("s_add_u32 s53, s53, 1")
    a("s_waitcnt vmcnt(0)")
    a("v_cmp_ne_u32 vcc, 1, v3")
    a("s_cmp_gt_u32 s53, 400000"); a("s_cbranch_scc1 G2_G1")
    a("s_cbranch_vccnz G2_P1")
    a.label("G2_G1")
    a("s_mov_b64 exec, -1")
    stamp(a, 4)
    a.reset_counts()
    def zload_ops(ks):
        st = ks % D; ops = []
        for uu in range(6):
            pre = ["s_add_u32 s12, s7, %d" % (ks * 44 * 1024)] if uu == 0 else []
            ops.append((pre, "buffer_load_dwordx4 a[%d:%d], v%d, s[24:27], s12 offen offset:%d%s" % (24 * st + 4 * uu, 24 * st + 4 * uu + 3, 9 if uu >= 4 else 8, (uu & 3) * 1024, SS), ("z", ks)))
        return ops
    for ks in range(D):
        for o in zload_ops(ks): emit(o)
    q = []
    late = wdma_ops(6) + wdma_ops(7)
    for ks in range(D, 16):
        q += [(ks - D + 1, o) for o in zload_ops(ks)]
        q += [(0, o) for o in late[:4]]; late = late[4:]
    q.append((0, ([], "buffer_load_ushort v16, v11, s[60:63], s18 offen", "z1")))
    q.append((0, ([], "buffer_load_dwordx4 v[4:7], v13, s[24:27], s49 offen", "z1")))
    for ks in range(22):
        pre = ["s_add_u32 s42, s41, %d" % (ks * 1024)] if ks % 4 == 0 else []
        q.append((0, (pre, "buffer_load_dwordx4 v[%d:%d], v8, s[24:27], s42 offen offset:%d" % (WO + 4 * ks, WO + 4 * ks + 3, (ks % 4) * 1024), "wo")))
    def tload_ops(ks):
        b = ks & 1; c = ks >> 1
        return [([], "ds_read_b128 v[%d:%d], v%d offset:%d" % (32 + 16 * b + 4 * tp, 35 + 16 * b + 4 * tp, (24 if ks & 1 else 20) + tp, (c & 1) * 8192), ("t", ks)) for tp in range(4)]
    for ks in range(16):
        st = ks % D; b = ks & 1
        if ks == 11:
            for i in range(4): a("v_subrev_u32 v%d, %d, v%d" % (20 + i, SG_OFF - A_OFF, 20 + i))
        if ks == 12:
            for i in range(4): a("v_subrev_u32 v%d, %d, v%d" % (24 + i, SG_OFF - A_OFF, 24 + i))
        nx = tload_ops(ks + 1) if 8 <= ks + 1 < 16 else []
        if ks >= 8: a.wait_lg(("t", ks))
        if ks in (11, 13): a.wait_vm(("w", (ks + 1) // 2))
        assert not any(o[1][2] == ("z", ks) for o in q)
        a.wait_vm(("z", ks))
        nm = 0
        for tp in range(4):
            w = "a[%d:%d]" % (128 + 16 * ks + 4 * tp, 131 + 16 * ks + 4 * tp) if ks < 8 else "v[%d:%d]" % (32 + 16 * b + 4 * tp, 35 + 16 * b + 4 * tp)
            for uu in range(6):
                acc = ACC + 24 * tp + 4 * uu
                a("v_mfma_f32_16x16x32_bf16 v[%d:%d], a[%d:%d], %s, v[%d:%d]" % (acc, acc + 3, 24 * st + 4 * uu, 24 * st + 4 * uu + 3, w, acc, acc + 3))
                nm += 1
                if nx and nm % 2 == 1: emit(nx.pop(0))
                if q and q[0][0] <= ks and nm % 2 == 0: emit(q.pop(0)[1])
    for o in q: emit(o[1])
    stamp(a, 5)
    def roff(tp): return (A_OFF + (tp - 1) * 6144) if tp < 3 else SG_OFF
    a("v_add_u32 v14, s19, v8"); a("v_add_u32 v15, %d, v14" % SG_OFF)
    for tp in range(1, 4):
        for uu in range(6):
            acc = ACC + 24 * tp + 4 * uu
            a("ds_write_b128 v%d, v[%d:%d] offset:%d" % (15 if tp == 3 else 14, acc, acc + 3, (0 if tp == 3 else roff(tp)) + uu * 1024))
    for tp in range(1, 4):
        a("s_xor_b32 s21, s20, %d" % tp); a("s_lshl_b32 s22, s21, 14"); a("s_add_u32 s22, s22, %d" % roff(tp)); a("v_add_u32 v%d, s22, v8" % (19 + tp))
    a("s_mul_i32 s22, s20, 3072"); a("v_add_u32 v28, s22, v28")
    for uu in range(6): a("ds_read_b64 v[%d:%d], v28 offset:%d" % (32 + 2 * uu, 33 + 2 * uu, Z1_OFF + uu * 512))
    a.wait_vm("z1")
    a("v_lshlrev_b32 v16, 16, v16")
    for i in range(0, 24, 2): a("v_pk_add_f32 v[%d:%d], v[%d:%d], v[16:17] op_sel_hi:[1,0]" % (ACC + i, ACC + i + 1, ACC + i, ACC + i + 1))
    a("s_waitcnt lgkmcnt(0)"); a("s_barrier")
    for sidx in range(3):
        for uu in range(6):
            r = ACC + 24 + 24 * sidx + 4 * uu
            a("ds_read_b128 v[%d:%d], v%d offset:%d" % (r, r + 3, 20 + sidx, uu * 1024), tag=("r", sidx))
    a("s_lshl_b32 s16, s3, 2"); a("s_add_u32 s16, s16, s20")
    a("s_mul_i32 s17, s16, 22"); a("s_lshr_b32 s22, s8, 1"); a("s_add_u32 s17, s17, s22"); a("s_lshl_b32 s17, s17, 10"); a("s_add_u32 s17, s17, %d" % WS_V)
    a("v_add_u32 v15, -2048, v9")
    for sidx in range(3):
        a.wait_lg(("r", sidx))
        for i in range(0, 24, 2):
            r = ACC + 24 + 24 * sidx + i
            a("v_pk_add_f32 v[%d:%d], v[%d:%d], v[%d:%d]" % (ACC + i, ACC + i + 1, ACC + i, ACC + i + 1, r, r + 1))
    for i in range(12):
        g = ACC + 2 * i
        a("v_lshlrev_b32 v44, 16, v%d" % (32 + i)); a("v_and_b32 v45, 0xffff0000, v%d" % (32 + i))
        a("v_pk_mul_f32 v[%d:%d], v[%d:%d], v[44:45]" % (g, g + 1, g, g + 1))
        a("v_cvt_pk_bf16_f32 v%d, v%d, v%d" % (48 + i, g, g + 1))
        if i % 4 == 3:
            G = i // 4
            a("buffer_store_dwordx4 v[%d:%d], v%d, s[24:27], s17 offen offset:%d%s" % (48 + 4 * G, 51 + 4 * G, 15 if G == 2 else 8, (G & 1) * 1024, SS))
    for i in range(16): a("v_mov_b32 v%d, 0" % (ACC + 32 + i))
    a("v_mul_u32_u24 v2, 144, v12"); a("v_lshl_add_u32 v2, v10, 4, v2"); a("s_lshl_b32 s49, s43, 1"); a("s_add_u32 s49, s49, %d" % OST); a("v_add_u32 v18, s49, v2")
    a("v_lshrrev_b32 v2, 3, v0"); a("v_and_b32 v3, 7, v0"); a("v_mul_u32_u24 v19, 144, v2"); a("v_lshl_add_u32 v19, v3, 4, v19"); a("v_add_u32 v19, %d, v19" % OST)
    a("v_lshlrev_b32 v13, 10, v2"); a("v_lshl_add_u32 v13, v3, 4, v13")
    a("s_lshl_b32 s49, s3, 16"); a("s_lshl_b32 s50, s40, 7"); a("s_add_u32 s49, s49, s50"); a("s_add_u32 s50, s49, 32768")
    a("s_mul_i32 s51, s16, %d" % (22 * 1024)); a("s_add_u32 s51, s51, %d" % WS_V); a("s_mul_i32 s52, s20, %d" % (22 * 1024))
    a("v_add_u32 v9, %d, v8" % (44 * 1024))
    a("v_mov_b32 v2, 1"); a("v_mov_b32 v3, 0")
    a("s_waitcnt vmcnt(0)"); a("s_barrier")
    a("s_cmp_lg_u32 s20, 0"); a("s_cbranch_scc1 G2_GO")
    a("s_mov_b64 exec, 1")
    a("buffer_store_dword v2, v3, s[24:27], s47 offen" + SS)
    a("s_mov_b64 exec, -1")
    a("v_lshlrev_b32 v2, 2, v1"); a("s_mov_b32 s53, 0"); a("s_mov_b64 exec, 0xff")
    a.label("G2_POLL")
    a("buffer_load_dword v3, v2, s[24:27], s46 offen sc1")
    a("s_add_u32 s53, s53, 1")
    a("s_waitcnt vmcnt(0)")
    a("v_cmp_ne_u32 vcc, 1, v3")
    a("s_cmp_gt_u32 s53, 400000"); a("s_cbranch_scc1 G2_GO")
    a("s_cbranch_vccnz G2_POLL")
    a.label("G2_GO")
    a("s_mov_b64 exec, -1")
    a("s_barrier")
    stamp(a, 6)
    a.reset_counts()
    AC3 = ACC + 32
    CH = ((0, 6), (6, 14), (14, 22))
    for ks in range(22):
        if ks % 4 == 0: a("s_add_u32 m0, s52, %d" % (ks * 1024)); a("s_add_u32 s54, s51, %d" % (ks * 1024))
        a("buffer_load_dwordx4 v8, s[24:27], s54 offen offset:%d%s lds" % ((ks % 4) * 1024, SS), tag=("v", [i for i, (lo, hi) in enumerate(CH) if lo <= ks < hi][0]))
    def vread(ks):
        b = 32 + 16 * (ks % 3)
        return ["ds_read_b128 v[%d:%d], v%d offset:%d" % (b + 4 * tt, b + 4 * tt + 3, 9 if tt >= 2 else 8, (tt & 1) * 22 * 1024 + ks * 1024) for tt in range(4)]
    for ci, (lo, hi) in enumerate(CH):
        a.wait_vm(("v", ci)); a("s_barrier")
        for k2 in (lo, lo + 1):
            for o in vread(k2): a(o, tag=("r3", k2))
        for ks in range(lo, hi):
            nx = vread(ks + 2) if ks + 2 < hi else []
            a.wait_lg(("r3", ks))
            b = 32 + 16 * (ks % 3)
            for tt in range(4):
                acc = AC3 + 4 * tt
                a("v_mfma_f32_16x16x32_bf16 v[%d:%d], v[%d:%d], v[%d:%d], v[%d:%d]" % (acc, acc + 3, WO + 4 * ks, WO + 4 * ks + 3, b + 4 * tt, b + 4 * tt + 3, acc, acc + 3))
                if nx: a(nx[tt], tag=("r3", ks + 2))
    for tt in range(4):
        for p in range(2):
            o = AC3 + 4 * tt + 2 * p; xr = 248 + 2 * tt + p
            rnd_pk(a, o)
            a("v_pk_mul_f32 v[%d:%d], v[%d:%d], v[%d:%d]" % (o, o + 1, o, o + 1, 4 + 2 * p, 5 + 2 * p)); rnd_pk(a, o)
            a("v_lshlrev_b32 v120, 16, v%d" % xr); a("v_and_b32 v121, 0xffff0000, v%d" % xr)
            a("v_pk_add_f32 v[%d:%d], v[%d:%d], v[120:121]" % (o, o + 1, o, o + 1))
            a("v_cvt_pk_bf16_f32 v%d, v%d, v%d" % (124 + 2 * tt + p, o, o + 1))
        a("ds_write_b64 v18, v[%d:%d] offset:%d" % (124 + 2 * tt, 125 + 2 * tt, (32 * (tt >> 1) + 4 * (tt & 1)) * 144))
    a("s_waitcnt lgkmcnt(0)"); a("s_barrier")
    a("ds_read_b128 v[32:35], v19"); a("ds_read_b128 v[36:39], v19 offset:%d" % (32 * 144))
    a("s_waitcnt lgkmcnt(1)"); a("buffer_store_dwordx4 v[32:35], v13, s[64:67], s49 offen" + SC)
    a("s_waitcnt lgkmcnt(0)"); a("buffer_store_dwordx4 v[36:39], v13, s[64:67], s50 offen" + SC)
    a.label("G_END")
    endp(a, KI)
    return a
```

```python
import sys
sys.path.insert(0, "work")
from gen_common import *
HEAD = open("adaLN_cond__ssm_conv_s4d__mixer_gmlp__prompt.s.ref").read().split("; Override")[0]
def build():
    ks = []
    import gen_f1, gen_g123
    ks.append(("f1_kernel", gen_f1.gen(), gen_f1.GRID, 256, gen_f1.LDS))
    ks.append(("g123_kernel", gen_g123.gen(), gen_g123.GRID, 256, gen_g123.LDS))
    s = HEAD
    for n, a, g, b, l in ks: s += "; @launch kernel=%s grid=(%d,1,1) block=(%d,1,1) lds=%d\n" % (n, g, b, l)
    s += '.amdgcn_target "amdgcn-amd-amdhsa--gfx950"\n'
    descs = ""
    for n, a, g, b, l in ks:
        body, desc = kernel_text(n, a); s += body; descs += desc
    return s + descs
if __name__ == "__main__":
    out = sys.argv[1] if len(sys.argv) > 1 else "adaLN_cond__ssm_conv_s4d__mixer_gmlp__prompt.s"
    open(out, "w").write(build())
```

```python
from gen_common import *
import math
NC, NX, NM, NP, NW = 256, 128, 96, 88, 48
XP = 1056
O_C, O_X, O_M, O_P, O_W = 0, NC, NC + NX, NC + NX + NM, NC + NX + NM + NP
PFM = int(os.environ.get('PFM', '0'))
PRIO = int(os.environ.get('PRIO', '1'))
GRID = O_W + NW
TP = 272; BUF = 17 * TP
CSZ = 4160
UB = 8 * CSZ; USZ = 7680
XR = UB + 2 * USZ
KC = XR; KCS = 1536
LDS = KC + 2 * KCS
SC = " sc1"
SS = " sc0 sc1"
WS_ST = WS_XNT
PFF = int(os.environ.get('PFF', '0'))
PFT = (4, 5, 6, 7) if PFF else (4, 5)
KI = 0
PEARLY = int(os.environ.get('PEARLY', '1'))
NTK = ' nt' if int(os.environ.get('NTK', '0')) else ''
PSL = int(os.environ.get("PSL", "4"))
NT = " nt" if int(os.environ.get("NT", "1")) & 1 else ""
NTP = " nt" if int(os.environ.get("NT", "1")) & 2 else ""

def rnd_pk(a, p):
    a("v_cvt_pk_bf16_f32 v%d, v%d, v%d" % (p, p, p + 1))
    a("v_and_b32 v%d, 0xffff0000, v%d" % (p + 1, p)); a("v_lshlrev_b32 v%d, 16, v%d" % (p, p))

def signal(a, dbg, lbl, coff, foff, n):
    a("s_waitcnt vmcnt(0)")
    a("v_mov_b32 v2, 1"); a("v_mov_b32 v3, 0"); a("s_mov_b64 exec, 1")
    a("buffer_atomic_add v2, v3, s[%d:%d], 0 offen offset:%d sc0 sc1" % (dbg, dbg + 3, coff))
    a("s_waitcnt vmcnt(0)")
    a("v_cmp_eq_u32 vcc, %d, v2" % (n - 1))
    a("s_cbranch_vccz %s" % lbl)
    a("v_mov_b32 v2, 1")
    a("buffer_store_dword v2, v3, s[%d:%d], 0 offen offset:%d sc0 sc1" % (dbg, dbg + 3, foff))
    a.label(lbl)

def poll(a, dbg, lbl, va, vd, slp=2):
    a("v_lshlrev_b32 v%d, 2, v1" % va); a("s_mov_b32 s71, 0"); a("s_mov_b64 exec, 3")
    a.label(lbl)
    a("buffer_load_dword v%d, v%d, s[%d:%d], 0 offen offset:128 sc1" % (vd, va, dbg, dbg + 3))
    a("s_add_u32 s71, s71, 1")
    a("s_waitcnt vmcnt(0)")
    a("v_cmp_ne_u32 vcc, 1, v%d" % vd)
    a("s_cmp_gt_u32 s71, 400000"); a("s_cbranch_scc1 %s_X" % lbl)
    a("s_cbranch_vccz %s_X" % lbl)
    a("s_sleep %d" % slp)
    a("s_branch %s" % lbl)
    a.label(lbl + "_X")
    a("s_mov_b64 exec, -1")

def role_conv(a):
    names = ("logA", "Aim", "Cr", "Ci", "logdt", "ws", "wsp", "u", "dbg", "Dsk")
    for i, n in enumerate(names): load_ptr(a, 24 + 4 * i, n)
    a("s_sub_u32 s68, s2, %d" % O_C)
    WS, WSP, U, DBG, DSK = 44, 48, 52, 56, 60
    a("s_lshr_b32 s21, s20, 1"); a("s_and_b32 s23, s20, 1")
    a("s_and_b32 s19, s68, 7"); a("s_lshl_b32 s19, s19, 5"); a("s_lshr_b32 s6, s68, 3"); a("s_add_u32 s19, s19, s6")
    a("s_lshl_b32 s22, s19, 1"); a("s_add_u32 s22, s22, s21")
    a("s_lshl_b32 s4, s22, 8"); a("s_lshl_b32 s5, s23, 7")
    a("v_lshlrev_b32 v2, 1, v1"); a("v_add_u32 v2, s5, v2"); a("v_xor_b32 v3, 128, v2")
    a("s_lshl_b32 s6, s22, 1"); a("v_mov_b32 v4, s6")
    a("s_waitcnt lgkmcnt(0)")
    for i, n in enumerate(names): make_srd(a, 24 + 4 * i, n)
    a("buffer_load_ushort v10, v4, s[40:43], 0 offen")
    a("buffer_load_ushort v11, v2, s[24:27], s4 offen" + NTK); a("buffer_load_ushort v12, v2, s[28:31], s4 offen" + NTK)
    a("buffer_load_ushort v13, v2, s[32:35], s4 offen" + NTK); a("buffer_load_ushort v14, v2, s[36:39], s4 offen" + NTK)
    a("buffer_load_ushort v15, v3, s[32:35], s4 offen" + NTK); a("buffer_load_ushort v16, v3, s[36:39], s4 offen" + NTK)
    a("buffer_load_ushort v49, v4, s[%d:%d], 0 offen" % (DSK, DSK + 3))
    a("v_mov_b32 v56, -1"); a("v_mov_b32 v57, -1"); a("v_lshlrev_b32 v58, 3, v1")
    a("s_lshl_b32 s16, s68, 9"); a("s_add_u32 s16, s16, %d" % WS_ZST)
    a("buffer_store_dwordx2 v[56:57], v58, s[%d:%d], s16 offen%s" % (WS, WS + 3, SC))
    NAFTER = 1
    a("s_mul_i32 s7, s20, %d" % (2 * BUF))
    a("v_lshl_add_u32 v5, v1, 2, s7")
    a("v_and_b32 v6, 15, v1"); a("v_lshrrev_b32 v7, 4, v1")
    a("v_lshl_add_u32 v9, v7, 4, s7"); a("v_mul_u32_u24 v8, %d, v6" % TP); a("v_add_u32 v8, v8, v9")
    for i in range(16): a("v_mov_b32 v%d, 0" % (92 + i))
    a("s_mul_i32 s15, s21, %d" % KCS); a("s_add_u32 s15, s15, %d" % (KC + 16))
    a("v_mov_b32 v55, s15"); a("v_subrev_u32 v55, 8, v55"); a("ds_write_b64 v55, v[92:93]")
    a("v_lshlrev_b32 v22, 7, v7"); a("v_lshl_add_u32 v22, v6, 3, v22"); a("v_add_u32 v22, s15, v22")
    a("v_cmp_gt_u32 vcc, 2, v7")
    a("v_lshlrev_b32 v23, 1, v6"); a("v_lshlrev_b32 v24, 2, v6"); a("v_cndmask_b32 v23, v23, v24, vcc")
    a("v_lshl_add_u32 v23, v7, 7, v23"); a("v_add_u32 v23, s15, v23")
    a("v_mov_b32 v24, 32"); a("v_cndmask_b32 v24, v24, 2, vcc"); a("v_add_u32 v24, v24, v23")
    a("v_lshlrev_b32 v25, 6, v7"); a("v_add_u32 v25, v25, v6"); a("v_add_u32 v25, s15, v25")
    a("v_add_u32 v26, s15, v6")
    a("s_lshl_b32 s16, s23, 6"); a("v_add_u32 v29, s16, v1")
    a("v_lshlrev_b32 v60, 4, v29"); a("v_sub_u32 v60, 2047, v60"); a("v_cvt_f32_u32 v61, v60"); a("v_lshl_add_u32 v60, v60, 1, s15")
    a("s_add_u32 s16, s15, 256"); a("s_sub_u32 s17, s15, 0x8500")
    for k in range(0, 20, 2):
        a("v_subrev_f32 v62, %s, v61" % fl(float(k))); a("v_subrev_f32 v63, %s, v61" % fl(float(k + 1)))
        if k >= 16: a("v_max_f32 v62, 0, v62"); a("v_max_f32 v63, 0, v63")
        a("v_cvt_pk_bf16_f32 v62, v62, v63")
        a("v_lshrrev_b32 v63, 16, v62"); a("v_and_b32 v62, 0xffff, v62")
        a("v_lshl_add_u32 v62, v62, 1, s17"); a("v_subrev_u32 v64, %d, v60" % (2 * k)); a("v_med3_i32 v%d, v62, v64, s16" % (108 + k))
        if k < 18:
            a("v_lshl_add_u32 v63, v63, 1, s17"); a("v_subrev_u32 v64, %d, v60" % (2 * k + 2)); a("v_med3_i32 v%d, v63, v64, s16" % (109 + k))
    a("s_mul_i32 s14, s21, %d" % (4 * CSZ)); a("v_lshl_add_u32 v29, v29, 5, s14")
    a("v_lshlrev_b32 v18, 4, v1")
    a("v_add_u32 v27, s7, v18"); a("s_xor_b32 s18, s20, 1"); a("s_mul_i32 s18, s18, %d" % (2 * BUF)); a("v_add_u32 v28, s18, v18")
    a("s_waitcnt vmcnt(%d)" % (NAFTER + 5))
    stamp(a, 1)
    for r in (10, 11, 12): a("v_lshlrev_b32 v%d, 16, v%d" % (r, r))
    exp_acc(a, 10, 10, 20, 21); bf16r(a, 10, 10)
    exp_acc(a, 11, 11, 20, 21); bf16r(a, 11, 11)
    a("v_mul_f32 v11, v11, v10"); a("v_mul_f32 v12, v12, v10")
    a("v_mul_f32 v11, %s, v11" % fl(-LOG2E)); a("v_mul_f32 v12, %s, v12" % fl(1.0 / (2 * math.pi)))
    def direct(dst, p):
        t0, t1 = 20, 21
        if p == 1:
            a("v_exp_f32 v%d, v11" % t0); a("v_fract_f32 v%d, v12" % t1)
        else:
            a("v_mul_f32 v%d, %s, v11" % (t0, fl(float(p)))); a("v_mul_f32 v%d, %s, v12" % (t1, fl(float(p))))
            a("v_exp_f32 v%d, v%d" % (t0, t0)); a("v_fract_f32 v%d, v%d" % (t1, t1))
        a("v_cos_f32 v%d, v%d" % (dst, t1)); a("v_sin_f32 v%d, v%d" % (dst + 1, t1))
        a("v_mul_f32 v%d, v%d, v%d" % (dst, dst, t0)); a("v_mul_f32 v%d, v%d, v%d" % (dst + 1, dst + 1, t0))
    W1, W2, W3, W4, W64, W1K = 30, 32, 34, 36, 38, 40
    direct(W1, 1); direct(W4, 4); direct(W64, 64); direct(W1K, 1024)
    cmul(a, W2, W1, W1); cmul(a, W3, W2, W1)
    a("s_waitcnt vmcnt(%d)" % NAFTER)
    a("v_and_b32 v17, 0x7fff, v13"); a("v_and_b32 v19, 0x7fff, v14"); a("v_and_b32 v15, 0x7fff, v15"); a("v_and_b32 v16, 0x7fff, v16")
    a("v_max3_u32 v17, v17, v19, v15"); a("v_max_u32 v17, v17, v16")
    for sh in (1, 2, 4, 8): a("v_max_u32_dpp v17, v17, v17 row_shr:%d row_mask:0xf bank_mask:0xf" % sh)
    a("v_max_u32_dpp v17, v17, v17 row_bcast:15 row_mask:0xa bank_mask:0xf")
    a("v_max_u32_dpp v17, v17, v17 row_bcast:31 row_mask:0xc bank_mask:0xf")
    a("v_readlane_b32 s8, v17, 63")
    a("s_lshl_b32 s8, s8, 16"); a("s_and_b32 s8, s8, 0x7f800000"); a("s_min_u32 s8, s8, 0x7e800000"); a("s_sub_u32 s9, 0x7f000000, s8")
    P0, P1, T0 = 42, 44, 46
    a("v_lshlrev_b32 v13, 16, v13"); a("v_lshlrev_b32 v14, 16, v14")
    a("v_mul_f32 v%d, s9, v13" % P0); a("v_mul_f32 v%d, s9, v14" % (P0 + 1))
    a("v_mul_f32 v48, s8, v10"); a("v_add_f32 v48, v48, v48")
    tcnt = [0]
    def put(src, buf, row, neg=False):
        t = 50 + (tcnt[0] % 8); tcnt[0] += 1
        a("v_cvt_pk_f16_f32 v%d, v%d, %sv%d" % (t, src, "-" if neg else "", src + 1))
        a("ds_write_b32 v5, v%d offset:%d" % (t, buf * BUF + row * TP))
    def frags(dst, buf, addr=8, rowoff=0):
        for ks in range(4): a("ds_read_b128 v[%d:%d], v%d offset:%d" % (dst + 4 * ks, dst + 4 * ks + 3, addr, buf * BUF + rowoff * TP + ks * 64))
    def mm(tile, src):
        a("s_waitcnt lgkmcnt(0)")
        for ks in range(4):
            a("v_mfma_f32_16x16x32_f16 v[%d:%d], v[%d:%d], v[%d:%d], v[%d:%d]" % (92 + 4 * tile, 95 + 4 * tile, src + 4 * ks, src + 4 * ks + 3, 60 + 4 * ks, 63 + 4 * ks, 92 + 4 * tile, 95 + 4 * tile))
    cur, nxt = P0, P1
    for j in range(16):
        put(cur, 0, j, neg=True)
        if j < 15: cmul(a, nxt, cur, W4); cur, nxt = nxt, cur
    frags(60, 0)
    a("v_mov_b32 v%d, 1.0" % P0); a("v_mov_b32 v%d, 0" % (P0 + 1))
    cur = P0
    for i1 in range(4):
        put(cur, 1, 4 * i1)
        for r, W in enumerate((W1, W2, W3)):
            if i1 == 0: put(W, 1, 1 + r)
            else: cmul(a, T0, cur, W); put(T0, 1, 4 * i1 + 1 + r)
        if i1 == 0: cur = W64
        else:
            d = P0 if cur != P0 else P1
            cmul(a, d, cur, W64); cur = d
    frags(76, 1)
    for k in range(12):
        if k < 4:
            put(cur, 0, 2 * k); cmul(a, T0, cur, W2); put(T0, 0, 2 * k + 1)
        else: put(cur, 0, 8 + k - 4)
        if k == 1: mm(0, 76)
        if k < 11:
            d = P0 if cur != P0 else P1
            cmul(a, d, cur, W64); cur = d
    frags(76, 0)
    cur = W1K
    for k in range(17):
        put(cur, 1, k)
        if k == 2: mm(1, 76)
        if k < 16:
            d = P0 if cur != P0 else P1
            cmul(a, d, cur, W64); cur = d
    frags(76, 1); frags(30, 1, addr=9, rowoff=16)
    mm(2, 76); mm(3, 30)
    a("s_cmp_eq_u32 s23, 0"); a("s_cbranch_scc0 KG_H1")
    for hh in range(2):
        snd, keep = (100, 92) if hh == 0 else (92, 100)
        if hh: a.label("KG_H1")
        a("ds_write_b128 v27, v[%d:%d]" % (snd, snd + 3)); a("ds_write_b128 v27, v[%d:%d] offset:1024" % (snd + 4, snd + 7))
        a("s_waitcnt lgkmcnt(0)"); a("s_barrier")
        a("ds_read_b128 v[60:63], v28"); a("ds_read_b128 v[64:67], v28 offset:1024")
        a("s_waitcnt lgkmcnt(0)")
        for i in range(0, 8, 2): a("v_pk_add_f32 v[%d:%d], v[%d:%d], v[%d:%d]" % (60 + i, 61 + i, 60 + i, 61 + i, keep + i, keep + i + 1))
        for i in range(4): a("v_cvt_pk_f16_f32 v%d, v%d, v%d" % (68 + i, 60 + 2 * i, 61 + 2 * i))
        if hh == 0:
            a("ds_write_b64 v22, v[68:69]")
            a("ds_write_b16 v23, v70 offset:512"); a("ds_write_b16_d16_hi v24, v70 offset:512"); a("ds_write_b16 v23, v71 offset:576"); a("ds_write_b16_d16_hi v24, v71 offset:576")
            a("s_branch KG_G")
        else:
            a("s_mov_b32 exec_lo, 0x55555555"); a("s_mov_b32 exec_hi, 0x55555555")
            a("ds_write_b16 v25, v68 offset:1024"); a("ds_write_b16_d16_hi v25, v68 offset:1040"); a("ds_write_b16 v25, v69 offset:1056"); a("ds_write_b16_d16_hi v25, v69 offset:1072")
            a("ds_write_b16 v26, v70 offset:1280")
            a("s_mov_b64 exec, -1")
    a.label("KG_G")
    a("s_waitcnt lgkmcnt(0)"); a("s_barrier")
    for k in range(19): a("ds_read_u16 v%d, v%d" % (108 + k, 108 + k))
    for i in range(4): a("v_mov_b32 v%d, 0" % (32 + i))
    a("v_lshrrev_b32 v36, 7, v0"); a("v_mul_u32_u24 v36, %d, v36" % USZ)
    a("v_and_b32 v37, 127, v0"); a("v_add_u32 v38, 128, v37"); a("v_min_u32 v38, 154, v38")
    a("v_lshl_add_u32 v37, v37, 4, v36"); a("v_lshl_add_u32 v38, v38, 4, v36")
    a("v_bfe_u32 v36, v0, 2, 3"); a("v_mul_u32_u24 v36, %d, v36" % CSZ); a("v_and_b32 v39, 3, v0"); a("v_lshl_add_u32 v36, v39, 4, v36")
    a("s_waitcnt lgkmcnt(0)")
    a("ds_write_b128 v37, v[32:35] offset:%d" % UB); a("ds_write_b128 v38, v[32:35] offset:%d" % UB); a("ds_write_b128 v36, v[32:35] offset:4096")
    E, O = 60, 70
    for k in range(9): a("v_lshl_or_b32 v%d, v%d, 16, v%d" % (E + k, 109 + 2 * k, 108 + 2 * k))
    for k in range(9): a("v_lshl_or_b32 v%d, v%d, 16, v%d" % (O + k, 110 + 2 * k, 109 + 2 * k))
    for cp, R in ((0, E), (1, O)):
        a("ds_write_b128 v29, v[%d:%d] offset:%d" % (R, R + 3, cp * CSZ)); a("ds_write_b128 v29, v[%d:%d] offset:%d" % (R + 4, R + 7, cp * CSZ + 16))
    a("v_add_u32 v36, %d, v29" % (2 * CSZ)); a("v_add_u32 v37, %d, v29" % (3 * CSZ))
    for ad, R in ((36, E), (37, O)):
        for k in range(4): a("ds_write2_b32 v%d, v%d, v%d offset0:%d offset1:%d" % (ad, R + 1 + 2 * k, R + 2 + 2 * k, 2 * k, 2 * k + 1))
    a("v_lshlrev_b32 v2, 4, v1")
    a("v_and_b32 v4, 31, v1"); a("v_lshrrev_b32 v5, 5, v1")
    a("v_and_b32 v28, 3, v4"); a("v_sub_u32 v28, 3, v28"); a("v_mul_u32_u24 v28, %d, v28" % CSZ)
    a("v_lshrrev_b32 v29, 2, v4"); a("v_lshlrev_b32 v29, 3, v29"); a("v_sub_u32 v28, v28, v29"); a("v_lshl_add_u32 v28, v5, 4, v28")
    a("s_lshl_b32 s17, s23, 5"); a("s_add_u32 s16, s14, s17"); a("s_add_u32 s16, s16, 56"); a("v_add_u32 v28, s16, v28")
    a("v_mul_u32_u24 v29, 80, v4"); a("v_lshl_add_u32 v30, v5, 4, v29")
    a("s_mul_i32 s18, s21, %d" % USZ); a("s_add_u32 s16, s18, s17"); a("s_add_u32 s16, s16, %d" % UB); a("v_add_u32 v30, s16, v30")
    a("v_lshl_add_u32 v31, v5, 3, v29"); a("s_mul_i32 s16, s23, 2560"); a("s_add_u32 s16, s16, s18"); a("s_add_u32 s16, s16, %d" % (UB + 31 * 80)); a("v_add_u32 v31, s16, v31")
    a("v_lshlrev_b32 v88, 8, v4"); a("v_lshl_add_u32 v88, v5, 3, v88")
    a("v_lshrrev_b32 v32, 3, v0"); a("v_mul_u32_u24 v32, 80, v32"); a("v_bfe_u32 v33, v0, 1, 2"); a("v_lshl_add_u32 v32, v33, 4, v32")
    a("v_and_b32 v33, 1, v0"); a("v_mul_u32_u24 v34, %d, v33" % USZ); a("v_add_u32 v32, v32, v34")
    a("v_cmp_eq_u32 s[64:65], 1, v33")
    a("v_lshrrev_b32 v3, 1, v0"); a("v_lshlrev_b32 v3, 6, v3"); a("v_lshl_add_u32 v3, v33, 4, v3")
    a("s_lshr_b32 s10, s19, 1"); a("s_lshl_b32 s10, s10, 14"); a("s_and_b32 s11, s19, 1"); a("s_lshl_b32 s11, s11, 5"); a("s_add_u32 s10, s10, s11")
    a("s_add_u32 s11, s10, %d" % WS_XT); a("s_add_u32 s10, s10, %d" % WS_XT)
    a("v_lshrrev_b32 v6, 1, v0"); a("v_lshlrev_b32 v6, 5, v6"); a("s_mov_b32 s9, %d" % WS_ST); a("s_mov_b32 s8, %d" % (WS_ST + 4096))
    a("s_lshl_b32 s13, s23, 13"); a("s_add_u32 s11, s11, s13"); a("s_lshl_b32 s13, s21, 4"); a("s_add_u32 s11, s11, s13")
    a("v_lshrrev_b32 v36, 2, v1"); a("v_lshlrev_b32 v36, 11, v36"); a("v_and_b32 v37, 3, v1"); a("v_mul_u32_u24 v37, 12288, v37"); a("v_add_u32 v36, v36, v37")
    a("s_lshl_b32 s12, s19, 3"); a("s_add_u32 s12, s12, %d" % WS_MODP)
    if PFF:
        a("s_bfe_u32 s66, s68, 0x20001"); a("s_lshl_b32 s66, s66, 9"); a("s_lshr_b32 s67, s68, 3"); a("s_lshl_b32 s67, s67, 4"); a("s_add_u32 s66, s66, s67")
        a("s_lshl_b32 s67, s20, 2"); a("s_add_u32 s66, s66, s67"); a("s_lshl_b32 s66, s66, 12")
    else:
        a("s_and_b32 s66, s68, 7"); a("s_lshl_b32 s66, s66, 8"); a("s_lshr_b32 s67, s68, 3"); a("s_lshl_b32 s67, s67, 3"); a("s_add_u32 s66, s66, s67")
        a("s_lshl_b32 s67, s20, 1"); a("s_add_u32 s66, s66, s67"); a("s_lshl_b32 s66, s66, 12")
    a("v_lshlrev_b32 v92, 6, v1")
    for i in range(32): a("v_mov_b32 v%d, 0" % (96 + i))
    stamp(a, 2)
    npre = {0: 0, 1: 1, 2: 2}.get(PFM, 0)
    a("s_cmp_eq_u32 s20, 0"); a("s_cbranch_scc1 CV_P0")
    for _ in range(npre): a("buffer_load_dword v93, v92, s[%d:%d], s66 offen%s" % (WSP, WSP + 3, NTP)); a("s_add_u32 s66, s66, 4096")
    a("s_branch CV_W")
    a.label("CV_P0")
    poll(a, DBG, "CV_POLL", 38, 39)
    for _ in range(npre): a("buffer_load_dword v93, v92, s[%d:%d], s66 offen%s" % (WSP, WSP + 3, NTP)); a("s_add_u32 s66, s66, 4096")
    a.label("CV_W")
    a("s_waitcnt lgkmcnt(0)"); a("s_barrier")
    stamp(a, 3)
    a("s_mov_b64 exec, 0xfff")
    a("buffer_load_dwordx2 v[38:39], v36, s[%d:%d], s12 offen%s" % (WS, WS + 3, SS))
    a("s_mov_b64 exec, -1")
    a("buffer_load_dwordx4 v[8:11], v3, s[%d:%d], s10 offen%s" % (WS, WS + 3, SS))
    a("buffer_load_dwordx4 v[52:55], v6, s[%d:%d], s9 offen%s" % (WS, WS + 3, SS)); a("buffer_load_dwordx4 v[56:59], v6, s[%d:%d], s9 offen offset:16%s" % (WS, WS + 3, SS))
    a("s_add_u32 s10, s10, 8192")
    a("buffer_load_dwordx4 v[12:15], v3, s[%d:%d], s10 offen%s" % (WS, WS + 3, SS))
    a("buffer_load_dwordx4 v[60:63], v6, s[%d:%d], s8 offen%s" % (WS, WS + 3, SS)); a("buffer_load_dwordx4 v[64:67], v6, s[%d:%d], s8 offen offset:16%s" % (WS, WS + 3, SS))
    a("s_waitcnt vmcnt(6)")
    for r in (38, 39):
        a("v_add_f32_dpp v%d, v%d, v%d quad_perm:[1,0,3,2] row_mask:0xf bank_mask:0xf" % (r, r, r))
        a("v_add_f32_dpp v%d, v%d, v%d quad_perm:[2,3,0,1] row_mask:0xf bank_mask:0xf" % (r, r, r))
    rnd_pk(a, 38)
    for sec in range(3):
        for c in range(2): a("v_readlane_b32 s%d, v%d, %d" % (72 + 2 * sec + c, 38 + c, 4 * sec))
    a("v_mov_b32 v40, s74"); a("v_mov_b32 v41, s75"); a("v_mov_b32 v42, s72"); a("v_mov_b32 v43, s73")
    a("v_pk_add_f32 v[40:41], v[40:41], 1.0 op_sel_hi:[1,0]"); rnd_pk(a, 40)
    for c in range(2):
        a("v_mul_f32 v%d, %s, v%d" % (44 + c, fl(23.0), 40 + c)); a("v_add_f32 v%d, abs(v%d), abs(v%d)" % (44 + c, 44 + c, 42 + c))
        a("v_and_b32 v%d, 0x7f800000, v%d" % (44 + c, 44 + c)); a("v_max_u32 v%d, 0x%x, v%d" % (44 + c, 14 << 23, 44 + c)); a("v_min_u32 v%d, 0x7f000000, v%d" % (44 + c, 44 + c))
        a("v_sub_u32 v%d, 0x%x, v%d" % (46 + c, 267 << 23, 44 + c)); a("v_subrev_u32 v%d, 0x%x, v%d" % (44 + c, 13 << 23, 44 + c))
    a("v_pk_mul_f32 v[40:41], v[40:41], v[46:47]"); a("v_pk_mul_f32 v[42:43], v[42:43], v[46:47]")
    a("s_cmp_eq_u32 s21, 0"); a("s_cselect_b64 vcc, -1, 0"); a("s_cselect_b32 s28, s76, s77")
    a("v_cndmask_b32 v44, v45, v44, vcc"); a("v_lshlrev_b32 v49, 16, v49")
    a("v_mul_f32 v48, v48, v44"); a("v_mul_f32 v49, v49, v44")
    a("v_readfirstlane_b32 s24, v48"); a("v_readfirstlane_b32 s26, v49")
    a("v_cndmask_b32 v40, v40, v41, s[64:65]"); a("v_cndmask_b32 v42, v42, v43, s[64:65]")
    for i in range(2):
        a("s_waitcnt vmcnt(%d)" % (3 - 3 * i))
        for q in range(4):
            w = 8 + 4 * i + q; p = 70 + 2 * (q & 1); st = 52 + 8 * i + 2 * q
            a("v_and_b32 v76, 0xffff0000, v%d" % st); a("v_and_b32 v77, 0xffff0000, v%d" % (st + 1)); a("v_rcp_f32 v76, v76"); a("v_rcp_f32 v77, v77")
            a("v_lshlrev_b32 v74, 16, v%d" % st); a("v_lshlrev_b32 v75, 16, v%d" % (st + 1))
            a("v_lshlrev_b32 v%d, 16, v%d" % (p, w)); a("v_and_b32 v%d, 0xffff0000, v%d" % (p + 1, w))
            a("v_pk_add_f32 v[%d:%d], v[%d:%d], v[74:75] neg_lo:[0,1] neg_hi:[0,1]" % (p, p + 1, p, p + 1)); rnd_pk(a, p)
            a("v_pk_mul_f32 v[%d:%d], v[%d:%d], v[76:77]" % (p, p + 1, p, p + 1)); rnd_pk(a, p)
            a("v_pk_mul_f32 v[%d:%d], v[%d:%d], v[40:41] op_sel_hi:[1,0]" % (p, p + 1, p, p + 1)); rnd_pk(a, p)
            a("v_pk_add_f32 v[%d:%d], v[%d:%d], v[42:43] op_sel_hi:[1,0]" % (p, p + 1, p, p + 1)); rnd_pk(a, p)
            a("v_cvt_pk_f16_f32 v%d, v%d, v%d" % (w, p, p + 1))
        a("ds_write_b128 v32, v[%d:%d] offset:%d" % (8 + 4 * i, 11 + 4 * i, UB + 31 * 80 + i * 2560))
    a("s_waitcnt lgkmcnt(0)"); a("s_barrier")
    stamp(a, 4)
    a.reset_counts()
    def loads(t):
        b = 40 + 16 * (t % 3); ops = []
        for j, m in enumerate((t, t + 32)):
            off = 4032 - 64 * m
            ops.append("ds_read_b64 v[%d:%d], v28 offset:%d" % (b + 4 * j, b + 4 * j + 1, off))
            ops.append("ds_read_b64 v[%d:%d], v28 offset:%d" % (b + 4 * j + 2, b + 4 * j + 3, off + 8))
        ops.append("ds_read_b128 v[%d:%d], v30 offset:%d" % (b + 8, b + 11, (31 - t) * 80))
        ops.append("ds_read_b128 v[%d:%d], v30 offset:%d" % (b + 12, b + 15, (63 - t) * 80))
        return ops
    for t in range(2):
        for o in loads(t): a(o, tag=("c", t))
    for t in range(32):
        nx = loads(t + 2) if t + 2 < 32 else []
        a.wait_lg(("c", t))
        b = 40 + 16 * (t % 3)
        ms = ["v_mfma_f32_32x32x16_f16 v[96:111], v[%d:%d], v[%d:%d], v[96:111]" % (b, b + 3, b + 8, b + 11),
              "v_mfma_f32_32x32x16_f16 v[112:127], v[%d:%d], v[%d:%d], v[112:127]" % (b, b + 3, b + 12, b + 15),
              "v_mfma_f32_32x32x16_f16 v[112:127], v[%d:%d], v[%d:%d], v[112:127]" % (b + 4, b + 7, b + 8, b + 11)]
        for i, m in enumerate(ms):
            a(m)
            for o in nx[2 * i: 2 * i + 2]: a(o, tag=("c", t + 2))
        if t < 4: a("buffer_load_dwordx2 v[%d:%d], v88, s[%d:%d], s11 offen offset:%d%s" % (16 + 2 * t, 17 + 2 * t, WS, WS + 3, t * 64, SS))
        if t in PFT[npre:] and PFM < 3:
            a("buffer_load_dword v93, v92, s[%d:%d], s66 offen%s" % (WSP, WSP + 3, NTP)); a("s_add_u32 s66, s66, 4096")
        if t == 30:
            for q in range(4): a("ds_read_b64 v[%d:%d], v31 offset:%d" % (32 + 2 * q, 33 + 2 * q, 16 * q))
    stamp(a, 5)
    a("s_lshl_b32 s16, s20, 12"); a("v_add_u32 v24, s16, v2"); a("v_xor_b32 v25, 4096, v24")
    a("v_lshrrev_b32 v7, 3, v1"); a("v_lshlrev_b32 v7, 16, v7"); a("v_and_b32 v26, 7, v1"); a("v_lshl_add_u32 v7, v26, 4, v7")
    a("s_lshl_b32 s17, s20, 11"); a("s_add_u32 s17, s17, 16384"); a("v_lshlrev_b32 v26, 6, v4"); a("v_lshl_add_u32 v26, v5, 5, v26"); a("v_add_u32 v26, s17, v26"); a("v_add_u32 v27, s17, v2")
    a("s_lshl_b32 s15, s23, 20"); a("s_lshl_b32 s16, s22, 7"); a("s_add_u32 s15, s15, s16"); a("s_add_u32 s15, s15, %d" % WS_X1T)
    a("s_waitcnt lgkmcnt(0)"); a("s_barrier")
    a("s_cmp_eq_u32 s23, 0"); a("s_cbranch_scc0 CV_H1")
    for hh in range(2):
        snd, keep = (112, 96) if hh == 0 else (96, 112)
        if hh == 1: a.label("CV_H1")
        for q in range(4): a("ds_write_b128 v24, v[%d:%d] offset:%d" % (snd + 4 * q, snd + 4 * q + 3, q * 1024))
        for k in range(8):
            t = 60 + 2 * k; hreg = 32 + k
            a("v_cvt_f32_f16 v%d, v%d" % (t, hreg)); a("v_cvt_f32_f16_sdwa v%d, v%d dst_sel:DWORD dst_unused:UNUSED_PAD src0_sel:WORD_1" % (t + 1, hreg))
            a("v_pk_mul_f32 v[%d:%d], v[%d:%d], s[26:27] op_sel_hi:[1,0]" % (t, t + 1, t, t + 1)); rnd_pk(a, t)
        a("s_waitcnt lgkmcnt(0)"); a("s_barrier")
        for q in range(4): a("ds_read_b128 v[%d:%d], v25 offset:%d" % (40 + 4 * q, 43 + 4 * q, q * 1024))
        a("s_waitcnt vmcnt(%d)" % (0 if PFM >= 3 else len(PFT) - npre))
        for i in range(8): a("v_lshlrev_b32 v%d, 16, v%d" % (snd + 2 * i, 16 + i)); a("v_and_b32 v%d, 0xffff0000, v%d" % (snd + 2 * i + 1, 16 + i))
        for i in range(0, 16, 2): a("v_mov_b64 v[%d:%d], v[%d:%d]" % (8 + i, 9 + i, snd + i, snd + i + 1))
        a("s_waitcnt lgkmcnt(0)")
        for i in range(0, 16, 2): a("v_pk_add_f32 v[%d:%d], v[%d:%d], v[%d:%d]" % (40 + i, 41 + i, 40 + i, 41 + i, keep + i, keep + i + 1))
        if hh == 0: a("s_branch CV_EP")
    a.label("CV_EP")
    for k in range(8):
        y = 40 + 2 * k; t = 60 + 2 * k
        a("v_pk_mul_f32 v[%d:%d], v[%d:%d], s[24:25] op_sel_hi:[1,0]" % (y, y + 1, y, y + 1)); rnd_pk(a, y)
        a("v_pk_add_f32 v[%d:%d], v[%d:%d], v[%d:%d]" % (y, y + 1, y, y + 1, t, t + 1)); rnd_pk(a, y)
        a("v_pk_mul_f32 v[%d:%d], v[%d:%d], s[28:29] op_sel_hi:[1,0]" % (y, y + 1, y, y + 1)); rnd_pk(a, y)
        a("v_pk_add_f32 v[%d:%d], v[%d:%d], v[%d:%d]" % (y, y + 1, y, y + 1, 8 + 2 * k, 9 + 2 * k))
        a("v_cvt_pk_bf16_f32 v%d, v%d, v%d" % (80 + k, y, y + 1))
        if k == 3: a("ds_write_b128 v26, v[80:83]")
    a("ds_write_b128 v26, v[84:87] offset:16")
    a("ds_read_b128 v[80:83], v27"); a("ds_read_b128 v[84:87], v27 offset:1024")
    a("s_add_u32 s16, s15, %d" % (8 * 65536))
    a("s_waitcnt lgkmcnt(1)"); a("buffer_store_dwordx4 v[80:83], v7, s[%d:%d], s15 offen%s" % (WS, WS + 3, SC))
    a("s_waitcnt lgkmcnt(0)"); a("buffer_store_dwordx4 v[84:87], v7, s[%d:%d], s16 offen%s" % (WS, WS + 3, SC))
    endp(a, KI)

def reduce4(a, r):
    a("v_permlane32_swap_b32 v%d, v%d" % (r[0], r[2])); a("v_permlane32_swap_b32 v%d, v%d" % (r[1], r[3]))
    a("v_add_f32 v%d, v%d, v%d" % (r[0], r[0], r[2])); a("v_add_f32 v%d, v%d, v%d" % (r[1], r[1], r[3]))
    a("v_permlane16_swap_b32 v%d, v%d" % (r[0], r[1])); a("v_add_f32 v%d, v%d, v%d" % (r[0], r[0], r[1]))
    for sh in (1, 2, 4, 8): a("v_add_f32_dpp v%d, v%d, v%d row_shr:%d row_mask:0xf bank_mask:0xf" % (r[0], r[0], r[0], sh))

def role_x(a):
    a.reset_counts()
    if PRIO: a("s_setprio 3")
    for i, n in enumerate(("u", "ws", "dbg", "wsp")): load_ptr(a, 24 + 4 * i, n)
    a("s_sub_u32 s3, s2, %d" % O_X)
    a("s_lshl_b32 s4, s3, 2"); a("s_add_u32 s4, s4, s20"); a("s_lshl_b32 s4, s4, 12")
    a("v_lshlrev_b32 v2, 4, v1")
    a("s_waitcnt lgkmcnt(0)")
    for i, n in enumerate(("u", "ws", "dbg", "wsp")): make_srd(a, 24 + 4 * i, n)
    for r in range(4):
        a("buffer_load_dwordx4 v[%d:%d], v2, s[24:27], s4 offen offset:%d%s" % (32 + 4 * r, 35 + 4 * r, r * 1024, NT), tag=r)
    a("s_mul_i32 s5, s20, %d" % (4 * XP)); a("v_add_u32 v3, s5, v2")
    a("v_mov_b32 v4, 0x3f803f80")
    a("v_lshrrev_b32 v5, 4, v1"); a("v_bfe_u32 v6, v1, 2, 2"); a("v_and_b32 v7, 3, v1")
    a("v_and_b32 v8, 1, v5"); a("v_lshl_add_u32 v8, v8, 3, v6"); a("v_mul_u32_u24 v8, %d, v8" % XP)
    a("v_lshl_add_u32 v8, v7, 3, v8"); a("v_lshrrev_b32 v9, 1, v5"); a("v_lshl_add_u32 v8, v9, 5, v8")
    a("s_lshl_b32 s6, s20, 8"); a("v_add_u32 v26, s6, v8")
    a("v_and_b32 v10, 15, v1"); a("v_lshl_add_u32 v10, v9, 4, v10")
    a("v_lshrrev_b32 v11, 2, v10"); a("v_lshlrev_b32 v11, 14, v11"); a("v_and_b32 v10, 3, v10"); a("v_lshl_add_u32 v11, v10, 4, v11")
    a("v_and_b32 v10, 1, v5"); a("v_lshl_add_u32 v27, v10, 6, v11")
    a("s_lshl_b32 s7, s20, 19"); a("s_lshl_b32 s8, s3, 7"); a("s_add_u32 s7, s7, s8")
    for r in range(4):
        a.wait_vm(r)
        a("ds_write_b128 v3, v[%d:%d] offset:%d" % (32 + 4 * r, 35 + 4 * r, r * XP))
    stamp(a, 1)
    for r in range(4):
        a("v_dot2_f32_bf16 v%d, v%d, v4, 0" % (8 + r, 32 + 4 * r))
        for q in range(1, 4): a("v_dot2_f32_bf16 v%d, v%d, v4, v%d" % (8 + r, 32 + 4 * r + q, 8 + r))
    a("s_waitcnt lgkmcnt(0)"); a("s_barrier")
    for it in range(4):
        b = 96 + 4 * it
        a("ds_read_b64_tr_b16 v[%d:%d], v26 offset:%d" % (b, b + 1, it * 64), tag=("x", it))
        a("ds_read_b64_tr_b16 v[%d:%d], v26 offset:%d" % (b + 2, b + 3, it * 64 + 4 * XP), tag=("x", it))
    R = [8, 9, 10, 11]
    reduce4(a, R)
    for it in range(4):
        b = 96 + 4 * it
        a("s_add_u32 s9, s7, %d" % (WS_XT + it * 16 * 8192))
        a.wait_lg(("x", it))
        a("buffer_store_dwordx4 v[%d:%d], v27, s[28:31], s9 offen%s" % (b, b + 3, SS))
    a("v_mul_f32 v16, %s, v8" % fl(1 / 512.))
    for r in range(4): a("v_readlane_b32 s%d, v16, %d" % (40 + 2 * r, 15 + 16 * r))
    for r in range(4):
        for q in range(4):
            w = 32 + 4 * r + q
            a("v_lshlrev_b32 v20, 16, v%d" % w); a("v_and_b32 v21, 0xffff0000, v%d" % w)
            a("v_pk_add_f32 v[20:21], v[20:21], s[%d:%d] op_sel_hi:[1,0] neg_lo:[0,1] neg_hi:[0,1]" % (40 + 2 * r, 41 + 2 * r))
            if q == 0: a("v_pk_mul_f32 v[22:23], v[20:21], v[20:21]")
            else: a("v_pk_fma_f32 v[22:23], v[20:21], v[20:21], v[22:23]")
        a("v_add_f32 v%d, v22, v23" % (8 + r))
    reduce4(a, R)
    a("v_mul_f32 v8, %s, v8" % fl(1 / 512.)); bf16r(a, 8, 8)
    a("v_add_f32 v8, %s, v8" % fl(1e-5)); bf16r(a, 8, 8)
    a("v_sqrt_f32 v8, v8"); a("v_cvt_pk_bf16_f32 v8, v16, v8")
    a("v_lshlrev_b32 v9, 2, v5"); a("s_lshl_b32 s9, s3, 6"); a("s_lshl_b32 s10, s20, 4"); a("s_add_u32 s9, s9, s10"); a("s_add_u32 s9, s9, %d" % WS_ST)
    a("s_mov_b32 exec_lo, 0x80008000"); a("s_mov_b32 exec_hi, 0x80008000")
    a("buffer_store_dword v8, v9, s[28:31], s9 offen" + SS)
    a("s_mov_b64 exec, -1")
    stamp(a, 2)
    a("s_waitcnt vmcnt(0)"); a("s_barrier")
    a("s_cmp_lg_u32 s20, 0"); a("s_cbranch_scc1 SG_X")
    signal(a, 32, "SG_X", 0, 128, NX)
    a("s_mov_b64 exec, -1")
    if PFM == 4:
        a("s_setprio 0")
        a("s_and_b32 s66, s3, 7"); a("s_lshl_b32 s66, s66, 8"); a("s_lshr_b32 s67, s3, 3"); a("s_lshl_b32 s67, s67, 4"); a("s_add_u32 s66, s66, s67")
        a("s_lshl_b32 s67, s20, 2"); a("s_add_u32 s66, s66, s67"); a("s_lshl_b32 s66, s66, 12"); a("v_lshlrev_b32 v4, 6, v1")
        for r in range(4): a("buffer_load_dword v5, v4, s[36:39], s66 offen"); a("s_add_u32 s66, s66, 4096")
    endp(a, KI)

def role_mod(a):
    a.reset_counts()
    if PRIO: a("s_setprio 3")
    for i, n in enumerate(("wmod", "c", "ws", "dbg", "wsp")): load_ptr(a, 24 + 4 * i, n)
    a("s_sub_u32 s3, s2, %d" % O_M)
    a("s_lshr_b32 s4, s3, 1"); a("s_and_b32 s5, s3, 1")
    a("v_lshrrev_b32 v2, 3, v1"); a("s_lshl_b32 s6, s5, 8"); a("s_lshl_b32 s7, s20, 6"); a("s_add_u32 s6, s6, s7")
    a("v_add_u32 v2, s6, v2")
    a("v_mul_u32_u24 v3, 6144, v2"); a("v_and_b32 v4, 7, v1"); a("v_lshl_add_u32 v3, v4, 4, v3")
    a("s_lshl_b32 s7, s4, 7"); a("v_lshlrev_b32 v5, 1, v2")
    a("s_waitcnt lgkmcnt(0)")
    for i, n in enumerate(("wmod", "c", "ws", "dbg", "wsp")): make_srd(a, 24 + 4 * i, n)
    for it in range(8):
        a("buffer_load_dwordx4 v[%d:%d], v3, s[24:27], s7 offen%s" % (40 + 4 * it, 43 + 4 * it, NT), tag=it)
        if it < 7: a("s_add_u32 s7, s7, %d" % (8 * 6144))
    for it in range(8): a("buffer_load_ushort v%d, v5, s[28:31], 0 offen offset:%d" % (30 + it, it * 16), tag="c")
    a("v_lshrrev_b32 v8, 4, v1"); a("s_lshl_b32 s8, s20, 2"); a("v_add_u32 v8, s8, v8"); a("v_lshlrev_b32 v8, 8, v8"); a("v_lshl_add_u32 v8, v4, 5, v8")
    a("v_lshlrev_b32 v9, 2, v1")
    a.wait_vm("c")
    for it in range(8):
        r = 30 + it
        a("v_lshlrev_b32 v%d, 16, v%d" % (r, r)); a("v_mul_f32 v10, %s, v%d" % (fl(-LOG2E), r))
        a("v_exp_f32 v10, v10"); a("v_add_f32 v10, 1.0, v10"); a("v_rcp_f32 v10, v10")
        a("v_mul_f32 v%d, v%d, v10" % (r, r)); bf16r(a, r, r)
    for it in range(8):
        for q in range(4):
            w = 40 + 4 * it + q
            a("v_lshlrev_b32 v10, 16, v%d" % w); a("v_and_b32 v11, 0xffff0000, v%d" % w)
            op = "v_mul_f32" if it == 0 else "v_fmac_f32"
            a("%s v%d, v10, v%d" % (op, 80 + 2 * q, 30 + it)); a("%s v%d, v11, v%d" % (op, 81 + 2 * q, 30 + it))
    stamp(a, 2)
    for r in range(80, 88): a("v_add_f32_dpp v%d, v%d, v%d row_shr:8 row_mask:0xf bank_mask:0xf" % (r, r, r))
    a("s_mov_b32 exec_lo, 0xff00ff00"); a("s_mov_b32 exec_hi, 0xff00ff00")
    a("ds_write_b128 v8, v[80:83]"); a("ds_write_b128 v8, v[84:87] offset:16")
    a("s_mov_b64 exec, -1")
    a("s_waitcnt lgkmcnt(0)"); a("s_barrier")
    a("s_cmp_eq_u32 s20, 0"); a("s_cbranch_scc1 MD_W0")
    a("s_branch F_END")
    a.label("MD_W0")
    for i in range(16): a("ds_read_b32 v%d, v9 offset:%d" % (12 + i, i * 256))
    a("s_mul_i32 s9, s5, 24576"); a("s_lshl_b32 s10, s4, 8"); a("s_add_u32 s9, s9, s10"); a("s_add_u32 s9, s9, %d" % WS_MODP); a("s_add_u32 s10, s9, 12288")
    a("s_waitcnt lgkmcnt(0)")
    for hb in (12, 20):
        for st in (4, 2, 1):
            for i in range(st): a("v_add_f32 v%d, v%d, v%d" % (hb + i, hb + i, hb + i + st))
    a("buffer_store_dword v12, v9, s[32:35], s9 offen" + SS); a("buffer_store_dword v20, v9, s[32:35], s10 offen" + SS)
    signal(a, 36, "SG_M", 64, 132, NM)
    endp(a, KI)

def pack_addr(a, s_dst, unit_stride):
    a("v_lshlrev_b32 v4, 4, v0")
    a("v_lshrrev_b32 v5, 4, v1"); a("v_bfe_u32 v6, v1, 2, 2"); a("v_and_b32 v7, 3, v1")
    a("v_lshl_add_u32 v8, v5, 3, v6"); a("v_lshlrev_b32 v8, 6, v8"); a("v_lshl_add_u32 v8, v7, 4, v8")
    a("s_lshr_b32 s6, s20, 1"); a("s_and_b32 s7, s20, 1")
    a("s_lshl_b32 s9, s6, 11"); a("s_lshl_b32 s10, s7, 3"); a("s_add_u32 s9, s9, s10"); a("v_add_u32 v8, s9, v8")
    a("v_lshlrev_b32 v9, 4, v1")
    a("s_lshl_b32 s9, s6, 10"); a("s_mul_i32 s10, s7, %d" % unit_stride); a("s_add_u32 s9, s9, s10"); a("s_add_u32 s%d, s%d, s9" % (s_dst, s_dst))
def pack_out(a, ws_srd, nit, s_dst):
    for it in range(nit):
        b = 32 + 4 * it
        a("ds_read_b64_tr_b16 v[%d:%d], v8 offset:%d" % (b, b + 1, it * 4096), tag=("t", it))
        a("ds_read_b64_tr_b16 v[%d:%d], v8 offset:%d" % (b + 2, b + 3, it * 4096 + 256), tag=("t", it))
    for it in range(nit):
        b = 32 + 4 * it
        if it and it % 2 == 0: a("s_add_u32 s%d, s%d, 4096" % (s_dst, s_dst))
        a.wait_lg(("t", it))
        a("buffer_store_dwordx4 v[%d:%d], v9, s[%d:%d], s%d offen offset:%d%s" % (b, b + 3, ws_srd, ws_srd + 3, s_dst, (it & 1) * 2048, SC))

def role_pack(a):
    a.reset_counts()
    load_ptr(a, 24, "win"); load_ptr(a, 28, "ws"); load_ptr(a, 32, "dbg")
    a("s_sub_u32 s3, s2, %d" % O_P); a("s_and_b32 s11, s3, 1"); a("s_lshr_b32 s3, s3, 1")
    a("s_cmp_ge_u32 s3, 22"); a("s_cselect_b32 s4, 22, 0"); a("s_cselect_b32 s5, 1376, 0")
    a("s_sub_u32 s4, s3, s4")
    a("s_lshl_b32 s6, s4, 6"); a("s_add_u32 s5, s5, s6"); a("s_mul_i32 s6, s11, %d" % (256 * 2752)); a("s_add_u32 s5, s5, s6")
    a("v_lshrrev_b32 v2, 2, v1"); a("s_lshl_b32 s6, s20, 4"); a("v_add_u32 v2, s6, v2")
    a("v_mul_u32_u24 v3, 2752, v2"); a("v_and_b32 v4, 3, v1"); a("v_lshl_add_u32 v3, v4, 4, v3")
    a("s_cmp_eq_u32 s4, 21"); a("s_cselect_b32 s7, 2, 4")
    a("v_cmp_gt_u32 vcc, s7, v4"); a("v_mov_b32 v5, 0x7f000000"); a("v_cndmask_b32 v3, v5, v3, vcc")
    a("s_lshl_b32 s8, s3, 15"); a("s_lshl_b32 s6, s11, 13"); a("s_add_u32 s8, s8, s6"); a("s_add_u32 s8, s8, %d" % WS_WIN)
    a("s_waitcnt lgkmcnt(0)")
    make_srd(a, 24, "win"); make_srd(a, 28, "ws"); make_srd(a, 32, "dbg")
    if PEARLY:
        for it in range(4):
            a("buffer_load_dwordx4 v[%d:%d], v3, s[24:27], s5 offen%s" % (32 + 4 * it, 35 + 4 * it, NT))
            if it < 3: a("s_add_u32 s5, s5, %d" % (64 * 2752))
    pack_addr(a, 8, 16384)
    a("v_lshlrev_b32 v10, 2, v0"); a("v_lshlrev_b32 v11, 2, v2")
    a("s_cmp_lg_u32 s20, 0"); a("s_cbranch_scc1 PK_W")
    poll(a, 32, "PK_POLL", 12, 13, PSL)
    a.label("PK_W")
    a("s_barrier")
    if not PEARLY:
        for it in range(4):
            a("buffer_load_dwordx4 v[%d:%d], v3, s[24:27], s5 offen%s" % (32 + 4 * it, 35 + 4 * it, NT))
            if it < 3: a("s_add_u32 s5, s5, %d" % (64 * 2752))
    a("s_lshl_b32 s12, s11, 10"); a("s_add_u32 s12, s12, %d" % (WS_MODP + 3 * 2048))
    for p in range(4):
        for sec in range(3):
            if sec == 2: a("s_add_u32 s13, s12, 4096")
            a("buffer_load_dword v%d, v10, s[28:31], s%d offen offset:%d%s" % (60 + 4 * sec + p, 13 if sec == 2 else 12, (sec & 1) * 2048, SS))
        if p < 3: a("s_add_u32 s12, s12, 12288")
    a("s_waitcnt vmcnt(0)")
    for sec in range(3):
        b = 60 + 4 * sec
        a("v_add_f32 v%d, v%d, v%d" % (b, b, b + 1)); a("v_add_f32 v%d, v%d, v%d" % (b + 2, b + 2, b + 3)); a("v_add_f32 v%d, v%d, v%d" % (b, b, b + 2)); bf16r(a, b, b)
    a("v_add_f32 v64, 1.0, v64"); bf16r(a, 64, 64)
    a("ds_write_b32 v10, v60 offset:16384"); a("ds_write_b32 v10, v64 offset:17408")
    a("s_cmp_lg_u32 s3, 0"); a("s_cbranch_scc1 PK_NG")
    a("s_lshl_b32 s12, s11, 10"); a("s_add_u32 s12, s12, %d" % (WS_MOD + 5 * 2048))
    a("buffer_store_dword v68, v10, s[28:31], s12 offen" + SC)
    a.label("PK_NG")
    a("s_waitcnt lgkmcnt(0)"); a("s_barrier")
    for it in range(4):
        a("ds_read_b32 v%d, v11 offset:%d" % (60 + it, 16384 + it * 256)); a("ds_read_b32 v%d, v11 offset:%d" % (64 + it, 17408 + it * 256))
    for i in range(16): a("v_mov_b32 v%d, 0" % (80 + i))
    a("s_waitcnt lgkmcnt(0)")
    for it in range(4):
        for q in range(4):
            w = 32 + 4 * it + q
            a("v_lshlrev_b32 v12, 16, v%d" % w); a("v_and_b32 v13, 0xffff0000, v%d" % w)
            a("v_fmac_f32 v%d, v12, v%d" % (88 + 2 * q, 60 + it)); a("v_fmac_f32 v%d, v13, v%d" % (89 + 2 * q, 60 + it))
            a("v_mul_f32 v12, v12, v%d" % (64 + it)); a("v_mul_f32 v13, v13, v%d" % (64 + it))
            a("v_cvt_pk_bf16_f32 v%d, v12, v13" % w)
            a("v_lshlrev_b32 v12, 16, v%d" % w); a("v_and_b32 v13, 0xffff0000, v%d" % w)
            a("v_add_f32 v%d, v%d, v12" % (80 + 2 * q, 80 + 2 * q)); a("v_add_f32 v%d, v%d, v13" % (81 + 2 * q, 81 + 2 * q))
        a("ds_write_b128 v4, v[%d:%d] offset:%d" % (32 + 4 * it, 35 + 4 * it, it * 4096))
    for sh in (4, 8):
        for r in range(80, 96): a("v_add_f32_dpp v%d, v%d, v%d row_shr:%d row_mask:0xf bank_mask:0xf" % (r, r, r, sh))
    a("s_lshl_b32 s13, s20, 2"); a("v_add_u32 v12, s13, v5"); a("v_lshlrev_b32 v12, 7, v12"); a("v_lshl_add_u32 v12, v7, 5, v12")
    a("s_mov_b32 exec_lo, 0xf000f000"); a("s_mov_b32 exec_hi, 0xf000f000")
    for q in range(2):
        a("ds_write_b128 v12, v[%d:%d] offset:%d" % (80 + 8 * q, 83 + 8 * q, 20480 + q * 2048)); a("ds_write_b128 v12, v[%d:%d] offset:%d" % (84 + 8 * q, 87 + 8 * q, 20480 + q * 2048 + 16))
    a("s_mov_b64 exec, -1")
    a("s_waitcnt lgkmcnt(0)"); a("s_barrier")
    a.reset_counts()
    pack_out(a, 28, 4, 8)
    a("s_cmp_lg_u32 s20, 0"); a("s_cbranch_scc1 F_END")
    a("v_and_b32 v12, 31, v1"); a("v_lshlrev_b32 v12, 2, v12"); a("v_lshrrev_b32 v13, 5, v1"); a("v_lshl_add_u32 v12, v13, 11, v12")
    for i in range(16): a("ds_read_b32 v%d, v12 offset:%d" % (60 + i, 20480 + i * 128))
    a("v_bfe_u32 v14, v1, 2, 1"); a("v_lshlrev_b32 v14, 6, v14"); a("v_bfe_u32 v15, v1, 3, 2"); a("v_lshl_add_u32 v14, v15, 4, v14")
    a("v_and_b32 v15, 3, v1"); a("v_lshl_add_u32 v14, v15, 2, v14"); a("v_mul_u32_u24 v13, %d, v13" % (WS_CS2 - WS_CS1)); a("v_add_u32 v14, v14, v13")
    a("s_lshl_b32 s12, s3, 7"); a("s_mul_i32 s13, s11, %d" % CS_PART); a("s_add_u32 s12, s12, s13"); a("s_add_u32 s12, s12, %d" % WS_CS1)
    a("s_waitcnt lgkmcnt(0)")
    for st in (8, 4, 2, 1):
        for i in range(st): a("v_add_f32 v%d, v%d, v%d" % (60 + i, 60 + i, 60 + i + st))
    a("buffer_store_dword v60, v14, s[28:31], s12 offen" + SC)
    endp(a, KI)

def role_wout(a):
    a.reset_counts()
    load_ptr(a, 24, "wout"); load_ptr(a, 28, "ws")
    a("s_sub_u32 s3, s2, %d" % O_W); a("s_and_b32 s4, s3, 15"); a("s_lshr_b32 s11, s3, 4")
    a("s_lshl_b32 s5, s4, 6"); a("s_lshl_b32 s6, s11, 18"); a("s_add_u32 s5, s5, s6")
    a("v_lshrrev_b32 v2, 2, v1"); a("s_lshl_b32 s6, s20, 4"); a("v_add_u32 v2, s6, v2")
    a("v_lshlrev_b32 v3, 10, v2"); a("v_and_b32 v4, 3, v1"); a("v_lshl_add_u32 v3, v4, 4, v3")
    a("s_mul_i32 s8, s4, %d" % (2 * 24 * 1024)); a("s_lshl_b32 s6, s11, 13"); a("s_add_u32 s8, s8, s6"); a("s_add_u32 s8, s8, %d" % WS_WOUT)
    a("s_waitcnt lgkmcnt(0)")
    make_srd(a, 24, "wout"); make_srd(a, 28, "ws")
    for it in range(4):
        a("buffer_load_dwordx4 v[%d:%d], v3, s[24:27], s5 offen%s" % (32 + 4 * it, 35 + 4 * it, NT), tag=it)
        if it < 3: a("s_add_u32 s5, s5, 65536")
    pack_addr(a, 8, 24 * 1024)
    a("s_cmp_lg_u32 s3, 0"); a("s_cbranch_scc1 WO_NF")
    for i in range(4): a("v_mov_b32 v%d, 0" % (60 + i))
    a("s_mov_b32 s12, %d" % WS_FLG)
    vm0 = list(a.vm)
    a("buffer_store_dwordx4 v[60:63], v4, s[28:31], s12 offen" + SC)
    a("s_add_u32 s12, s12, 4096")
    a("buffer_store_dwordx4 v[60:63], v4, s[28:31], s12 offen" + SC)
    a("s_waitcnt vmcnt(0)")
    a.vm = vm0
    a.label("WO_NF")
    for it in range(4):
        a.wait_vm(it); a("ds_write_b128 v4, v[%d:%d] offset:%d" % (32 + 4 * it, 35 + 4 * it, it * 4096))
    a("s_waitcnt lgkmcnt(0)"); a("s_barrier")
    pack_out(a, 28, 4, 8)
    endp(a, KI)

def gen():
    a = Asm()
    stamp_init(a)
    a("v_and_b32 v1, 63, v0"); a("v_lshrrev_b32 v2, 6, v0"); a("v_readfirstlane_b32 s20, v2")
    a("s_cmp_ge_u32 s2, %d" % GRID); a("s_cbranch_scc1 F_END")
    a("s_cmp_ge_u32 s2, %d" % O_W); a("s_cbranch_scc1 F_WOUT")
    a("s_cmp_ge_u32 s2, %d" % O_P); a("s_cbranch_scc1 F_PACK")
    a("s_cmp_ge_u32 s2, %d" % O_M); a("s_cbranch_scc1 F_MOD")
    a("s_cmp_ge_u32 s2, %d" % O_X); a("s_cbranch_scc1 F_X")
    role_conv(a)
    a.label("F_MOD"); role_mod(a)
    a.label("F_X"); role_x(a)
    a.label("F_PACK"); role_pack(a)
    a.label("F_WOUT"); role_wout(a)
    a.label("F_END"); endp(a, KI)
    return a
```

```python
from gen_common import *
from gen_f1 import rnd_pk
GRID = 256
A_OFF = 0
SG_OFF = 65536
SM = 131072
ST_OFF = 0; ZS_OFF = 512; ZF_OFF = 2560; CS_OFF = 4096; Z1_OFF = 8192; TR_OFF = 20480
LDS = SM + TR_OFF + 8192
OST = 96 * 1024
Z2_NORMALIZED = True
K0 = -2 * 0.7978845608028654 * LOG2E
K1 = K0 * 0.044715
SC = " sc1"; SS = " sc0 sc1"
NPRE = int(os.environ.get("NPRE", "24"))
VSL = (1, 4, 7, 9)
D = 5
PB1 = int(os.environ.get('PB1', '6'))
PBD = int(os.environ.get('PBD', '4'))
ACC = 64
WO = 128
X1R = 20
def ZR(st): return (184, 208, 232, 32, 160)[st]
WS_FL1 = WS_FLG + 4096
KI = 1

def gen():
    a = Asm()
    stamp_init(a)
    a("v_and_b32 v1, 63, v0"); a("v_lshrrev_b32 v2, 6, v0"); a("v_readfirstlane_b32 s20, v2")
    a("s_cmp_ge_u32 s2, %d" % GRID); a("s_cbranch_scc1 G_END")
    load_ptr(a, 24, "ws"); load_ptr(a, 56, "wsp"); load_ptr(a, 60, "bsp"); load_ptr(a, 64, "out")
    a("s_bfe_u32 s3, s2, 0x20001"); a("s_lshl_b32 s3, s3, 3"); a("s_bfe_u32 s4, s2, 0x30003"); a("s_add_u32 s3, s3, s4")
    a("s_and_b32 s4, s2, 1"); a("s_lshr_b32 s5, s2, 6")
    a("v_lshrrev_b32 v2, 3, v1"); a("v_bfe_u32 v4, v1, 4, 1"); a("v_lshlrev_b32 v4, 5, v4")
    a("v_and_b32 v5, 7, v1"); a("v_lshlrev_b32 v5, 4, v5"); a("v_xor_b32 v5, v5, v4")
    a("v_lshl_add_u32 v6, v2, 7, v5"); a("v_xor_b32 v7, 64, v6"); a("v_lshlrev_b32 v8, 4, v1")
    a("s_lshl_b32 s7, s20, 12"); a("s_lshl_b32 s6, s3, 16"); a("s_add_u32 s6, s6, s7"); a("s_add_u32 s6, s6, %d" % WS_X1T)
    a("s_mul_i32 s11, s4, 22"); a("s_mul_i32 s8, s5, 5"); a("s_add_u32 s8, s8, s11"); a("s_add_u32 s8, s8, 44")
    a("s_mul_i32 s9, s5, 6"); a("s_add_u32 s9, s9, s11")
    a("s_cmp_eq_u32 s5, 3"); a("s_cselect_b32 s10, 3, 1")
    a("s_add_u32 s30, s8, s20")
    a("s_add_u32 s11, s30, 4"); a("s_sub_u32 s47, s20, s10"); a("s_add_u32 s12, s9, s47")
    a("s_cmp_lt_u32 s20, s10"); a("s_cselect_b32 s31, s11, s12"); a("s_cselect_b32 s33, 1, 0")
    a("s_add_u32 s32, s12, 4")
    a("s_cmp_eq_u32 s20, 3"); a("s_cselect_b32 s13, 0x7f000000, 0")
    a("v_add_u32 v9, s13, v8")
    for uu in range(3):
        a("s_lshl_b32 s%d, s%d, 14" % (34 + uu, 30 + uu)); a("s_add_u32 s%d, s%d, %d" % (34 + uu, 34 + uu, WS_WIN))
    a("v_lshrrev_b32 v10, 4, v1")
    a("v_mov_b32 v11, s30"); a("v_mov_b32 v12, s31"); a("v_cmp_eq_u32 vcc, 1, v10"); a("v_cndmask_b32 v11, v11, v12, vcc")
    a("v_mov_b32 v12, s32"); a("v_cmp_eq_u32 vcc, 2, v10"); a("v_cndmask_b32 v11, v11, v12, vcc")
    a("v_and_b32 v17, 15, v1"); a("v_lshlrev_b32 v11, 6, v11"); a("v_lshl_add_u32 v11, v17, 2, v11")
    a("s_lshl_b32 s46, s20, 10"); a("s_add_u32 s46, s46, %d" % SM)
    a("s_waitcnt lgkmcnt(0)")
    make_srd(a, 24, "ws"); make_srd(a, 56, "wsp"); make_srd(a, 60, "bsp"); make_srd(a, 64, "out")
    def aop(Q, i):
        pre = ["s_add_u32 m0, s7, %d" % (A_OFF + Q * 16384), "s_add_u32 s14, s6, %d" % (Q * 16384)] if i == 0 else []
        return (pre, "buffer_load_dwordx4 v%d, s[24:27], s14 offen offset:%d lds" % (6 + (i & 1), i * 1024), ("A", Q))
    def breg(uu, ks): return ("a", 64 * uu + 4 * ks) if uu < 2 else ("v", 192 + 4 * ks)
    def bop(uu, ks):
        pre = ["s_add_u32 s%d, s%d, %d" % (38 + uu, 34 + uu, ks * 1024)] if ks % 4 == 0 else []
        t, r = breg(uu, ks)
        return (pre, "buffer_load_dwordx4 %s[%d:%d], v%d, s[24:27], s%d offen offset:%d" % (t, r, r + 3, 9 if uu == 2 else 8, 38 + uu, (ks % 4) * 1024), ("B", uu, ks))
    def emit(op):
        for p in op[0]: a(p)
        a(op[1], tag=op[2])
    bq = []
    for Q in range(4):
        bq += [aop(Q, i) for i in range(4)]
        for ks in range(4 * Q, 4 * Q + 4): bq += [bop(0, ks), bop(1, ks)]
    for i, off in enumerate((WS_CS1, WS_CS2, WS_CS1 + CS_PART, WS_CS2 + CS_PART)):
        bq.append((["s_add_u32 m0, s46, %d" % (CS_OFF + 256 * i), "s_mov_b32 s15, %d" % off], "buffer_load_dword v11, s[24:27], s15 offen lds", "cs"))
    bq += [bop(2, ks) for ks in range(16)]
    for _ in range(NPRE): emit(bq.pop(0))
    a("s_sub_u32 s56, s56, 4096"); a("s_subb_u32 s57, s57, 0"); a("s_add_u32 s58, s58, 4096")
    a("v_bfe_u32 v13, v1, 2, 2"); a("v_lshl_add_u32 v14, v10, 3, v13"); a("v_lshlrev_b32 v14, 7, v14")
    a("v_and_b32 v15, 3, v1"); a("v_lshl_add_u32 v14, v15, 3, v14")
    a("v_bfe_u32 v15, v1, 3, 2"); a("v_lshl_add_u32 v16, v15, 5, v14")
    a("v_xor_b32 v15, s20, v15"); a("v_lshl_add_u32 v20, v15, 5, v14")
    for sp in range(1, 4): a("v_xor_b32 v%d, %d, v20" % (20 + sp, sp * 32))
    for i in range(48): a("v_mov_b32 v%d, 0" % (64 + i))
    a("v_mov_b32 v26, 0x3f803f80")
    for i in range(8): a("v_mov_b32 v%d, 0" % (156 + i))
    for i in range(4): a("v_mov_b32 v%d, 0x3f803f80" % (164 + i))
    a("v_lshlrev_b32 v18, 3, v17")
    a("v_mov_b32 v30, %s" % fl(K0)); a("v_mov_b32 v31, %s" % fl(K0)); a("s_mov_b32 s18, %s" % fl(K1))
    def aload_ops(tag, ks):
        b = 32 + 16 * (ks & 1); ops = []
        for sp in range(4):
            ops.append(([], "ds_read_b64_tr_b16 v[%d:%d], v%d offset:%d" % (b + 4 * sp, b + 4 * sp + 1, 20 + sp, ks * 4096), (tag, ks)))
            ops.append(([], "ds_read_b64_tr_b16 v[%d:%d], v%d offset:%d" % (b + 4 * sp + 2, b + 4 * sp + 3, 20 + sp, ks * 4096 + 512), (tag, ks)))
        return ops
    def mfma_s(uu, sp, ks):
        b = 32 + 16 * (ks & 1); acc = 64 + 16 * uu + 4 * sp; t, r = breg(uu, ks)
        return "v_mfma_f32_16x16x32_bf16 v[%d:%d], %s[%d:%d], v[%d:%d], v[%d:%d]" % (acc, acc + 3, t, r, r + 3, b + 4 * sp, b + 4 * sp + 3, acc, acc + 3)
    def need_issued(tag):
        while any(o[2] == tag for o in bq): emit(bq.pop(0))
    def qbar(Q):
        need_issued(("A", Q)); a.wait_vm(("A", Q)); a("s_barrier")
    qbar(0)
    for o in aload_ops("a", 0): emit(o)
    for ks in range(16):
        if ks % 4 == 3 and ks + 1 < 16: qbar((ks + 1) // 4)
        ds = aload_ops("a", ks + 1) if ks + 1 < 16 else aload_ops("b", 0)
        need_issued(("B", 1, ks))
        a.wait_lg(("a", ks)); a.wait_vm(("B", 1, ks))
        b = 32 + 16 * (ks & 1)
        ms = [mfma_s(uu, sp, ks) for uu in range(2) for sp in range(4)]
        ms += ["v_mfma_f32_16x16x32_bf16 v[156:159], v[164:167], v[%d:%d], v[156:159]" % (b, b + 3),
               "v_mfma_f32_16x16x32_bf16 v[160:163], v[%d:%d], v[%d:%d], v[160:163]" % (b, b + 3, b, b + 3)]
        for n, m in enumerate(ms):
            a(m)
            if ds: emit(ds.pop(0))
            if n in VSL and bq: emit(bq.pop(0))
    for o in bq: emit(o)
    stamp(a, 1)
    a("v_and_b32 v27, 3, v1")
    a("v_cmp_eq_u32 vcc, 1, v27"); a("v_cndmask_b32 v25, v160, v161, vcc")
    a("v_cmp_eq_u32 vcc, 2, v27"); a("v_cndmask_b32 v25, v25, v162, vcc")
    a("v_cmp_eq_u32 vcc, 3, v27"); a("v_cndmask_b32 v25, v25, v163, vcc")
    a("v_mul_f32 v24, %s, v156" % fl(1 / 512.)); a("v_mul_f32 v25, %s, v25" % fl(1 / 512.))
    a("v_fma_f32 v25, -v24, v24, v25"); a("v_max_f32 v25, 0, v25"); bf16r(a, 25, 25)
    a("v_add_f32 v25, %s, v25" % fl(1e-5)); bf16r(a, 25, 25)
    a("v_sqrt_f32 v25, v25"); bf16r(a, 25, 25); a("v_rcp_f32 v28, v25")
    bf16r(a, 24, 24); a("v_mul_f32 v29, v24, v28")
    a("s_lshl_b32 s16, s20, 7"); a("s_add_u32 s16, s16, %d" % SM); a("v_add_u32 v19, s16, v18")
    a("v_cmp_eq_u32 vcc, v13, v10"); a("s_and_saveexec_b64 s[44:45], vcc")
    a("ds_write_b64 v19, v[28:29] offset:%d" % ST_OFF)
    a("s_mov_b64 exec, s[44:45]")
    a("v_lshlrev_b32 v11, 4, v10"); a("v_add_u32 v11, s46, v11")
    a.wait_vm("cs")
    for uu in range(3):
        for i in range(4):
            r = (112 if i < 2 else 168) + 8 * uu + 4 * (i & 1)
            a("ds_read_b128 v[%d:%d], v11 offset:%d" % (r, r + 3, CS_OFF + 256 * i + uu * 64))
    a("s_waitcnt lgkmcnt(0)"); a("s_barrier")
    for sp in range(4):
        if sp: a("v_xor_b32 v27, %d, v19" % (sp * 128))
        a("ds_read_b64 v[%d:%d], v%d offset:%d" % (136 + 2 * sp, 137 + 2 * sp, 27 if sp else 19, ST_OFF))
    for i in range(0, 24, 2): a("v_pk_add_f32 v[%d:%d], v[%d:%d], v[%d:%d]" % (112 + i, 113 + i, 112 + i, 113 + i, 168 + i, 169 + i))
    a("v_lshrrev_b32 v2, 3, v1"); a("v_lshrrev_b32 v3, 2, v2"); a("v_lshlrev_b32 v3, 3, v3"); a("v_and_b32 v4, 3, v2"); a("v_add_u32 v3, v3, v4"); a("v_lshlrev_b32 v3, 12, v3")
    a("v_and_b32 v4, 7, v1"); a("v_lshrrev_b32 v5, 1, v2"); a("v_xor_b32 v4, v4, v5")
    a("v_lshl_add_u32 v6, v4, 4, v3"); a("v_xor_b32 v7, 64, v6"); a("v_add_u32 v7, 0x10000, v7")
    for i in range(8):
        tt = i >> 1
        a("v_add_u32 v%d, %d, v%d" % (168 + i, (32 * (tt >> 1) + 4 * (tt & 1)) * 4096 - (i & 3) * 1024 + 4096, 6 + (i & 1)))
    a("s_lshl_b32 s6, s3, 18"); a("s_lshl_b32 s7, s20, 10"); a("s_add_u32 s6, s6, s7")
    a("s_lshl_b32 s19, s20, 14")
    def cbase(c): return SG_OFF + (c & 1) * 8192
    def wreg(ks): return (128 + 16 * ks) % 256
    def wdma_ops(c):
        ops = []
        for i in range(8):
            pre = []
            if i == 0: pre.append("s_add_u32 s13, s6, %d" % (c * 128))
            if i % 4 == 0: pre.append("s_add_u32 m0, s19, %d" % (cbase(c) + i * 1024))
            ops.append((pre, "buffer_load_dwordx4 v%d, s[56:59], s13 offen offset:%d lds" % (168 + i, (i & 3) * 1024), ("w", c)))
        return ops
    wv = wdma_ops(0) + wdma_ops(1)
    a("v_lshrrev_b32 v2, 1, v17"); a("v_xor_b32 v2, v2, v10"); a("v_lshlrev_b32 v2, 4, v2"); a("v_lshl_add_u32 v2, v17, 7, v2")
    a("s_lshl_b32 s16, s20, 11"); a("v_add_u32 v2, s16, v2"); a("s_add_u32 s16, s19, %d" % SG_OFF)
    for tp in range(4):
        a("v_xor_b32 v%d, %d, v2" % (176 + tp, tp * 2048)); a("v_add_u32 v%d, s16, v%d" % (176 + tp, 176 + tp)); a("v_xor_b32 v%d, 64, v%d" % (180 + tp, 176 + tp))
    def wread_ops(c):
        return [([], "ds_read_b128 a[%d:%d], v%d offset:%d" % (wreg(2 * c + h) + 4 * tp, wreg(2 * c + h) + 4 * tp + 3, (180 if h else 176) + tp, (c & 1) * 8192), ("wr", c)) for h in range(2) for tp in range(4)]
    a("v_lshlrev_b32 v29, 3, v1"); a("v_add_u32 v28, %d, v29" % SM)
    for sp in range(4):
        a("s_xor_b32 s16, s20, %d" % sp); a("s_mul_i32 s16, s16, 6"); a("s_add_u32 s16, s16, s47"); a("s_lshl_b32 s16, s16, 9"); a("v_add_u32 v%d, s16, v28" % (184 + sp))
    a("s_waitcnt lgkmcnt(0)")
    def epi(uu):
        for sp in range(4):
            acc = 64 + 16 * uu + 4 * sp; rs = 136 + 2 * sp
            ops = [[], []]
            for p in range(2):
                z = acc + 2 * p; c1 = 112 + 8 * uu + 2 * p; c2 = 116 + 8 * uu + 2 * p; t = 144 + 2 * p
                ops[p] = [
                 "v_pk_fma_f32 v[%d:%d], v[%d:%d], v[%d:%d], v[%d:%d] op_sel:[0,1,0] op_sel_hi:[1,1,1] neg_lo:[0,1,0] neg_hi:[0,1,0]" % (t, t + 1, c1, c1 + 1, rs, rs + 1, c2, c2 + 1),
                 "v_pk_fma_f32 v[%d:%d], v[%d:%d], v[%d:%d], v[%d:%d] op_sel_hi:[1,0,1]" % (z, z + 1, z, z + 1, rs, rs + 1, t, t + 1),
                 "v_pk_mul_f32 v[%d:%d], v[%d:%d], v[%d:%d]" % (t, t + 1, z, z + 1, z, z + 1),
                 "v_pk_fma_f32 v[%d:%d], v[%d:%d], s[18:19], v[30:31] op_sel_hi:[1,0,1]" % (t, t + 1, t, t + 1),
                 "v_pk_mul_f32 v[%d:%d], v[%d:%d], v[%d:%d]" % (t, t + 1, t, t + 1, z, z + 1),
                 "v_exp_f32 v%d, v%d" % (t, t), "v_exp_f32 v%d, v%d" % (t + 1, t + 1),
                 "v_pk_add_f32 v[%d:%d], v[%d:%d], 1.0 op_sel_hi:[1,0]" % (t, t + 1, t, t + 1),
                 "v_rcp_f32 v%d, v%d" % (t, t), "v_rcp_f32 v%d, v%d" % (t + 1, t + 1),
                 "v_pk_mul_f32 v[%d:%d], v[%d:%d], v[%d:%d]" % (z, z + 1, z, z + 1, t, t + 1)]
            for n_, (o0, o1) in enumerate(zip(*ops)):
                a(o0); a(o1)
                if wv and n_ in (2, 8): emit(wv.pop(0))
            a("v_cvt_pk_bf16_f32 v%d, v%d, v%d" % (acc, acc, acc + 1)); a("v_cvt_pk_bf16_f32 v%d, v%d, v%d" % (acc + 1, acc + 2, acc + 3))
    def zstat(uu, first):
        for sp in range(4):
            acc = 64 + 16 * uu + 4 * sp
            for p in range(2):
                z1_ = "0" if (first and p == 0) else "v%d" % (148 + sp); z2_ = "0" if (first and p == 0) else "v%d" % (152 + sp)
                a("v_dot2_f32_bf16 v%d, v%d, v26, %s" % (148 + sp, acc + p, z1_))
                a("v_dot2_f32_bf16 v%d, v%d, v%d, %s" % (152 + sp, acc + p, acc + p, z2_))
    def z1put(uu):
        for sp in range(4):
            acc = 64 + 16 * uu + 4 * sp
            a("ds_write_b64 v%d, v[%d:%d] offset:%d" % (184 + sp, acc, acc + 1, Z1_OFF + (2048 if uu == 2 else 0)))
    epi(0); zstat(0, True); epi(1)
    assert not wv
    a("s_cmp_eq_u32 s33, 0"); a("s_cbranch_scc1 G1_NOZ2B")
    zstat(1, False)
    a("s_branch G1_J1")
    a.label("G1_NOZ2B")
    z1put(1)
    a.label("G1_J1")
    for i in range(4): a("v_permlane32_swap_b32 v%d, v%d" % (148 + i, 152 + i))
    for i in range(4): a("v_add_f32 v%d, v%d, v%d" % (148 + i, 148 + i, 152 + i))
    for i in range(2): a("v_permlane16_swap_b32 v%d, v%d" % (148 + i, 150 + i))
    for i in range(2): a("v_add_f32 v%d, v%d, v%d" % (148 + i, 148 + i, 150 + i))
    a("v_and_b32 v27, 1, v10"); a("v_lshlrev_b32 v27, 1, v27"); a("v_xor_b32 v27, s20, v27")
    a("v_lshl_add_u32 v27, v27, 7, v18"); a("v_lshrrev_b32 v24, 1, v10"); a("v_lshl_add_u32 v27, v24, 2, v27")
    a("s_lshl_b32 s16, s20, 9"); a("s_add_u32 s16, s16, %d" % SM); a("v_add_u32 v27, s16, v27"); a("v_xor_b32 v24, 128, v27")
    a("ds_write_b32 v27, v148 offset:%d" % ZS_OFF); a("ds_write_b32 v24, v149 offset:%d" % ZS_OFF)
    a("s_lshl_b32 s21, s3, 12"); a("s_add_u32 s21, s21, %d" % WS_ZST)
    a("s_lshl_b32 s40, s4, 2"); a("s_add_u32 s40, s40, s5")
    a("s_lshl_b32 s22, s40, 9"); a("s_add_u32 s22, s22, s21")
    a("s_waitcnt lgkmcnt(0)"); a("s_barrier")
    stamp(a, 2)
    a("s_cmp_lg_u32 s20, 3"); a("s_cbranch_scc1 G1_PB")
    vm_save = list(a.vm)
    for w in range(4): a("ds_read_b64 v[%d:%d], v28 offset:%d" % (148 + 2 * w, 149 + 2 * w, ZS_OFF + w * 512))
    a("s_waitcnt lgkmcnt(0)")
    a("v_pk_add_f32 v[148:149], v[148:149], v[150:151]"); a("v_pk_add_f32 v[152:153], v[152:153], v[154:155]"); a("v_pk_add_f32 v[148:149], v[148:149], v[152:153]")
    a("v_max_f32 v149, 0, v149")
    a("buffer_store_dwordx2 v[148:149], v29, s[24:27], s22 offen" + SS)
    for c in range(2):
        a.wait_vm(("w", c))
        for o in wread_ops(c): emit(o)
        a("s_waitcnt lgkmcnt(0)")
        for o in wdma_ops(c + 2): emit(o)
    a("s_mov_b32 s23, 0")
    a.label("G1_POLL")
    for c in range(8): a("buffer_load_dwordx2 v[%d:%d], v29, s[24:27], s21 offen offset:%d%s" % (32 + 2 * c, 33 + 2 * c, c * 512, SS))
    a("s_add_u32 s23, s23, 1")
    a("s_waitcnt vmcnt(0)")
    a("v_max3_u32 v48, v33, v35, v37"); a("v_max3_u32 v49, v39, v41, v43"); a("v_max3_u32 v48, v48, v45, v47"); a("v_max_u32 v48, v48, v49")
    a("v_cmp_eq_u32 vcc, -1, v48")
    a("s_cmp_gt_u32 s23, 100000"); a("s_cbranch_scc1 G1_GOT")
    a("s_cbranch_vccnz G1_POLL")
    a.label("G1_GOT")
    for st in (4, 2, 1):
        for c in range(st): a("v_pk_add_f32 v[%d:%d], v[%d:%d], v[%d:%d]" % (32 + 2 * c, 33 + 2 * c, 32 + 2 * c, 33 + 2 * c, 32 + 2 * (c + st), 33 + 2 * (c + st)))
    a("v_mul_f32 v32, %s, v32" % fl(1 / 688.)); a("v_mul_f32 v33, %s, v33" % fl(1 / 688.))
    a("v_fma_f32 v33, -v32, v32, v33"); a("v_max_f32 v33, 0, v33"); bf16r(a, 33, 33)
    a("v_add_f32 v33, %s, v33" % fl(1e-5)); bf16r(a, 33, 33)
    a("v_sqrt_f32 v33, v33"); bf16r(a, 33, 33); a("v_rcp_f32 v34, v33")
    bf16r(a, 32, 32); a("v_mul_f32 v35, -v32, v34")
    a("ds_write_b64 v28, v[34:35] offset:%d" % ZF_OFF)
    a("s_branch G1_FIN")
    a.label("G1_PB")
    a.lg = []; a.vm = vm_save
    def passB(k0, k1, stage):
        dq = []
        for ks in range(k0, k1):
            ds = aload_ops("b", ks + 1) if ks + 1 < 16 else []
            if ks > k0: a.wait_lg(("b", ks))
            a.wait_vm(("B", 2, ks))
            if ks in stage:
                c = stage[ks]
                a.wait_vm(("w", c))
                for o in wread_ops(c): emit(o)
            if ks - 1 in stage: dq += wdma_ops(stage[ks - 1] + 2)
            for sp in range(4):
                a(mfma_s(2, sp, ks))
                for o in ds[2 * sp: 2 * sp + 2]: emit(o)
                if dq and sp & 1: emit(dq.pop(0))
        for o in dq: emit(o)
    passB(0, PB1, {0: 0, 3: 1})
    a.label("G1_FIN")
    a("s_lshr_b32 s43, s20, 1"); a("s_lshl_b32 s43, s43, 5"); a("s_and_b32 s44, s20, 1"); a("s_lshl_b32 s44, s44, 2"); a("s_add_u32 s43, s43, s44")
    a("s_lshl_b32 s44, s40, 6"); a("s_add_u32 s44, s44, s43"); a("s_lshl_b32 s45, s44, 7")
    a("v_lshrrev_b32 v27, 2, v17"); a("v_lshlrev_b32 v27, 3, v27"); a("v_and_b32 v24, 3, v17"); a("v_add_u32 v12, v27, v24")
    a("v_lshlrev_b32 v27, 5, v12"); a("v_lshl_add_u32 v27, v10, 3, v27")
    a("s_lshl_b32 s17, s20, 11"); a("s_add_u32 s17, s17, %d" % (SM + TR_OFF))
    a("s_lshl_b32 s16, s43, 5"); a("v_add_u32 v27, s16, v27")
    for sp in range(4):
        a("v_xor_b32 v%d, %d, v27" % (188 + sp, (sp >> 1) * 1024 + (sp & 1) * 128)); a("v_add_u32 v%d, s17, v%d" % (188 + sp, 188 + sp))
    a("v_lshl_add_u32 v27, v10, 3, v13"); a("v_lshlrev_b32 v27, 5, v27"); a("v_and_b32 v24, 3, v1"); a("v_lshl_add_u32 v27, v24, 3, v27"); a("v_add_u32 v27, s17, v27")
    a("s_waitcnt lgkmcnt(0)"); a("s_barrier")
    stamp(a, 3)
    for sp in range(4):
        if sp: a("v_xor_b32 v24, %d, v19" % (sp * 128))
        a("ds_read_b64 v[%d:%d], v%d offset:%d" % (148 + 2 * sp, 149 + 2 * sp, 24 if sp else 19, ZF_OFF))
    a("s_waitcnt lgkmcnt(0)")
    def znorm(uu):
        for sp in range(4):
            acc = 64 + 16 * uu + 4 * sp; rs = 148 + 2 * sp
            a("v_lshlrev_b32 v144, 16, v%d" % acc); a("v_and_b32 v145, 0xffff0000, v%d" % acc)
            a("v_lshlrev_b32 v146, 16, v%d" % (acc + 1)); a("v_and_b32 v147, 0xffff0000, v%d" % (acc + 1))
            a("v_pk_fma_f32 v[144:145], v[144:145], v[%d:%d], v[%d:%d] op_sel:[0,0,1] op_sel_hi:[1,0,1]" % (rs, rs + 1, rs, rs + 1))
            a("v_pk_fma_f32 v[146:147], v[146:147], v[%d:%d], v[%d:%d] op_sel:[0,0,1] op_sel_hi:[1,0,1]" % (rs, rs + 1, rs, rs + 1))
            a("v_cvt_pk_bf16_f32 v%d, v144, v145" % acc); a("v_cvt_pk_bf16_f32 v%d, v146, v147" % (acc + 1))
            a("ds_write_b64 v%d, v[%d:%d]" % (188 + sp, acc, acc + 1))
        for T in range(2):
            b = 112 + 8 * uu + 4 * T
            a("ds_read_b64_tr_b16 v[%d:%d], v27 offset:%d" % (b, b + 1, T * 1024)); a("ds_read_b64_tr_b16 v[%d:%d], v27 offset:%d" % (b + 2, b + 3, T * 1024 + 128))
        a("s_mul_i32 s16, s3, 88"); a("s_add_u32 s16, s16, s%d" % (30 + uu)); a("s_lshl_b32 s16, s16, 10")
        a("s_add_u32 s16, s16, %d" % (WS_Z2 - 44 * 1024)); a("s_add_u32 s23, s16, %d" % (44 * 1024))
        a("s_waitcnt lgkmcnt(0)")
        for T in range(2):
            b = 112 + 8 * uu + 4 * T
            a("buffer_store_dwordx4 v[%d:%d], v8, s[24:27], s%d offen%s" % (b, b + 3, 23 if T else 16, SS))
    znorm(0)
    a("s_cmp_eq_u32 s33, 0"); a("s_cbranch_scc1 G1_ZD")
    znorm(1)
    a.label("G1_ZD")
    a.reset_counts()
    a("s_lshl_b32 s46, s3, 7"); a("s_lshl_b32 s47, s40, 2"); a("s_add_u32 s47, s47, s46"); a("s_add_u32 s47, s47, %d" % WS_FLG); a("s_add_u32 s46, s46, %d" % WS_FLG)
    a("s_lshr_b32 s48, s3, 3"); a("s_lshl_b32 s48, s48, 1"); a("s_add_u32 s48, s48, s4"); a("s_lshl_b32 s48, s48, 8"); a("s_add_u32 s48, s48, %d" % WS_FL1)
    a("v_mov_b32 v2, 1"); a("v_mov_b32 v3, 0")
    a("s_cmp_eq_u32 s20, 3"); a("s_cbranch_scc1 G1_S3")
    PB2 = min(PB1 + PBD, 13)
    passB(PB1, PB2, {})
    a("s_waitcnt vmcnt(0) lgkmcnt(0)"); a("s_barrier")
    a.reset_counts()
    passB(PB2, 16, {PB2: 2, PB2 + 1: 3})
    epi(2); z1put(2)
    a("s_branch G1_NS")
    a.label("G1_S3")
    a("s_waitcnt vmcnt(0)"); a("s_barrier")
    a("s_mov_b64 exec, 1")
    a("buffer_atomic_add v2, v3, s[24:27], s48 offen sc0 sc1")
    a("s_mov_b64 exec, -1")
    for c in (2, 3):
        for o in wread_ops(c): emit(o)
    a("s_waitcnt vmcnt(0) lgkmcnt(0)")
    a("s_mov_b64 exec, 1")
    a("v_cmp_eq_u32 vcc, 31, v2"); a("s_cbranch_vccz G1_S4")
    a("v_mov_b32 v2, 1")
    a("buffer_store_dword v2, v3, s[24:27], s48 offen offset:128" + SS)
    a.label("G1_S4")
    a("s_mov_b64 exec, -1")
    for o in wdma_ops(4) + wdma_ops(5): emit(o)
    a.label("G1_NS")
    a("v_add_u32 v16, s45, v16")
    for tt in range(4):
        if tt: a("v_xor_b32 v15, %d, v16" % (tt * 32))
        a("ds_read_b64_tr_b16 v[%d:%d], v%d" % (X1R + 2 * tt, X1R + 1 + 2 * tt, 15 if tt else 16))
    a.reset_counts()
    a("s_waitcnt vmcnt(8)")
    for o in wread_ops(4): emit(o)
    a("s_waitcnt lgkmcnt(0)")
    for o in wdma_ops(6): emit(o)
    a("s_waitcnt vmcnt(8)")
    for o in wread_ops(5): emit(o)
    a("s_waitcnt lgkmcnt(0)")
    for o in wdma_ops(7): emit(o)
    a("s_barrier")
    a("s_movk_i32 s9, 4096"); a("s_cmp_ge_u32 s5, 3"); a("s_cselect_b32 s9, 0x7f000000, s9"); a("v_add_u32 v9, s9, v8")
    a("s_mul_i32 s8, s4, 22"); a("s_mul_i32 s10, s5, 6"); a("s_add_u32 s8, s8, s10")
    a("s_mul_i32 s7, s20, %d" % (16 * 44)); a("s_add_u32 s7, s7, s8"); a("s_lshl_b32 s7, s7, 10"); a("s_add_u32 s7, s7, %d" % WS_Z2)
    for i in range(96): a("v_mov_b32 v%d, 0" % (ACC + i))
    a("v_add_u32 v11, s43, v12"); a("v_lshlrev_b32 v11, 1, v11")
    a("s_lshl_b32 s41, s40, 2"); a("s_add_u32 s41, s41, s20"); a("s_mul_i32 s41, s41, %d" % (24 * 1024)); a("s_add_u32 s41, s41, %d" % WS_WOUT)
    a("s_lshl_b32 s18, s3, 7"); a("v_lshlrev_b32 v13, 5, v10"); a("s_lshl_b32 s49, s44, 2"); a("s_add_u32 s49, s49, %d" % (WS_MOD + 5 * 2048))
    a("v_mov_b32 v2, 0")
    a("s_lshl_b32 s50, s20, 9"); a("s_lshl_b32 s51, s4, 8"); a("s_add_u32 s50, s50, s51"); a("s_add_u32 s50, s50, %d" % (WS_FL1 + 128))
    a("s_mov_b32 s53, 0"); a("s_mov_b64 exec, 1")
    a.label("G2_P1")
    a("buffer_load_dword v3, v2, s[24:27], s50 offen sc1")
    a("s_add_u32 s53, s53, 1")
    a("s_waitcnt vmcnt(0)")
    a("v_cmp_ne_u32 vcc, 1, v3")
    a("s_cmp_gt_u32 s53, 400000"); a("s_cbranch_scc1 G2_G1")
    a("s_cbranch_vccnz G2_P1")
    a.label("G2_G1")
    a("s_mov_b64 exec, -1")
    stamp(a, 4)
    a.reset_counts()
    for o in wread_ops(6) + wread_ops(7): emit(o)
    def zload_ops(ks):
        st = ks % D; ops = []
        for uu in range(6):
            pre = ["s_add_u32 s12, s7, %d" % (ks * 44 * 1024)] if uu == 0 else []
            ops.append((pre, "buffer_load_dwordx4 v[%d:%d], v%d, s[24:27], s12 offen offset:%d%s" % (ZR(st) + 4 * uu, ZR(st) + 4 * uu + 3, 9 if uu >= 4 else 8, (uu & 3) * 1024, SS), ("z", ks)))
        return ops
    for ks in range(D):
        for o in zload_ops(ks): emit(o)
    q = []
    for ks in range(D, 16): q += [(ks - D + 1, o) for o in zload_ops(ks)]
    q.append((0, ([], "buffer_load_ushort v16, v11, s[60:63], s18 offen", "z1")))
    q.append((0, ([], "buffer_load_dwordx4 v[4:7], v13, s[24:27], s49 offen", "z1")))
    for ks in range(22):
        pre = ["s_add_u32 s42, s41, %d" % (ks * 1024)] if ks % 4 == 0 else []
        q.append((7, (pre, "buffer_load_dwordx4 a[%d:%d], v8, s[24:27], s42 offen offset:%d" % (WO + 4 * ks, WO + 4 * ks + 3, (ks % 4) * 1024), "wo")))
    for ks in range(16):
        st = ks % D
        assert not any(o[1][2] == ("z", ks) for o in q)
        if ks == 0: a("s_waitcnt lgkmcnt(0)")
        a.wait_vm(("z", ks))
        nm = 0
        for tp in range(4):
            for uu in range(6):
                acc = ACC + 24 * tp + 4 * uu
                a("v_mfma_f32_16x16x32_bf16 v[%d:%d], v[%d:%d], a[%d:%d], v[%d:%d]" % (acc, acc + 3, ZR(st) + 4 * uu, ZR(st) + 4 * uu + 3, wreg(ks) + 4 * tp, wreg(ks) + 4 * tp + 3, acc, acc + 3))
                nm += 1
                if q and q[0][0] <= ks and nm % 3 == 0: emit(q.pop(0)[1])
    for o in q: emit(o[1])
    stamp(a, 5)
    def roff(tp): return (A_OFF + (tp - 1) * 6144) if tp < 3 else SG_OFF
    a("v_add_u32 v14, s19, v8"); a("v_add_u32 v15, %d, v14" % SG_OFF)
    for tp in range(1, 4):
        for uu in range(6):
            acc = ACC + 24 * tp + 4 * uu
            a("ds_write_b128 v%d, v[%d:%d] offset:%d" % (15 if tp == 3 else 14, acc, acc + 3, (0 if tp == 3 else roff(tp)) + uu * 1024))
    for tp in range(1, 4):
        a("s_xor_b32 s21, s20, %d" % tp); a("s_lshl_b32 s22, s21, 14"); a("s_add_u32 s22, s22, %d" % roff(tp)); a("v_add_u32 v%d, s22, v8" % (28 + tp))
    a("s_mul_i32 s22, s20, 3072"); a("v_add_u32 v28, s22, v28")
    for uu in range(6): a("ds_read_b64 v[%d:%d], v28 offset:%d" % (32 + 2 * uu, 33 + 2 * uu, Z1_OFF + uu * 512))
    a.wait_vm("z1")
    a("v_lshlrev_b32 v16, 16, v16")
    for i in range(0, 24, 2): a("v_pk_add_f32 v[%d:%d], v[%d:%d], v[16:17] op_sel_hi:[1,0]" % (ACC + i, ACC + i + 1, ACC + i, ACC + i + 1))
    a("s_waitcnt lgkmcnt(0)"); a("s_barrier")
    for sidx in range(3):
        for uu in range(6):
            r = ACC + 24 + 24 * sidx + 4 * uu
            a("ds_read_b128 v[%d:%d], v%d offset:%d" % (r, r + 3, 29 + sidx, uu * 1024), tag=("r", sidx))
    a("s_lshl_b32 s16, s3, 2"); a("s_add_u32 s16, s16, s20")
    a("s_mul_i32 s17, s16, 22"); a("s_lshr_b32 s22, s8, 1"); a("s_add_u32 s17, s17, s22"); a("s_lshl_b32 s17, s17, 10"); a("s_add_u32 s17, s17, %d" % WS_V)
    a("v_add_u32 v15, -2048, v9")
    for sidx in range(3):
        a.wait_lg(("r", sidx))
        for i in range(0, 24, 2):
            r = ACC + 24 + 24 * sidx + i
            a("v_pk_add_f32 v[%d:%d], v[%d:%d], v[%d:%d]" % (ACC + i, ACC + i + 1, ACC + i, ACC + i + 1, r, r + 1))
    for i in range(12):
        g = ACC + 2 * i
        a("v_lshlrev_b32 v44, 16, v%d" % (32 + i)); a("v_and_b32 v45, 0xffff0000, v%d" % (32 + i))
        a("v_pk_mul_f32 v[%d:%d], v[%d:%d], v[44:45]" % (g, g + 1, g, g + 1))
        a("v_cvt_pk_bf16_f32 v%d, v%d, v%d" % (48 + i, g, g + 1))
        if i % 4 == 3:
            G = i // 4
            a("buffer_store_dwordx4 v[%d:%d], v%d, s[24:27], s17 offen offset:%d%s" % (48 + 4 * G, 51 + 4 * G, 15 if G == 2 else 8, (G & 1) * 1024, SS))
    for i in range(16): a("v_mov_b32 v%d, 0" % (ACC + 32 + i))
    a("v_mul_u32_u24 v2, 144, v12"); a("v_lshl_add_u32 v2, v10, 4, v2"); a("s_lshl_b32 s49, s43, 1"); a("s_add_u32 s49, s49, %d" % OST); a("v_add_u32 v18, s49, v2")
    a("v_lshrrev_b32 v2, 3, v0"); a("v_and_b32 v3, 7, v0"); a("v_mul_u32_u24 v19, 144, v2"); a("v_lshl_add_u32 v19, v3, 4, v19"); a("v_add_u32 v19, %d, v19" % OST)
    a("v_lshlrev_b32 v13, 10, v2"); a("v_lshl_add_u32 v13, v3, 4, v13")
    a("s_lshl_b32 s49, s3, 16"); a("s_lshl_b32 s50, s40, 7"); a("s_add_u32 s49, s49, s50"); a("s_add_u32 s50, s49, 32768")
    a("s_mul_i32 s51, s16, %d" % (22 * 1024)); a("s_add_u32 s51, s51, %d" % WS_V); a("s_mul_i32 s52, s20, %d" % (22 * 1024))
    a("v_add_u32 v9, %d, v8" % (44 * 1024))
    a("v_mov_b32 v2, 1"); a("v_mov_b32 v3, 0")
    a("s_waitcnt vmcnt(0)"); a("s_barrier")
    a("s_cmp_lg_u32 s20, 0"); a("s_cbranch_scc1 G2_GO")
    a("s_mov_b64 exec, 1")
    a("buffer_store_dword v2, v3, s[24:27], s47 offen" + SS)
    a("s_mov_b64 exec, -1")
    a("v_lshlrev_b32 v2, 2, v1"); a("s_mov_b32 s53, 0"); a("s_mov_b64 exec, 0xff")
    a.label("G2_POLL")
    a("buffer_load_dword v3, v2, s[24:27], s46 offen sc1")
    a("s_add_u32 s53, s53, 1")
    a("s_waitcnt vmcnt(0)")
    a("v_cmp_ne_u32 vcc, 1, v3")
    a("s_cmp_gt_u32 s53, 400000"); a("s_cbranch_scc1 G2_GO")
    a("s_cbranch_vccnz G2_POLL")
    a.label("G2_GO")
    a("s_mov_b64 exec, -1")
    a("s_barrier")
    stamp(a, 6)
    a.reset_counts()
    AC3 = ACC + 32
    CH = ((0, 6), (6, 14), (14, 22))
    for ks in range(22):
        if ks % 4 == 0: a("s_add_u32 m0, s52, %d" % (ks * 1024)); a("s_add_u32 s54, s51, %d" % (ks * 1024))
        a("buffer_load_dwordx4 v8, s[24:27], s54 offen offset:%d%s lds" % ((ks % 4) * 1024, SS), tag=("v", [i for i, (lo, hi) in enumerate(CH) if lo <= ks < hi][0]))
    def vread(ks):
        b = 32 + 16 * (ks % 3)
        return ["ds_read_b128 v[%d:%d], v%d offset:%d" % (b + 4 * tt, b + 4 * tt + 3, 9 if tt >= 2 else 8, (tt & 1) * 22 * 1024 + ks * 1024) for tt in range(4)]
    for ci, (lo, hi) in enumerate(CH):
        a.wait_vm(("v", ci)); a("s_barrier")
        for k2 in (lo, lo + 1):
            for o in vread(k2): a(o, tag=("r3", k2))
        for ks in range(lo, hi):
            nx = vread(ks + 2) if ks + 2 < hi else []
            a.wait_lg(("r3", ks))
            b = 32 + 16 * (ks % 3)
            for tt in range(4):
                acc = AC3 + 4 * tt
                a("v_mfma_f32_16x16x32_bf16 v[%d:%d], a[%d:%d], v[%d:%d], v[%d:%d]" % (acc, acc + 3, WO + 4 * ks, WO + 4 * ks + 3, b + 4 * tt, b + 4 * tt + 3, acc, acc + 3))
                if nx: a(nx[tt], tag=("r3", ks + 2))
    for tt in range(4):
        for p in range(2):
            o = AC3 + 4 * tt + 2 * p; xr = X1R + 2 * tt + p
            rnd_pk(a, o)
            a("v_pk_mul_f32 v[%d:%d], v[%d:%d], v[%d:%d]" % (o, o + 1, o, o + 1, 4 + 2 * p, 5 + 2 * p)); rnd_pk(a, o)
            a("v_lshlrev_b32 v120, 16, v%d" % xr); a("v_and_b32 v121, 0xffff0000, v%d" % xr)
            a("v_pk_add_f32 v[%d:%d], v[%d:%d], v[120:121]" % (o, o + 1, o, o + 1))
            a("v_cvt_pk_bf16_f32 v%d, v%d, v%d" % (124 + 2 * tt + p, o, o + 1))
        a("ds_write_b64 v18, v[%d:%d] offset:%d" % (124 + 2 * tt, 125 + 2 * tt, (32 * (tt >> 1) + 4 * (tt & 1)) * 144))
    a("s_waitcnt lgkmcnt(0)"); a("s_barrier")
    a("ds_read_b128 v[32:35], v19"); a("ds_read_b128 v[36:39], v19 offset:%d" % (32 * 144))
    a("s_waitcnt lgkmcnt(1)"); a("buffer_store_dwordx4 v[32:35], v13, s[64:67], s49 offen" + SC)
    a("s_waitcnt lgkmcnt(0)"); a("buffer_store_dwordx4 v[36:39], v13, s[64:67], s50 offen" + SC)
    a.label("G_END")
    endp(a, KI)
    a.label("G_CODE_END")
    return a
```

```python
from gen_common import *
import math
NC, NX, NM, NP, NW = 256, 128, 96, 88, 48
XP = 1056
O_C, O_X, O_M, O_P, O_W = 0, NC, NC + NX, NC + NX + NM, NC + NX + NM + NP
PFM = int(os.environ.get('PFM', '0'))
PRIO = int(os.environ.get('PRIO', '1'))
GRID = O_W + NW
TP = 272; BUF = 17 * TP
CSZ = 4160
UB = 8 * CSZ; USZ = 7680
XR = UB + 2 * USZ
KC = XR; KCS = 1536
LDS = KC + 2 * KCS
SC = " sc1"
SS = " sc0 sc1"
WS_ST = WS_XNT
PFF = int(os.environ.get('PFF', '0'))
PFT = (4, 5, 6, 7) if PFF else (4, 5)
KI = 0
CPF = int(os.environ.get('CPF', '0'))
PEARLY = int(os.environ.get('PEARLY', '1'))
NTK = ' nt' if int(os.environ.get('NTK', '0')) else ''
PSL = int(os.environ.get("PSL", "4"))
NT = " nt" if int(os.environ.get("NT", "1")) & 1 else ""
NTP = " nt" if int(os.environ.get("NT", "1")) & 2 else ""

def rnd_pk(a, p):
    a("v_cvt_pk_bf16_f32 v%d, v%d, v%d" % (p, p, p + 1))
    a("v_and_b32 v%d, 0xffff0000, v%d" % (p + 1, p)); a("v_lshlrev_b32 v%d, 16, v%d" % (p, p))

def signal(a, dbg, lbl, coff, foff, n):
    a("s_waitcnt vmcnt(0)")
    a("v_mov_b32 v2, 1"); a("v_mov_b32 v3, 0"); a("s_mov_b64 exec, 1")
    a("buffer_atomic_add v2, v3, s[%d:%d], 0 offen offset:%d sc0 sc1" % (dbg, dbg + 3, coff))
    a("s_waitcnt vmcnt(0)")
    a("v_cmp_eq_u32 vcc, %d, v2" % (n - 1))
    a("s_cbranch_vccz %s" % lbl)
    a("v_mov_b32 v2, 1")
    a("buffer_store_dword v2, v3, s[%d:%d], 0 offen offset:%d sc0 sc1" % (dbg, dbg + 3, foff))
    a.label(lbl)

def poll(a, dbg, lbl, va, vd, slp=2):
    a("v_lshlrev_b32 v%d, 2, v1" % va); a("s_mov_b32 s71, 0"); a("s_mov_b64 exec, 3")
    a.label(lbl)
    a("buffer_load_dword v%d, v%d, s[%d:%d], 0 offen offset:128 sc1" % (vd, va, dbg, dbg + 3))
    a("s_add_u32 s71, s71, 1")
    a("s_waitcnt vmcnt(0)")
    a("v_cmp_ne_u32 vcc, 1, v%d" % vd)
    a("s_cmp_gt_u32 s71, 400000"); a("s_cbranch_scc1 %s_X" % lbl)
    a("s_cbranch_vccz %s_X" % lbl)
    a("s_sleep %d" % slp)
    a("s_branch %s" % lbl)
    a.label(lbl + "_X")
    a("s_mov_b64 exec, -1")

def role_conv(a):
    names = ("logA", "Aim", "Cr", "Ci", "logdt", "ws", "wsp", "u", "dbg", "Dsk")
    for i, n in enumerate(names): load_ptr(a, 24 + 4 * i, n)
    a("s_sub_u32 s68, s2, %d" % O_C)
    WS, WSP, U, DBG, DSK = 44, 48, 52, 56, 60
    a("s_lshr_b32 s21, s20, 1"); a("s_and_b32 s23, s20, 1")
    a("s_and_b32 s19, s68, 7"); a("s_lshl_b32 s19, s19, 5"); a("s_lshr_b32 s6, s68, 3"); a("s_add_u32 s19, s19, s6")
    a("s_lshl_b32 s22, s19, 1"); a("s_add_u32 s22, s22, s21")
    a("s_lshl_b32 s4, s22, 8"); a("s_lshl_b32 s5, s23, 7")
    a("v_lshlrev_b32 v2, 1, v1"); a("v_add_u32 v2, s5, v2"); a("v_xor_b32 v3, 128, v2")
    a("s_lshl_b32 s6, s22, 1"); a("v_mov_b32 v4, s6")
    a("s_waitcnt lgkmcnt(0)")
    for i, n in enumerate(names): make_srd(a, 24 + 4 * i, n)
    a("buffer_load_ushort v10, v4, s[40:43], 0 offen")
    a("buffer_load_ushort v11, v2, s[24:27], s4 offen" + NTK); a("buffer_load_ushort v12, v2, s[28:31], s4 offen" + NTK)
    a("buffer_load_ushort v13, v2, s[32:35], s4 offen" + NTK); a("buffer_load_ushort v14, v2, s[36:39], s4 offen" + NTK)
    a("buffer_load_ushort v15, v3, s[32:35], s4 offen" + NTK); a("buffer_load_ushort v16, v3, s[36:39], s4 offen" + NTK)
    a("buffer_load_ushort v49, v4, s[%d:%d], 0 offen" % (DSK, DSK + 3))
    a("v_mov_b32 v56, -1"); a("v_mov_b32 v57, -1"); a("v_lshlrev_b32 v58, 3, v1")
    a("s_lshl_b32 s16, s68, 9"); a("s_add_u32 s16, s16, %d" % WS_ZST)
    a("buffer_store_dwordx2 v[56:57], v58, s[%d:%d], s16 offen%s" % (WS, WS + 3, SC))
    NAFTER = 1
    a("s_mul_i32 s7, s20, %d" % (2 * BUF))
    a("v_lshl_add_u32 v5, v1, 2, s7")
    a("v_and_b32 v6, 15, v1"); a("v_lshrrev_b32 v7, 4, v1")
    a("v_lshl_add_u32 v9, v7, 4, s7"); a("v_mul_u32_u24 v8, %d, v6" % TP); a("v_add_u32 v8, v8, v9")
    for i in range(16): a("v_mov_b32 v%d, 0" % (92 + i))
    a("s_mul_i32 s15, s21, %d" % KCS); a("s_add_u32 s15, s15, %d" % (KC + 16))
    a("v_mov_b32 v55, s15"); a("v_subrev_u32 v55, 8, v55"); a("ds_write_b64 v55, v[92:93]")
    a("v_lshlrev_b32 v22, 7, v7"); a("v_lshl_add_u32 v22, v6, 3, v22"); a("v_add_u32 v22, s15, v22")
    a("v_cmp_gt_u32 vcc, 2, v7")
    a("v_lshlrev_b32 v23, 1, v6"); a("v_lshlrev_b32 v24, 2, v6"); a("v_cndmask_b32 v23, v23, v24, vcc")
    a("v_lshl_add_u32 v23, v7, 7, v23"); a("v_add_u32 v23, s15, v23")
    a("v_mov_b32 v24, 32"); a("v_cndmask_b32 v24, v24, 2, vcc"); a("v_add_u32 v24, v24, v23")
    a("v_lshlrev_b32 v25, 6, v7"); a("v_add_u32 v25, v25, v6"); a("v_add_u32 v25, s15, v25")
    a("v_add_u32 v26, s15, v6")
    a("s_lshl_b32 s16, s23, 6"); a("v_add_u32 v29, s16, v1")
    a("v_lshlrev_b32 v60, 4, v29"); a("v_sub_u32 v60, 2047, v60"); a("v_cvt_f32_u32 v61, v60"); a("v_lshl_add_u32 v60, v60, 1, s15")
    a("s_add_u32 s16, s15, 256"); a("s_sub_u32 s17, s15, 0x8500")
    for k in range(0, 20, 2):
        a("v_subrev_f32 v62, %s, v61" % fl(float(k))); a("v_subrev_f32 v63, %s, v61" % fl(float(k + 1)))
        if k >= 16: a("v_max_f32 v62, 0, v62"); a("v_max_f32 v63, 0, v63")
        a("v_cvt_pk_bf16_f32 v62, v62, v63")
        a("v_lshrrev_b32 v63, 16, v62"); a("v_and_b32 v62, 0xffff, v62")
        a("v_lshl_add_u32 v62, v62, 1, s17"); a("v_subrev_u32 v64, %d, v60" % (2 * k)); a("v_med3_i32 v%d, v62, v64, s16" % (108 + k))
        if k < 18:
            a("v_lshl_add_u32 v63, v63, 1, s17"); a("v_subrev_u32 v64, %d, v60" % (2 * k + 2)); a("v_med3_i32 v%d, v63, v64, s16" % (109 + k))
    a("s_mul_i32 s14, s21, %d" % (4 * CSZ)); a("v_lshl_add_u32 v29, v29, 5, s14")
    a("v_lshlrev_b32 v18, 4, v1")
    a("v_add_u32 v27, s7, v18"); a("s_xor_b32 s18, s20, 1"); a("s_mul_i32 s18, s18, %d" % (2 * BUF)); a("v_add_u32 v28, s18, v18")
    a("s_waitcnt vmcnt(%d)" % (NAFTER + 5))
    stamp(a, 1)
    for r in (10, 11, 12): a("v_lshlrev_b32 v%d, 16, v%d" % (r, r))
    exp_acc(a, 10, 10, 20, 21); bf16r(a, 10, 10)
    exp_acc(a, 11, 11, 20, 21); bf16r(a, 11, 11)
    a("v_mul_f32 v11, v11, v10"); a("v_mul_f32 v12, v12, v10")
    a("v_mul_f32 v11, %s, v11" % fl(-LOG2E)); a("v_mul_f32 v12, %s, v12" % fl(1.0 / (2 * math.pi)))
    def direct(dst, p):
        t0, t1 = 20, 21
        if p == 1:
            a("v_exp_f32 v%d, v11" % t0); a("v_fract_f32 v%d, v12" % t1)
        else:
            a("v_mul_f32 v%d, %s, v11" % (t0, fl(float(p)))); a("v_mul_f32 v%d, %s, v12" % (t1, fl(float(p))))
            a("v_exp_f32 v%d, v%d" % (t0, t0)); a("v_fract_f32 v%d, v%d" % (t1, t1))
        a("v_cos_f32 v%d, v%d" % (dst, t1)); a("v_sin_f32 v%d, v%d" % (dst + 1, t1))
        a("v_mul_f32 v%d, v%d, v%d" % (dst, dst, t0)); a("v_mul_f32 v%d, v%d, v%d" % (dst + 1, dst + 1, t0))
    W1, W2, W3, W4, W64, W1K = 30, 32, 34, 36, 38, 40
    direct(W1, 1); direct(W4, 4); direct(W64, 64); direct(W1K, 1024)
    cmul(a, W2, W1, W1); cmul(a, W3, W2, W1)
    a("s_waitcnt vmcnt(%d)" % NAFTER)
    a("v_and_b32 v17, 0x7fff, v13"); a("v_and_b32 v19, 0x7fff, v14"); a("v_and_b32 v15, 0x7fff, v15"); a("v_and_b32 v16, 0x7fff, v16")
    a("v_max3_u32 v17, v17, v19, v15"); a("v_max_u32 v17, v17, v16")
    for sh in (1, 2, 4, 8): a("v_max_u32_dpp v17, v17, v17 row_shr:%d row_mask:0xf bank_mask:0xf" % sh)
    a("v_max_u32_dpp v17, v17, v17 row_bcast:15 row_mask:0xa bank_mask:0xf")
    a("v_max_u32_dpp v17, v17, v17 row_bcast:31 row_mask:0xc bank_mask:0xf")
    a("v_readlane_b32 s8, v17, 63")
    a("s_lshl_b32 s8, s8, 16"); a("s_and_b32 s8, s8, 0x7f800000"); a("s_min_u32 s8, s8, 0x7e800000"); a("s_sub_u32 s9, 0x7f000000, s8")
    P0, P1, T0 = 42, 44, 46
    a("v_lshlrev_b32 v13, 16, v13"); a("v_lshlrev_b32 v14, 16, v14")
    a("v_mul_f32 v%d, s9, v13" % P0); a("v_mul_f32 v%d, s9, v14" % (P0 + 1))
    a("v_mul_f32 v48, s8, v10"); a("v_add_f32 v48, v48, v48")
    tcnt = [0]
    def put(src, buf, row, neg=False):
        t = 50 + (tcnt[0] % 8); tcnt[0] += 1
        a("v_cvt_pk_f16_f32 v%d, v%d, %sv%d" % (t, src, "-" if neg else "", src + 1))
        a("ds_write_b32 v5, v%d offset:%d" % (t, buf * BUF + row * TP))
    def frags(dst, buf, addr=8, rowoff=0):
        for ks in range(4): a("ds_read_b128 v[%d:%d], v%d offset:%d" % (dst + 4 * ks, dst + 4 * ks + 3, addr, buf * BUF + rowoff * TP + ks * 64))
    def mm(tile, src):
        a("s_waitcnt lgkmcnt(0)")
        for ks in range(4):
            a("v_mfma_f32_16x16x32_f16 v[%d:%d], v[%d:%d], v[%d:%d], v[%d:%d]" % (92 + 4 * tile, 95 + 4 * tile, src + 4 * ks, src + 4 * ks + 3, 60 + 4 * ks, 63 + 4 * ks, 92 + 4 * tile, 95 + 4 * tile))
    cur, nxt = P0, P1
    for j in range(16):
        put(cur, 0, j, neg=True)
        if j < 15: cmul(a, nxt, cur, W4); cur, nxt = nxt, cur
    frags(60, 0)
    a("v_mov_b32 v%d, 1.0" % P0); a("v_mov_b32 v%d, 0" % (P0 + 1))
    cur = P0
    for i1 in range(4):
        put(cur, 1, 4 * i1)
        for r, W in enumerate((W1, W2, W3)):
            if i1 == 0: put(W, 1, 1 + r)
            else: cmul(a, T0, cur, W); put(T0, 1, 4 * i1 + 1 + r)
        if i1 == 0: cur = W64
        else:
            d = P0 if cur != P0 else P1
            cmul(a, d, cur, W64); cur = d
    frags(76, 1)
    for k in range(12):
        if k < 4:
            put(cur, 0, 2 * k); cmul(a, T0, cur, W2); put(T0, 0, 2 * k + 1)
        else: put(cur, 0, 8 + k - 4)
        if k == 1: mm(0, 76)
        if k < 11:
            d = P0 if cur != P0 else P1
            cmul(a, d, cur, W64); cur = d
    frags(76, 0)
    cur = W1K
    for k in range(17):
        put(cur, 1, k)
        if k == 2: mm(1, 76)
        if k < 16:
            d = P0 if cur != P0 else P1
            cmul(a, d, cur, W64); cur = d
    frags(76, 1); frags(30, 1, addr=9, rowoff=16)
    mm(2, 76); mm(3, 30)
    a("s_cmp_eq_u32 s23, 0"); a("s_cbranch_scc0 KG_H1")
    for hh in range(2):
        snd, keep = (100, 92) if hh == 0 else (92, 100)
        if hh: a.label("KG_H1")
        a("ds_write_b128 v27, v[%d:%d]" % (snd, snd + 3)); a("ds_write_b128 v27, v[%d:%d] offset:1024" % (snd + 4, snd + 7))
        a("s_waitcnt lgkmcnt(0)"); a("s_barrier")
        a("ds_read_b128 v[60:63], v28"); a("ds_read_b128 v[64:67], v28 offset:1024")
        a("s_waitcnt lgkmcnt(0)")
        for i in range(0, 8, 2): a("v_pk_add_f32 v[%d:%d], v[%d:%d], v[%d:%d]" % (60 + i, 61 + i, 60 + i, 61 + i, keep + i, keep + i + 1))
        for i in range(4): a("v_cvt_pk_f16_f32 v%d, v%d, v%d" % (68 + i, 60 + 2 * i, 61 + 2 * i))
        if hh == 0:
            a("ds_write_b64 v22, v[68:69]")
            a("ds_write_b16 v23, v70 offset:512"); a("ds_write_b16_d16_hi v24, v70 offset:512"); a("ds_write_b16 v23, v71 offset:576"); a("ds_write_b16_d16_hi v24, v71 offset:576")
            a("s_branch KG_G")
        else:
            a("s_mov_b32 exec_lo, 0x55555555"); a("s_mov_b32 exec_hi, 0x55555555")
            a("ds_write_b16 v25, v68 offset:1024"); a("ds_write_b16_d16_hi v25, v68 offset:1040"); a("ds_write_b16 v25, v69 offset:1056"); a("ds_write_b16_d16_hi v25, v69 offset:1072")
            a("ds_write_b16 v26, v70 offset:1280")
            a("s_mov_b64 exec, -1")
    a.label("KG_G")
    a("s_waitcnt lgkmcnt(0)"); a("s_barrier")
    for k in range(19): a("ds_read_u16 v%d, v%d" % (108 + k, 108 + k))
    for i in range(4): a("v_mov_b32 v%d, 0" % (32 + i))
    a("v_lshrrev_b32 v36, 7, v0"); a("v_mul_u32_u24 v36, %d, v36" % USZ)
    a("v_and_b32 v37, 127, v0"); a("v_add_u32 v38, 128, v37"); a("v_min_u32 v38, 154, v38")
    a("v_lshl_add_u32 v37, v37, 4, v36"); a("v_lshl_add_u32 v38, v38, 4, v36")
    a("v_bfe_u32 v36, v0, 2, 3"); a("v_mul_u32_u24 v36, %d, v36" % CSZ); a("v_and_b32 v39, 3, v0"); a("v_lshl_add_u32 v36, v39, 4, v36")
    a("s_waitcnt lgkmcnt(0)")
    a("ds_write_b128 v37, v[32:35] offset:%d" % UB); a("ds_write_b128 v38, v[32:35] offset:%d" % UB); a("ds_write_b128 v36, v[32:35] offset:4096")
    E, O = 60, 70
    for k in range(9): a("v_lshl_or_b32 v%d, v%d, 16, v%d" % (E + k, 109 + 2 * k, 108 + 2 * k))
    for k in range(9): a("v_lshl_or_b32 v%d, v%d, 16, v%d" % (O + k, 110 + 2 * k, 109 + 2 * k))
    for cp, R in ((0, E), (1, O)):
        a("ds_write_b128 v29, v[%d:%d] offset:%d" % (R, R + 3, cp * CSZ)); a("ds_write_b128 v29, v[%d:%d] offset:%d" % (R + 4, R + 7, cp * CSZ + 16))
    a("v_add_u32 v36, %d, v29" % (2 * CSZ)); a("v_add_u32 v37, %d, v29" % (3 * CSZ))
    for ad, R in ((36, E), (37, O)):
        for k in range(4): a("ds_write2_b32 v%d, v%d, v%d offset0:%d offset1:%d" % (ad, R + 1 + 2 * k, R + 2 + 2 * k, 2 * k, 2 * k + 1))
    a("v_lshlrev_b32 v2, 4, v1")
    a("v_and_b32 v4, 31, v1"); a("v_lshrrev_b32 v5, 5, v1")
    a("v_and_b32 v28, 3, v4"); a("v_sub_u32 v28, 3, v28"); a("v_mul_u32_u24 v28, %d, v28" % CSZ)
    a("v_lshrrev_b32 v29, 2, v4"); a("v_lshlrev_b32 v29, 3, v29"); a("v_sub_u32 v28, v28, v29"); a("v_lshl_add_u32 v28, v5, 4, v28")
    a("s_lshl_b32 s17, s23, 5"); a("s_add_u32 s16, s14, s17"); a("s_add_u32 s16, s16, 56"); a("v_add_u32 v28, s16, v28")
    a("v_mul_u32_u24 v29, 80, v4"); a("v_lshl_add_u32 v30, v5, 4, v29")
    a("s_mul_i32 s18, s21, %d" % USZ); a("s_add_u32 s16, s18, s17"); a("s_add_u32 s16, s16, %d" % UB); a("v_add_u32 v30, s16, v30")
    a("v_lshl_add_u32 v31, v5, 3, v29"); a("s_mul_i32 s16, s23, 2560"); a("s_add_u32 s16, s16, s18"); a("s_add_u32 s16, s16, %d" % (UB + 31 * 80)); a("v_add_u32 v31, s16, v31")
    a("v_lshlrev_b32 v88, 8, v4"); a("v_lshl_add_u32 v88, v5, 3, v88")
    a("v_lshrrev_b32 v32, 3, v0"); a("v_mul_u32_u24 v32, 80, v32"); a("v_bfe_u32 v33, v0, 1, 2"); a("v_lshl_add_u32 v32, v33, 4, v32")
    a("v_and_b32 v33, 1, v0"); a("v_mul_u32_u24 v34, %d, v33" % USZ); a("v_add_u32 v32, v32, v34")
    a("v_cmp_eq_u32 s[64:65], 1, v33")
    a("v_lshrrev_b32 v3, 1, v0"); a("v_lshlrev_b32 v3, 6, v3"); a("v_lshl_add_u32 v3, v33, 4, v3")
    a("s_lshr_b32 s10, s19, 1"); a("s_lshl_b32 s10, s10, 14"); a("s_and_b32 s11, s19, 1"); a("s_lshl_b32 s11, s11, 5"); a("s_add_u32 s10, s10, s11")
    a("s_add_u32 s11, s10, %d" % WS_XT); a("s_add_u32 s10, s10, %d" % WS_XT)
    a("v_lshrrev_b32 v6, 1, v0"); a("v_lshlrev_b32 v6, 5, v6"); a("s_mov_b32 s9, %d" % WS_ST); a("s_mov_b32 s8, %d" % (WS_ST + 4096))
    a("s_lshl_b32 s13, s23, 13"); a("s_add_u32 s11, s11, s13"); a("s_lshl_b32 s13, s21, 4"); a("s_add_u32 s11, s11, s13")
    a("v_lshrrev_b32 v36, 2, v1"); a("v_lshlrev_b32 v36, 11, v36"); a("v_and_b32 v37, 3, v1"); a("v_mul_u32_u24 v37, 12288, v37"); a("v_add_u32 v36, v36, v37")
    a("s_lshl_b32 s12, s19, 3"); a("s_add_u32 s12, s12, %d" % WS_MODP)
    if PFF:
        a("s_bfe_u32 s66, s68, 0x20001"); a("s_lshl_b32 s66, s66, 9"); a("s_lshr_b32 s67, s68, 3"); a("s_lshl_b32 s67, s67, 4"); a("s_add_u32 s66, s66, s67")
        a("s_lshl_b32 s67, s20, 2"); a("s_add_u32 s66, s66, s67"); a("s_lshl_b32 s66, s66, 12")
    else:
        a("s_and_b32 s66, s68, 7"); a("s_lshl_b32 s66, s66, 8"); a("s_lshr_b32 s67, s68, 3"); a("s_lshl_b32 s67, s67, 3"); a("s_add_u32 s66, s66, s67")
        a("s_lshl_b32 s67, s20, 1"); a("s_add_u32 s66, s66, s67"); a("s_lshl_b32 s66, s66, 12")
    a("v_lshlrev_b32 v92, 6, v1")
    for i in range(32): a("v_mov_b32 v%d, 0" % (96 + i))
    stamp(a, 2)
    npre = {0: 0, 1: 1, 2: 2}.get(PFM, 0)
    a("s_cmp_eq_u32 s20, 0"); a("s_cbranch_scc1 CV_P0")
    for _ in range(npre): a("buffer_load_dword v93, v92, s[%d:%d], s66 offen%s" % (WSP, WSP + 3, NTP)); a("s_add_u32 s66, s66, 4096")
    a("s_branch CV_W")
    a.label("CV_P0")
    poll(a, DBG, "CV_POLL", 38, 39)
    for _ in range(npre): a("buffer_load_dword v93, v92, s[%d:%d], s66 offen%s" % (WSP, WSP + 3, NTP)); a("s_add_u32 s66, s66, 4096")
    a.label("CV_W")
    a("s_waitcnt lgkmcnt(0)"); a("s_barrier")
    stamp(a, 3)
    a("s_mov_b64 exec, 0xfff")
    a("buffer_load_dwordx2 v[38:39], v36, s[%d:%d], s12 offen%s" % (WS, WS + 3, SS))
    a("s_mov_b64 exec, -1")
    a("buffer_load_dwordx4 v[8:11], v3, s[%d:%d], s10 offen%s" % (WS, WS + 3, SS))
    a("buffer_load_dwordx4 v[52:55], v6, s[%d:%d], s9 offen%s" % (WS, WS + 3, SS)); a("buffer_load_dwordx4 v[56:59], v6, s[%d:%d], s9 offen offset:16%s" % (WS, WS + 3, SS))
    a("s_add_u32 s10, s10, 8192")
    a("buffer_load_dwordx4 v[12:15], v3, s[%d:%d], s10 offen%s" % (WS, WS + 3, SS))
    a("buffer_load_dwordx4 v[60:63], v6, s[%d:%d], s8 offen%s" % (WS, WS + 3, SS)); a("buffer_load_dwordx4 v[64:67], v6, s[%d:%d], s8 offen offset:16%s" % (WS, WS + 3, SS))
    a("s_waitcnt vmcnt(6)")
    for r in (38, 39):
        a("v_add_f32_dpp v%d, v%d, v%d quad_perm:[1,0,3,2] row_mask:0xf bank_mask:0xf" % (r, r, r))
        a("v_add_f32_dpp v%d, v%d, v%d quad_perm:[2,3,0,1] row_mask:0xf bank_mask:0xf" % (r, r, r))
    rnd_pk(a, 38)
    for sec in range(3):
        for c in range(2): a("v_readlane_b32 s%d, v%d, %d" % (72 + 2 * sec + c, 38 + c, 4 * sec))
    a("v_mov_b32 v40, s74"); a("v_mov_b32 v41, s75"); a("v_mov_b32 v42, s72"); a("v_mov_b32 v43, s73")
    a("v_pk_add_f32 v[40:41], v[40:41], 1.0 op_sel_hi:[1,0]"); rnd_pk(a, 40)
    for c in range(2):
        a("v_mul_f32 v%d, %s, v%d" % (44 + c, fl(23.0), 40 + c)); a("v_add_f32 v%d, abs(v%d), abs(v%d)" % (44 + c, 44 + c, 42 + c))
        a("v_and_b32 v%d, 0x7f800000, v%d" % (44 + c, 44 + c)); a("v_max_u32 v%d, 0x%x, v%d" % (44 + c, 14 << 23, 44 + c)); a("v_min_u32 v%d, 0x7f000000, v%d" % (44 + c, 44 + c))
        a("v_sub_u32 v%d, 0x%x, v%d" % (46 + c, 267 << 23, 44 + c)); a("v_subrev_u32 v%d, 0x%x, v%d" % (44 + c, 13 << 23, 44 + c))
    a("v_pk_mul_f32 v[40:41], v[40:41], v[46:47]"); a("v_pk_mul_f32 v[42:43], v[42:43], v[46:47]")
    a("s_cmp_eq_u32 s21, 0"); a("s_cselect_b64 vcc, -1, 0"); a("s_cselect_b32 s28, s76, s77")
    a("v_cndmask_b32 v44, v45, v44, vcc"); a("v_lshlrev_b32 v49, 16, v49")
    a("v_mul_f32 v48, v48, v44"); a("v_mul_f32 v49, v49, v44")
    a("v_readfirstlane_b32 s24, v48"); a("v_readfirstlane_b32 s26, v49")
    a("v_cndmask_b32 v40, v40, v41, s[64:65]"); a("v_cndmask_b32 v42, v42, v43, s[64:65]")
    for i in range(2):
        a("s_waitcnt vmcnt(%d)" % (3 - 3 * i))
        for q in range(4):
            w = 8 + 4 * i + q; p = 70 + 2 * (q & 1); st = 52 + 8 * i + 2 * q
            a("v_and_b32 v76, 0xffff0000, v%d" % st); a("v_and_b32 v77, 0xffff0000, v%d" % (st + 1)); a("v_rcp_f32 v76, v76"); a("v_rcp_f32 v77, v77")
            a("v_lshlrev_b32 v74, 16, v%d" % st); a("v_lshlrev_b32 v75, 16, v%d" % (st + 1))
            a("v_lshlrev_b32 v%d, 16, v%d" % (p, w)); a("v_and_b32 v%d, 0xffff0000, v%d" % (p + 1, w))
            a("v_pk_add_f32 v[%d:%d], v[%d:%d], v[74:75] neg_lo:[0,1] neg_hi:[0,1]" % (p, p + 1, p, p + 1)); rnd_pk(a, p)
            a("v_pk_mul_f32 v[%d:%d], v[%d:%d], v[76:77]" % (p, p + 1, p, p + 1)); rnd_pk(a, p)
            a("v_pk_mul_f32 v[%d:%d], v[%d:%d], v[40:41] op_sel_hi:[1,0]" % (p, p + 1, p, p + 1)); rnd_pk(a, p)
            a("v_pk_add_f32 v[%d:%d], v[%d:%d], v[42:43] op_sel_hi:[1,0]" % (p, p + 1, p, p + 1)); rnd_pk(a, p)
            a("v_cvt_pk_f16_f32 v%d, v%d, v%d" % (w, p, p + 1))
        a("ds_write_b128 v32, v[%d:%d] offset:%d" % (8 + 4 * i, 11 + 4 * i, UB + 31 * 80 + i * 2560))
    a("s_waitcnt lgkmcnt(0)"); a("s_barrier")
    stamp(a, 4)
    a.reset_counts()
    def loads(t):
        b = 40 + 16 * (t % 3); ops = []
        for j, m in enumerate((t, t + 32)):
            off = 4032 - 64 * m
            ops.append("ds_read_b64 v[%d:%d], v28 offset:%d" % (b + 4 * j, b + 4 * j + 1, off))
            ops.append("ds_read_b64 v[%d:%d], v28 offset:%d" % (b + 4 * j + 2, b + 4 * j + 3, off + 8))
        ops.append("ds_read_b128 v[%d:%d], v30 offset:%d" % (b + 8, b + 11, (31 - t) * 80))
        ops.append("ds_read_b128 v[%d:%d], v30 offset:%d" % (b + 12, b + 15, (63 - t) * 80))
        return ops
    for t in range(2):
        for o in loads(t): a(o, tag=("c", t))
    for t in range(32):
        nx = loads(t + 2) if t + 2 < 32 else []
        a.wait_lg(("c", t))
        b = 40 + 16 * (t % 3)
        ms = ["v_mfma_f32_32x32x16_f16 v[96:111], v[%d:%d], v[%d:%d], v[96:111]" % (b, b + 3, b + 8, b + 11),
              "v_mfma_f32_32x32x16_f16 v[112:127], v[%d:%d], v[%d:%d], v[112:127]" % (b, b + 3, b + 12, b + 15),
              "v_mfma_f32_32x32x16_f16 v[112:127], v[%d:%d], v[%d:%d], v[112:127]" % (b + 4, b + 7, b + 8, b + 11)]
        for i, m in enumerate(ms):
            a(m)
            for o in nx[2 * i: 2 * i + 2]: a(o, tag=("c", t + 2))
        if t < 4: a("buffer_load_dwordx2 v[%d:%d], v88, s[%d:%d], s11 offen offset:%d%s" % (16 + 2 * t, 17 + 2 * t, WS, WS + 3, t * 64, SS))
        if t in PFT[npre:] and PFM < 3:
            a("buffer_load_dword v93, v92, s[%d:%d], s66 offen%s" % (WSP, WSP + 3, NTP)); a("s_add_u32 s66, s66, 4096")
        if t == 30:
            for q in range(4): a("ds_read_b64 v[%d:%d], v31 offset:%d" % (32 + 2 * q, 33 + 2 * q, 16 * q))
    stamp(a, 5)
    a("s_lshl_b32 s16, s20, 12"); a("v_add_u32 v24, s16, v2"); a("v_xor_b32 v25, 4096, v24")
    a("v_lshrrev_b32 v7, 3, v1"); a("v_lshlrev_b32 v7, 16, v7"); a("v_and_b32 v26, 7, v1"); a("v_lshl_add_u32 v7, v26, 4, v7")
    a("s_lshl_b32 s17, s20, 11"); a("s_add_u32 s17, s17, 16384"); a("v_lshlrev_b32 v26, 6, v4"); a("v_lshl_add_u32 v26, v5, 5, v26"); a("v_add_u32 v26, s17, v26"); a("v_add_u32 v27, s17, v2")
    a("s_lshl_b32 s15, s23, 20"); a("s_lshl_b32 s16, s22, 7"); a("s_add_u32 s15, s15, s16"); a("s_add_u32 s15, s15, %d" % WS_X1T)
    a("s_waitcnt lgkmcnt(0)"); a("s_barrier")
    a("s_cmp_eq_u32 s23, 0"); a("s_cbranch_scc0 CV_H1")
    for hh in range(2):
        snd, keep = (112, 96) if hh == 0 else (96, 112)
        if hh == 1: a.label("CV_H1")
        for q in range(4): a("ds_write_b128 v24, v[%d:%d] offset:%d" % (snd + 4 * q, snd + 4 * q + 3, q * 1024))
        for k in range(8):
            t = 60 + 2 * k; hreg = 32 + k
            a("v_cvt_f32_f16 v%d, v%d" % (t, hreg)); a("v_cvt_f32_f16_sdwa v%d, v%d dst_sel:DWORD dst_unused:UNUSED_PAD src0_sel:WORD_1" % (t + 1, hreg))
            a("v_pk_mul_f32 v[%d:%d], v[%d:%d], s[26:27] op_sel_hi:[1,0]" % (t, t + 1, t, t + 1)); rnd_pk(a, t)
        a("s_waitcnt lgkmcnt(0)"); a("s_barrier")
        for q in range(4): a("ds_read_b128 v[%d:%d], v25 offset:%d" % (40 + 4 * q, 43 + 4 * q, q * 1024))
        a("s_waitcnt vmcnt(%d)" % (0 if PFM >= 3 else len(PFT) - npre))
        for i in range(8): a("v_lshlrev_b32 v%d, 16, v%d" % (snd + 2 * i, 16 + i)); a("v_and_b32 v%d, 0xffff0000, v%d" % (snd + 2 * i + 1, 16 + i))
        for i in range(0, 16, 2): a("v_mov_b64 v[%d:%d], v[%d:%d]" % (8 + i, 9 + i, snd + i, snd + i + 1))
        a("s_waitcnt lgkmcnt(0)")
        for i in range(0, 16, 2): a("v_pk_add_f32 v[%d:%d], v[%d:%d], v[%d:%d]" % (40 + i, 41 + i, 40 + i, 41 + i, keep + i, keep + i + 1))
        if hh == 0: a("s_branch CV_EP")
    a.label("CV_EP")
    for k in range(8):
        y = 40 + 2 * k; t = 60 + 2 * k
        a("v_pk_mul_f32 v[%d:%d], v[%d:%d], s[24:25] op_sel_hi:[1,0]" % (y, y + 1, y, y + 1)); rnd_pk(a, y)
        a("v_pk_add_f32 v[%d:%d], v[%d:%d], v[%d:%d]" % (y, y + 1, y, y + 1, t, t + 1)); rnd_pk(a, y)
        a("v_pk_mul_f32 v[%d:%d], v[%d:%d], s[28:29] op_sel_hi:[1,0]" % (y, y + 1, y, y + 1)); rnd_pk(a, y)
        a("v_pk_add_f32 v[%d:%d], v[%d:%d], v[%d:%d]" % (y, y + 1, y, y + 1, 8 + 2 * k, 9 + 2 * k))
        a("v_cvt_pk_bf16_f32 v%d, v%d, v%d" % (80 + k, y, y + 1))
        if k == 3: a("ds_write_b128 v26, v[80:83]")
    a("ds_write_b128 v26, v[84:87] offset:16")
    a("ds_read_b128 v[80:83], v27"); a("ds_read_b128 v[84:87], v27 offset:1024")
    a("s_add_u32 s16, s15, %d" % (8 * 65536))
    a("s_waitcnt lgkmcnt(1)"); a("buffer_store_dwordx4 v[80:83], v7, s[%d:%d], s15 offen%s" % (WS, WS + 3, SC))
    a("s_waitcnt lgkmcnt(0)"); a("buffer_store_dwordx4 v[84:87], v7, s[%d:%d], s16 offen%s" % (WS, WS + 3, SC))
    endp(a, KI)

def reduce4(a, r):
    a("v_permlane32_swap_b32 v%d, v%d" % (r[0], r[2])); a("v_permlane32_swap_b32 v%d, v%d" % (r[1], r[3]))
    a("v_add_f32 v%d, v%d, v%d" % (r[0], r[0], r[2])); a("v_add_f32 v%d, v%d, v%d" % (r[1], r[1], r[3]))
    a("v_permlane16_swap_b32 v%d, v%d" % (r[0], r[1])); a("v_add_f32 v%d, v%d, v%d" % (r[0], r[0], r[1]))
    for sh in (1, 2, 4, 8): a("v_add_f32_dpp v%d, v%d, v%d row_shr:%d row_mask:0xf bank_mask:0xf" % (r[0], r[0], r[0], sh))

def role_x(a):
    a.reset_counts()
    if PRIO: a("s_setprio 3")
    for i, n in enumerate(("u", "ws", "dbg", "wsp")): load_ptr(a, 24 + 4 * i, n)
    a("s_sub_u32 s3, s2, %d" % O_X)
    a("s_lshl_b32 s4, s3, 2"); a("s_add_u32 s4, s4, s20"); a("s_lshl_b32 s4, s4, 12")
    a("v_lshlrev_b32 v2, 4, v1")
    a("s_waitcnt lgkmcnt(0)")
    for i, n in enumerate(("u", "ws", "dbg", "wsp")): make_srd(a, 24 + 4 * i, n)
    for r in range(4):
        a("buffer_load_dwordx4 v[%d:%d], v2, s[24:27], s4 offen offset:%d%s" % (32 + 4 * r, 35 + 4 * r, r * 1024, NT), tag=r)
    a("s_mul_i32 s5, s20, %d" % (4 * XP)); a("v_add_u32 v3, s5, v2")
    a("v_mov_b32 v4, 0x3f803f80")
    a("v_lshrrev_b32 v5, 4, v1"); a("v_bfe_u32 v6, v1, 2, 2"); a("v_and_b32 v7, 3, v1")
    a("v_and_b32 v8, 1, v5"); a("v_lshl_add_u32 v8, v8, 3, v6"); a("v_mul_u32_u24 v8, %d, v8" % XP)
    a("v_lshl_add_u32 v8, v7, 3, v8"); a("v_lshrrev_b32 v9, 1, v5"); a("v_lshl_add_u32 v8, v9, 5, v8")
    a("s_lshl_b32 s6, s20, 8"); a("v_add_u32 v26, s6, v8")
    a("v_and_b32 v10, 15, v1"); a("v_lshl_add_u32 v10, v9, 4, v10")
    a("v_lshrrev_b32 v11, 2, v10"); a("v_lshlrev_b32 v11, 14, v11"); a("v_and_b32 v10, 3, v10"); a("v_lshl_add_u32 v11, v10, 4, v11")
    a("v_and_b32 v10, 1, v5"); a("v_lshl_add_u32 v27, v10, 6, v11")
    a("s_lshl_b32 s7, s20, 19"); a("s_lshl_b32 s8, s3, 7"); a("s_add_u32 s7, s7, s8")
    for r in range(4):
        a.wait_vm(r)
        a("ds_write_b128 v3, v[%d:%d] offset:%d" % (32 + 4 * r, 35 + 4 * r, r * XP))
    stamp(a, 1)
    for r in range(4):
        a("v_dot2_f32_bf16 v%d, v%d, v4, 0" % (8 + r, 32 + 4 * r))
        for q in range(1, 4): a("v_dot2_f32_bf16 v%d, v%d, v4, v%d" % (8 + r, 32 + 4 * r + q, 8 + r))
    a("s_waitcnt lgkmcnt(0)"); a("s_barrier")
    for it in range(4):
        b = 96 + 4 * it
        a("ds_read_b64_tr_b16 v[%d:%d], v26 offset:%d" % (b, b + 1, it * 64), tag=("x", it))
        a("ds_read_b64_tr_b16 v[%d:%d], v26 offset:%d" % (b + 2, b + 3, it * 64 + 4 * XP), tag=("x", it))
    R = [8, 9, 10, 11]
    reduce4(a, R)
    for it in range(4):
        b = 96 + 4 * it
        a("s_add_u32 s9, s7, %d" % (WS_XT + it * 16 * 8192))
        a.wait_lg(("x", it))
        a("buffer_store_dwordx4 v[%d:%d], v27, s[28:31], s9 offen%s" % (b, b + 3, SS))
    a("v_mul_f32 v16, %s, v8" % fl(1 / 512.))
    for r in range(4): a("v_readlane_b32 s%d, v16, %d" % (40 + 2 * r, 15 + 16 * r))
    for r in range(4):
        for q in range(4):
            w = 32 + 4 * r + q
            a("v_lshlrev_b32 v20, 16, v%d" % w); a("v_and_b32 v21, 0xffff0000, v%d" % w)
            a("v_pk_add_f32 v[20:21], v[20:21], s[%d:%d] op_sel_hi:[1,0] neg_lo:[0,1] neg_hi:[0,1]" % (40 + 2 * r, 41 + 2 * r))
            if q == 0: a("v_pk_mul_f32 v[22:23], v[20:21], v[20:21]")
            else: a("v_pk_fma_f32 v[22:23], v[20:21], v[20:21], v[22:23]")
        a("v_add_f32 v%d, v22, v23" % (8 + r))
    reduce4(a, R)
    a("v_mul_f32 v8, %s, v8" % fl(1 / 512.)); bf16r(a, 8, 8)
    a("v_add_f32 v8, %s, v8" % fl(1e-5)); bf16r(a, 8, 8)
    a("v_sqrt_f32 v8, v8"); a("v_cvt_pk_bf16_f32 v8, v16, v8")
    a("v_lshlrev_b32 v9, 2, v5"); a("s_lshl_b32 s9, s3, 6"); a("s_lshl_b32 s10, s20, 4"); a("s_add_u32 s9, s9, s10"); a("s_add_u32 s9, s9, %d" % WS_ST)
    a("s_mov_b32 exec_lo, 0x80008000"); a("s_mov_b32 exec_hi, 0x80008000")
    a("buffer_store_dword v8, v9, s[28:31], s9 offen" + SS)
    a("s_mov_b64 exec, -1")
    stamp(a, 2)
    a("s_waitcnt vmcnt(0)"); a("s_barrier")
    a("s_cmp_lg_u32 s20, 0"); a("s_cbranch_scc1 SG_X")
    signal(a, 32, "SG_X", 0, 128, NX)
    a("s_mov_b64 exec, -1")
    if PFM == 4:
        a("s_setprio 0")
        a("s_and_b32 s66, s3, 7"); a("s_lshl_b32 s66, s66, 8"); a("s_lshr_b32 s67, s3, 3"); a("s_lshl_b32 s67, s67, 4"); a("s_add_u32 s66, s66, s67")
        a("s_lshl_b32 s67, s20, 2"); a("s_add_u32 s66, s66, s67"); a("s_lshl_b32 s66, s66, 12"); a("v_lshlrev_b32 v4, 6, v1")
        for r in range(4): a("buffer_load_dword v5, v4, s[36:39], s66 offen"); a("s_add_u32 s66, s66, 4096")
    endp(a, KI)

def role_mod(a):
    a.reset_counts()
    if PRIO: a("s_setprio 3")
    for i, n in enumerate(("wmod", "c", "ws", "dbg", "wsp")): load_ptr(a, 24 + 4 * i, n)
    a("s_sub_u32 s3, s2, %d" % O_M)
    a("s_lshr_b32 s4, s3, 1"); a("s_and_b32 s5, s3, 1")
    a("v_lshrrev_b32 v2, 3, v1"); a("s_lshl_b32 s6, s5, 8"); a("s_lshl_b32 s7, s20, 6"); a("s_add_u32 s6, s6, s7")
    a("v_add_u32 v2, s6, v2")
    a("v_mul_u32_u24 v3, 6144, v2"); a("v_and_b32 v4, 7, v1"); a("v_lshl_add_u32 v3, v4, 4, v3")
    a("s_lshl_b32 s7, s4, 7"); a("v_lshlrev_b32 v5, 1, v2")
    a("s_waitcnt lgkmcnt(0)")
    for i, n in enumerate(("wmod", "c", "ws", "dbg", "wsp")): make_srd(a, 24 + 4 * i, n)
    for it in range(8):
        a("buffer_load_dwordx4 v[%d:%d], v3, s[24:27], s7 offen%s" % (40 + 4 * it, 43 + 4 * it, NT), tag=it)
        if it < 7: a("s_add_u32 s7, s7, %d" % (8 * 6144))
    for it in range(8): a("buffer_load_ushort v%d, v5, s[28:31], 0 offen offset:%d" % (30 + it, it * 16), tag="c")
    a("v_lshrrev_b32 v8, 4, v1"); a("s_lshl_b32 s8, s20, 2"); a("v_add_u32 v8, s8, v8"); a("v_lshlrev_b32 v8, 8, v8"); a("v_lshl_add_u32 v8, v4, 5, v8")
    a("v_lshlrev_b32 v9, 2, v1")
    a.wait_vm("c")
    for it in range(8):
        r = 30 + it
        a("v_lshlrev_b32 v%d, 16, v%d" % (r, r)); a("v_mul_f32 v10, %s, v%d" % (fl(-LOG2E), r))
        a("v_exp_f32 v10, v10"); a("v_add_f32 v10, 1.0, v10"); a("v_rcp_f32 v10, v10")
        a("v_mul_f32 v%d, v%d, v10" % (r, r)); bf16r(a, r, r)
    for it in range(8):
        for q in range(4):
            w = 40 + 4 * it + q
            a("v_lshlrev_b32 v10, 16, v%d" % w); a("v_and_b32 v11, 0xffff0000, v%d" % w)
            op = "v_mul_f32" if it == 0 else "v_fmac_f32"
            a("%s v%d, v10, v%d" % (op, 80 + 2 * q, 30 + it)); a("%s v%d, v11, v%d" % (op, 81 + 2 * q, 30 + it))
    stamp(a, 2)
    for r in range(80, 88): a("v_add_f32_dpp v%d, v%d, v%d row_shr:8 row_mask:0xf bank_mask:0xf" % (r, r, r))
    a("s_mov_b32 exec_lo, 0xff00ff00"); a("s_mov_b32 exec_hi, 0xff00ff00")
    a("ds_write_b128 v8, v[80:83]"); a("ds_write_b128 v8, v[84:87] offset:16")
    a("s_mov_b64 exec, -1")
    a("s_waitcnt lgkmcnt(0)"); a("s_barrier")
    a("s_cmp_eq_u32 s20, 0"); a("s_cbranch_scc1 MD_W0")
    a("s_branch F_END")
    a.label("MD_W0")
    for i in range(16): a("ds_read_b32 v%d, v9 offset:%d" % (12 + i, i * 256))
    a("s_mul_i32 s9, s5, 24576"); a("s_lshl_b32 s10, s4, 8"); a("s_add_u32 s9, s9, s10"); a("s_add_u32 s9, s9, %d" % WS_MODP); a("s_add_u32 s10, s9, 12288")
    a("s_waitcnt lgkmcnt(0)")
    for hb in (12, 20):
        for st in (4, 2, 1):
            for i in range(st): a("v_add_f32 v%d, v%d, v%d" % (hb + i, hb + i, hb + i + st))
    a("buffer_store_dword v12, v9, s[32:35], s9 offen" + SS); a("buffer_store_dword v20, v9, s[32:35], s10 offen" + SS)
    signal(a, 36, "SG_M", 64, 132, NM)
    endp(a, KI)

def pack_addr(a, s_dst, unit_stride):
    a("v_lshlrev_b32 v4, 4, v0")
    a("v_lshrrev_b32 v5, 4, v1"); a("v_bfe_u32 v6, v1, 2, 2"); a("v_and_b32 v7, 3, v1")
    a("v_lshl_add_u32 v8, v5, 3, v6"); a("v_lshlrev_b32 v8, 6, v8"); a("v_lshl_add_u32 v8, v7, 4, v8")
    a("s_lshr_b32 s6, s20, 1"); a("s_and_b32 s7, s20, 1")
    a("s_lshl_b32 s9, s6, 11"); a("s_lshl_b32 s10, s7, 3"); a("s_add_u32 s9, s9, s10"); a("v_add_u32 v8, s9, v8")
    a("v_lshlrev_b32 v9, 4, v1")
    a("s_lshl_b32 s9, s6, 10"); a("s_mul_i32 s10, s7, %d" % unit_stride); a("s_add_u32 s9, s9, s10"); a("s_add_u32 s%d, s%d, s9" % (s_dst, s_dst))
def pack_out(a, ws_srd, nit, s_dst):
    for it in range(nit):
        b = 32 + 4 * it
        a("ds_read_b64_tr_b16 v[%d:%d], v8 offset:%d" % (b, b + 1, it * 4096), tag=("t", it))
        a("ds_read_b64_tr_b16 v[%d:%d], v8 offset:%d" % (b + 2, b + 3, it * 4096 + 256), tag=("t", it))
    for it in range(nit):
        b = 32 + 4 * it
        if it and it % 2 == 0: a("s_add_u32 s%d, s%d, 4096" % (s_dst, s_dst))
        a.wait_lg(("t", it))
        a("buffer_store_dwordx4 v[%d:%d], v9, s[%d:%d], s%d offen offset:%d%s" % (b, b + 3, ws_srd, ws_srd + 3, s_dst, (it & 1) * 2048, SC))

def role_pack(a):
    a.reset_counts()
    load_ptr(a, 24, "win"); load_ptr(a, 28, "ws"); load_ptr(a, 32, "dbg")
    a("s_sub_u32 s3, s2, %d" % O_P); a("s_and_b32 s11, s3, 1"); a("s_lshr_b32 s3, s3, 1")
    a("s_cmp_ge_u32 s3, 22"); a("s_cselect_b32 s4, 22, 0"); a("s_cselect_b32 s5, 1376, 0")
    a("s_sub_u32 s4, s3, s4")
    a("s_lshl_b32 s6, s4, 6"); a("s_add_u32 s5, s5, s6"); a("s_mul_i32 s6, s11, %d" % (256 * 2752)); a("s_add_u32 s5, s5, s6")
    a("v_lshrrev_b32 v2, 2, v1"); a("s_lshl_b32 s6, s20, 4"); a("v_add_u32 v2, s6, v2")
    a("v_mul_u32_u24 v3, 2752, v2"); a("v_and_b32 v4, 3, v1"); a("v_lshl_add_u32 v3, v4, 4, v3")
    a("s_cmp_eq_u32 s4, 21"); a("s_cselect_b32 s7, 2, 4")
    a("v_cmp_gt_u32 vcc, s7, v4"); a("v_mov_b32 v5, 0x7f000000"); a("v_cndmask_b32 v3, v5, v3, vcc")
    a("s_lshl_b32 s8, s3, 15"); a("s_lshl_b32 s6, s11, 13"); a("s_add_u32 s8, s8, s6"); a("s_add_u32 s8, s8, %d" % WS_WIN)
    a("s_waitcnt lgkmcnt(0)")
    make_srd(a, 24, "win"); make_srd(a, 28, "ws"); make_srd(a, 32, "dbg")
    if PEARLY:
        for it in range(4):
            a("buffer_load_dwordx4 v[%d:%d], v3, s[24:27], s5 offen%s" % (32 + 4 * it, 35 + 4 * it, NT))
            if it < 3: a("s_add_u32 s5, s5, %d" % (64 * 2752))
    pack_addr(a, 8, 16384)
    a("v_lshlrev_b32 v10, 2, v0"); a("v_lshlrev_b32 v11, 2, v2")
    a("s_cmp_lg_u32 s20, 0"); a("s_cbranch_scc1 PK_W")
    poll(a, 32, "PK_POLL", 12, 13, PSL)
    a.label("PK_W")
    a("s_barrier")
    if not PEARLY:
        for it in range(4):
            a("buffer_load_dwordx4 v[%d:%d], v3, s[24:27], s5 offen%s" % (32 + 4 * it, 35 + 4 * it, NT))
            if it < 3: a("s_add_u32 s5, s5, %d" % (64 * 2752))
    a("s_lshl_b32 s12, s11, 10"); a("s_add_u32 s12, s12, %d" % (WS_MODP + 3 * 2048))
    for p in range(4):
        for sec in range(3):
            if sec == 2: a("s_add_u32 s13, s12, 4096")
            a("buffer_load_dword v%d, v10, s[28:31], s%d offen offset:%d%s" % (60 + 4 * sec + p, 13 if sec == 2 else 12, (sec & 1) * 2048, SS))
        if p < 3: a("s_add_u32 s12, s12, 12288")
    a("s_waitcnt vmcnt(0)")
    for sec in range(3):
        b = 60 + 4 * sec
        a("v_add_f32 v%d, v%d, v%d" % (b, b, b + 1)); a("v_add_f32 v%d, v%d, v%d" % (b + 2, b + 2, b + 3)); a("v_add_f32 v%d, v%d, v%d" % (b, b, b + 2)); bf16r(a, b, b)
    a("v_add_f32 v64, 1.0, v64"); bf16r(a, 64, 64)
    a("ds_write_b32 v10, v60 offset:16384"); a("ds_write_b32 v10, v64 offset:17408")
    a("s_cmp_lg_u32 s3, 0"); a("s_cbranch_scc1 PK_NG")
    a("s_lshl_b32 s12, s11, 10"); a("s_add_u32 s12, s12, %d" % (WS_MOD + 5 * 2048))
    a("buffer_store_dword v68, v10, s[28:31], s12 offen" + SC)
    a.label("PK_NG")
    a("s_waitcnt lgkmcnt(0)"); a("s_barrier")
    for it in range(4):
        a("ds_read_b32 v%d, v11 offset:%d" % (60 + it, 16384 + it * 256)); a("ds_read_b32 v%d, v11 offset:%d" % (64 + it, 17408 + it * 256))
    for i in range(16): a("v_mov_b32 v%d, 0" % (80 + i))
    a("s_waitcnt lgkmcnt(0)")
    for it in range(4):
        for q in range(4):
            w = 32 + 4 * it + q
            a("v_lshlrev_b32 v12, 16, v%d" % w); a("v_and_b32 v13, 0xffff0000, v%d" % w)
            a("v_fmac_f32 v%d, v12, v%d" % (88 + 2 * q, 60 + it)); a("v_fmac_f32 v%d, v13, v%d" % (89 + 2 * q, 60 + it))
            a("v_mul_f32 v12, v12, v%d" % (64 + it)); a("v_mul_f32 v13, v13, v%d" % (64 + it))
            a("v_cvt_pk_bf16_f32 v%d, v12, v13" % w)
            a("v_lshlrev_b32 v12, 16, v%d" % w); a("v_and_b32 v13, 0xffff0000, v%d" % w)
            a("v_add_f32 v%d, v%d, v12" % (80 + 2 * q, 80 + 2 * q)); a("v_add_f32 v%d, v%d, v13" % (81 + 2 * q, 81 + 2 * q))
        a("ds_write_b128 v4, v[%d:%d] offset:%d" % (32 + 4 * it, 35 + 4 * it, it * 4096))
    for sh in (4, 8):
        for r in range(80, 96): a("v_add_f32_dpp v%d, v%d, v%d row_shr:%d row_mask:0xf bank_mask:0xf" % (r, r, r, sh))
    a("s_lshl_b32 s13, s20, 2"); a("v_add_u32 v12, s13, v5"); a("v_lshlrev_b32 v12, 7, v12"); a("v_lshl_add_u32 v12, v7, 5, v12")
    a("s_mov_b32 exec_lo, 0xf000f000"); a("s_mov_b32 exec_hi, 0xf000f000")
    for q in range(2):
        a("ds_write_b128 v12, v[%d:%d] offset:%d" % (80 + 8 * q, 83 + 8 * q, 20480 + q * 2048)); a("ds_write_b128 v12, v[%d:%d] offset:%d" % (84 + 8 * q, 87 + 8 * q, 20480 + q * 2048 + 16))
    a("s_mov_b64 exec, -1")
    a("s_waitcnt lgkmcnt(0)"); a("s_barrier")
    a.reset_counts()
    pack_out(a, 28, 4, 8)
    a("s_cmp_lg_u32 s20, 0"); a("s_cbranch_scc1 F_END")
    a("v_and_b32 v12, 31, v1"); a("v_lshlrev_b32 v12, 2, v12"); a("v_lshrrev_b32 v13, 5, v1"); a("v_lshl_add_u32 v12, v13, 11, v12")
    for i in range(16): a("ds_read_b32 v%d, v12 offset:%d" % (60 + i, 20480 + i * 128))
    a("v_bfe_u32 v14, v1, 2, 1"); a("v_lshlrev_b32 v14, 6, v14"); a("v_bfe_u32 v15, v1, 3, 2"); a("v_lshl_add_u32 v14, v15, 4, v14")
    a("v_and_b32 v15, 3, v1"); a("v_lshl_add_u32 v14, v15, 2, v14"); a("v_mul_u32_u24 v13, %d, v13" % (WS_CS2 - WS_CS1)); a("v_add_u32 v14, v14, v13")
    a("s_lshl_b32 s12, s3, 7"); a("s_mul_i32 s13, s11, %d" % CS_PART); a("s_add_u32 s12, s12, s13"); a("s_add_u32 s12, s12, %d" % WS_CS1)
    a("s_waitcnt lgkmcnt(0)")
    for st in (8, 4, 2, 1):
        for i in range(st): a("v_add_f32 v%d, v%d, v%d" % (60 + i, 60 + i, 60 + i + st))
    a("buffer_store_dword v60, v14, s[28:31], s12 offen" + SC)
    endp(a, KI)

def role_wout(a):
    a.reset_counts()
    load_ptr(a, 24, "wout"); load_ptr(a, 28, "ws")
    a("s_sub_u32 s3, s2, %d" % O_W); a("s_and_b32 s4, s3, 15"); a("s_lshr_b32 s11, s3, 4")
    a("s_lshl_b32 s5, s4, 6"); a("s_lshl_b32 s6, s11, 18"); a("s_add_u32 s5, s5, s6")
    a("v_lshrrev_b32 v2, 2, v1"); a("s_lshl_b32 s6, s20, 4"); a("v_add_u32 v2, s6, v2")
    a("v_lshlrev_b32 v3, 10, v2"); a("v_and_b32 v4, 3, v1"); a("v_lshl_add_u32 v3, v4, 4, v3")
    a("s_mul_i32 s8, s4, %d" % (2 * 24 * 1024)); a("s_lshl_b32 s6, s11, 13"); a("s_add_u32 s8, s8, s6"); a("s_add_u32 s8, s8, %d" % WS_WOUT)
    a("s_waitcnt lgkmcnt(0)")
    make_srd(a, 24, "wout"); make_srd(a, 28, "ws")
    for it in range(4):
        a("buffer_load_dwordx4 v[%d:%d], v3, s[24:27], s5 offen%s" % (32 + 4 * it, 35 + 4 * it, NT), tag=it)
        if it < 3: a("s_add_u32 s5, s5, 65536")
    pack_addr(a, 8, 24 * 1024)
    if CPF:
        vmc = list(a.vm)
        a("s_cmp_ge_u32 s3, 8"); a("s_cbranch_scc1 WO_NC")
        a("s_getpc_b64 s[40:41]")
        a.label("WO_PC")
        a("s_add_u32 s40, s40, g123_kernel-WO_PC"); a("s_addc_u32 s41, s41, 0")
        a("v_lshlrev_b32 v70, 6, v1"); a("s_lshl_b32 s42, s20, 13"); a("v_add_u32 v70, s42, v70"); a("v_add_u32 v71, 4096, v70")
        a("v_min_u32 v70, G_CODE_END-g123_kernel-4, v70"); a("v_min_u32 v71, G_CODE_END-g123_kernel-4, v71")
        a("global_load_dword v72, v70, s[40:41]"); a("global_load_dword v73, v71, s[40:41]")
        a("s_waitcnt vmcnt(0)")
        a.label("WO_NC")
        a.vm = vmc
    a("s_cmp_lg_u32 s3, 0"); a("s_cbranch_scc1 WO_NF")
    for i in range(4): a("v_mov_b32 v%d, 0" % (60 + i))
    a("s_mov_b32 s12, %d" % WS_FLG)
    vm0 = list(a.vm)
    a("buffer_store_dwordx4 v[60:63], v4, s[28:31], s12 offen" + SC)
    a("s_add_u32 s12, s12, 4096")
    a("buffer_store_dwordx4 v[60:63], v4, s[28:31], s12 offen" + SC)
    a("s_waitcnt vmcnt(0)")
    a.vm = vm0
    a.label("WO_NF")
    for it in range(4):
        a.wait_vm(it); a("ds_write_b128 v4, v[%d:%d] offset:%d" % (32 + 4 * it, 35 + 4 * it, it * 4096))
    a("s_waitcnt lgkmcnt(0)"); a("s_barrier")
    pack_out(a, 28, 4, 8)
    endp(a, KI)

def gen():
    a = Asm()
    stamp_init(a)
    a("v_and_b32 v1, 63, v0"); a("v_lshrrev_b32 v2, 6, v0"); a("v_readfirstlane_b32 s20, v2")
    a("s_cmp_ge_u32 s2, %d" % GRID); a("s_cbranch_scc1 F_END")
    a("s_cmp_ge_u32 s2, %d" % O_W); a("s_cbranch_scc1 F_WOUT")
    a("s_cmp_ge_u32 s2, %d" % O_P); a("s_cbranch_scc1 F_PACK")
    a("s_cmp_ge_u32 s2, %d" % O_M); a("s_cbranch_scc1 F_MOD")
    a("s_cmp_ge_u32 s2, %d" % O_X); a("s_cbranch_scc1 F_X")
    role_conv(a)
    a.label("F_MOD"); role_mod(a)
    a.label("F_X"); role_x(a)
    a.label("F_PACK"); role_pack(a)
    a.label("F_WOUT"); role_wout(a)
    a.label("F_END"); endp(a, KI)
    return a
```
